```python
import torch

def _softmax(x, axis=-1):
    return torch.softmax(x, dim=axis)

def _gelu(x):
    return torch.nn.functional.gelu(x, approximate='tanh')

def _silu(x):
    return torch.nn.functional.silu(x)

def _sigmoid(x):
    return torch.sigmoid(x)

def _layernorm(x, axis=-1, eps=1e-05):
    m = x.mean(dim=axis, keepdim=True)
    v = x.var(dim=axis, keepdim=True, unbiased=False)
    return (x - m) / torch.sqrt(v + eps)

def _scatter_add(tgt, idx, src, axis=0):
    return tgt.clone().index_add_(axis, idx, src)

def _segment_sum(src, seg, n):
    out = torch.zeros((n,) + src.shape[1:], dtype=src.dtype)
    return out.index_add_(0, seg, src)

def _pad(x, pw):
    flat = tuple((v for pair in reversed(pw) for v in pair))
    return torch.nn.functional.pad(x, flat)
kernel_name = 'concat_heads__memory_aug_recurrent_mem_tr__ssm_conv_s4__prompt'

def setup_inputs():

    _w = lambda a: (lambda t: t.to(torch.bfloat16) if t.is_floating_point() else t)(torch.as_tensor(a))

    def _A_setup():
        B, S, Dm = (1, 2048, 1024)
        H, Dh = (32, 128)
        M, seg = (8, 32)
        seg = min(seg, S)
        S = S // seg * seg
        return {'x': _w((lambda *s: torch.randn(*s, dtype=torch.bfloat16) * 0.05)(B, S, Dm)), 'mem0': _w((lambda *s: torch.randn(*s, dtype=torch.bfloat16) * 0.4)(B, M, Dm)), 'Wq': _w((lambda *s: torch.randn(*s, dtype=torch.bfloat16) * 6.4)(Dm, H, Dh) * Dm ** (-0.5)), 'Wk': _w((lambda *s: torch.randn(*s, dtype=torch.bfloat16) * 6.4)(Dm, H, Dh) * Dm ** (-0.5)), 'Wv': _w((lambda *s: torch.randn(*s, dtype=torch.bfloat16) * 0.4)(Dm, H, Dh) * Dm ** (-0.5)), 'Wo': _w((lambda *s: torch.randn(*s, dtype=torch.bfloat16) * 0.4)(H, Dh, Dm) * (H * Dh) ** (-0.5)), 'seg_len': seg}
    _A_in = _A_setup()

    def _B_setup():
        B, L, D, N = (1, 2048, 1024, 128)
        A_re = -(lambda _x: torch.exp(torch.as_tensor(_x)))((lambda *s: torch.randn(*s, dtype=torch.bfloat16) * 6.4)(D, N))
        A_im = torch.pi * (lambda *s: torch.randn(*s, dtype=torch.bfloat16) * 0.05)(D, N)
        B_re = (lambda *s: torch.randn(*s, dtype=torch.bfloat16) * 0.1)(D, N)
        B_im = (lambda *s: torch.randn(*s, dtype=torch.bfloat16) * 0.1)(D, N)
        C_re = (lambda *s: torch.randn(*s, dtype=torch.bfloat16) * 0.1)(D, N)
        C_im = (lambda *s: torch.randn(*s, dtype=torch.bfloat16) * 0.1)(D, N)
        log_dt = (lambda *s: torch.randn(*s, dtype=torch.bfloat16) * 0.05)(D) * 0.5 - 4.0
        Dskip = (lambda *s: torch.randn(*s, dtype=torch.bfloat16) * 0.05)(D)
        return {'u': _w((lambda *s: torch.randn(*s, dtype=torch.bfloat16) * 0.05)(B, L, D)), 'A_re': _w(A_re), 'A_im': _w(A_im), 'B_re': _w(B_re), 'B_im': _w(B_im), 'C_re': _w(C_re), 'C_im': _w(C_im), 'log_dt': _w(log_dt), 'Dskip': _w(Dskip)}
    _B_in = _B_setup()
    return {'A_x': _A_in['x'], 'A_mem0': _A_in['mem0'], 'A_Wq': _A_in['Wq'], 'A_Wk': _A_in['Wk'], 'A_Wv': _A_in['Wv'], 'A_Wo': _A_in['Wo'], 'A_seg_len': _A_in['seg_len'], 'B_u': _B_in['u'], 'B_A_re': _B_in['A_re'], 'B_A_im': _B_in['A_im'], 'B_B_re': _B_in['B_re'], 'B_B_im': _B_in['B_im'], 'B_C_re': _B_in['C_re'], 'B_C_im': _B_in['C_im'], 'B_log_dt': _B_in['log_dt'], 'B_Dskip': _B_in['Dskip']}

def reference(A_x, A_mem0, A_Wq, A_Wk, A_Wv, A_Wo, A_seg_len, B_u, B_A_re, B_A_im, B_B_re, B_B_im, B_C_re, B_C_im, B_log_dt, B_Dskip):

    def _A_ref(x, mem0, Wq, Wk, Wv, Wo, seg_len):
        B, S, Dm = x.shape
        H, Dh = (Wq.shape[1], Wq.shape[2])
        M = mem0.shape[1]
        scale = Dh ** (-0.5)
        n_seg = S // seg_len
        L = M + seg_len
        idx = torch.arange(L)
        mask = (idx[:, None] < M) | (idx[:, None] >= idx[None, :])
        mem = mem0
        outs = []
        for s in range(n_seg):
            xs = x[:, s * seg_len:(s + 1) * seg_len, :].clone()
            h = torch.concatenate([mem, xs], axis=1)
            q = torch.einsum('btd,dhe->bhte', h, Wq)
            k = torch.einsum('btd,dhe->bhte', h, Wk)
            v = torch.einsum('btd,dhe->bhte', h, Wv)
            scores = torch.einsum('bhqe,bhke->bhqk', q, k) * scale
            scores = torch.where(mask[None, None], scores, -1000000000.0)
            p = _softmax(scores, axis=-1)
            o = torch.einsum('bhqk,bhke->bhqe', p, v)
            o = torch.einsum('bhte,hed->btd', o, Wo)
            mem = o[:, :M, :].clone()
            outs.append(o[:, M:, :])
        return torch.concatenate(outs, axis=1)

    def _B_ref(u, A_re, A_im, B_re, B_im, C_re, C_im, log_dt, Dskip):
        Bsz, L, D = u.shape
        dt = torch.exp(log_dt)[:, None]
        A = A_re + 1j * A_im
        Bc = B_re + 1j * B_im
        Cc = C_re + 1j * C_im
        logdA = dt * A
        dB = dt * Bc
        l = (lambda x, dt: x.to(dt))(torch.arange(L), A_re.dtype)
        P = torch.exp(logdA[:, :, None] * l[None, None, :])
        K = torch.einsum('dn,dnl,dn->dl', Cc, P, dB).real
        L2 = 2 * L
        Kp = _pad(K, ((0, 0), (0, L)))
        up = (lambda x, *d: x.permute(*d))(u, 0, 2, 1)
        up = _pad(up, ((0, 0), (0, 0), (0, L)))
        Kf = (lambda x, axes=(-2, -1): torch.fft.rfft2(x.float(), dim=axes))(Kp[:, None, :], axes=(-2, -1))
        Uf = (lambda x, axes=(-2, -1): torch.fft.rfft2(x.float(), dim=axes))(up[:, :, None, :], axes=(-2, -1))
        Yf = Uf * Kf[None, :, :, :]
        y = (lambda x, s, axes=(-2, -1): torch.fft.irfft2(x, s=s, dim=axes).to(torch.bfloat16))(Yf, (1, L2), axes=(-2, -1))[:, :, 0, :L]
        y = (lambda x, *d: x.permute(*d))(y, 0, 2, 1) + u * Dskip[None, None, :]
        return y
    a = _A_ref(A_x, A_mem0, A_Wq, A_Wk, A_Wv, A_Wo, A_seg_len)
    b = _B_ref(B_u, B_A_re, B_A_im, B_B_re, B_B_im, B_C_re, B_C_im, B_log_dt, B_Dskip)
    return torch.concatenate([a, b], axis=-1)
```

```python
import re

TRANS = ("v_exp_f32", "v_log_f32", "v_rcp_f32", "v_rsq_f32", "v_sqrt_f32", "v_sin_f32", "v_cos_f32")
_REG = re.compile(r"^(-|abs\()?([vas])(?:(\d+)|\[(\d+):(\d+)\])\)?$")


def regs(tok):
    tok = tok.strip()
    if tok == "vcc":
        return {("s", 106), ("s", 107)}
    if tok == "m0":
        return {("s", 124)}
    if tok == "exec":
        return {("s", 126), ("s", 127)}
    m = _REG.match(tok)
    if not m:
        return set()
    k = m.group(2)
    if m.group(3) is not None:
        return {(k, int(m.group(3)))}
    return {(k, i) for i in range(int(m.group(4)), int(m.group(5)) + 1)}


class Ins:
    def __init__(self, text):
        self.text = text
        body = text.split(";")[0].strip()
        self.label = body[:-1] if body.endswith(":") else None
        self.op = None
        self.defs, self.uses = set(), set()
        self.srcc = set()
        self.store_data = set()
        if self.label or not body or body.startswith("."):
            return
        parts = body.split(None, 1)
        self.op = op = parts[0]
        rest = parts[1] if len(parts) > 1 else ""
        brk = re.findall(r"\s[a-z_]+:\[[^\]]*\]", rest)
        rest = re.sub(r"\s[a-z_]+:\[[^\]]*\]", "", rest)
        ops = [o.strip() for o in rest.split(",")] if rest else []
        mods = " ".join(brk)
        if ops:
            last = ops[-1].split(None, 1)
            ops[-1] = last[0] if last else ""
            mods += " " + (last[1] if len(last) > 1 else "")
        self.ops, self.mods = ops, mods
        R = [regs(o) for o in ops]
        self.mfma = op.startswith("v_mfma") or op.startswith("v_smfmac")
        self.valu = op.startswith("v_") and not self.mfma
        self.vmem = op.startswith(("buffer_", "global_"))
        self.ds = op.startswith("ds_")
        self.salu = op.startswith("s_")
        self.dpp = "_dpp" in op or "row_ror" in mods or "row_shr" in mods or "quad_perm" in mods
        self.trans = op.replace("_e32", "").replace("_e64", "") in TRANS
        self.passes = 0
        self.lds_dma = self.vmem and (re.search(r"\blds\b", mods) is not None or "load_lds" in op)
        if self.mfma:
            self.passes = 8 if "32x32" in op else 4
            if op.endswith("_f32") and "x2_f32" in op:
                self.passes = 16
            if op.endswith("x4_f32"):
                self.passes = 8
            self.defs = set(R[0])
            if op.startswith("v_smfmac"):
                self.srcc = set(R[0])
                self.uses = R[1] | R[2] | R[3]
            else:
                self.srcc = set(R[3])
                self.uses = R[1] | R[2]
        elif self.valu:
            if op.startswith(("v_permlane", "v_swap")):
                self.defs = R[0] | R[1]
                self.uses = R[0] | R[1]
            elif op.startswith(("v_add_co", "v_sub_co", "v_addc_co", "v_subb_co")):
                self.defs = R[0] | R[1]
                self.uses = set().union(*R[2:])
            elif op == "v_nop":
                pass
            else:
                self.defs = set(R[0])
                self.uses = set().union(*R[1:]) if len(R) > 1 else set()
                if op.startswith(("v_fmac", "v_pk_fmac", "v_writelane")) or self.dpp:
                    self.uses |= R[0]
        elif self.vmem:
            if op in ("buffer_inv", "buffer_wbl2"):
                pass
            elif self.lds_dma:
                self.uses = set().union(*R) | regs("m0")
            elif "_load" in op:
                self.defs = set(R[0])
                self.uses = set().union(*R[1:])
            elif "_store" in op:
                self.uses = set().union(*R)
                self.store_data = R[0] if op.startswith("buffer_") else R[1]
                if not op.endswith(("x3", "x4")):
                    self.store_data = set()
            elif "_atomic" in op:
                ret = re.search(r"\bsc0\b", mods) is not None
                if op.startswith("buffer_"):
                    self.uses = set().union(*R)
                    if ret:
                        self.defs = set(R[0])
                elif ret:
                    self.defs = set(R[0])
                    self.uses = set().union(*R[1:])
                else:
                    self.uses = set().union(*R)
        elif self.ds:
            if op.startswith(("ds_read", "ds_bpermute", "ds_permute", "ds_swizzle")) or "_rtn" in op:
                self.defs = set(R[0])
                self.uses = set().union(*R[1:])
            else:
                self.uses = set().union(*R)
        elif self.salu:
            if op.startswith(("s_cmp", "s_cbranch", "s_branch", "s_waitcnt", "s_nop", "s_barrier", "s_endpgm",
                              "s_setprio", "s_sleep", "s_bitcmp")):
                self.uses = set().union(*R) if R else set()
            else:
                self.defs = set(R[0]) if R else set()
                self.uses = set().union(*R[1:]) if len(R) > 1 else set()
                if "saveexec" in op:
                    self.defs |= regs("exec")

    def slots(self):
        if self.op == "s_nop":
            return int(self.ops[0], 0) + 1
        return 1


def vec(rs):
    return {r for r in rs if r[0] in "va"}


def sca(rs):
    return {r for r in rs if r[0] == "s"}


def required(p, c):
    n = 0
    if p.mfma:
        big = {4: 8, 8: 12, 16: 20}[p.passes]
        if c.mfma:
            if p.defs & c.uses:
                n = max(n, big)
            if p.defs & c.srcc:
                same = p.defs == c.srcc and p.passes == c.passes
                if not same:
                    n = max(n, big - 2)
            elif p.defs & c.defs:
                n = max(n, big - 2)
        elif c.valu or c.vmem or c.ds:
            if p.defs & (c.uses | c.defs):
                n = max(n, big)
            if c.valu and (p.srcc & c.defs):
                n = max(n, p.passes - 1)
    if p.valu:
        vd = vec(p.defs)
        sd = sca(p.defs)
        if c.mfma and vd & (c.uses | c.srcc):
            n = max(n, 2)
        if c.valu:
            if c.op.startswith("v_permlane") and vd & c.uses:
                n = max(n, 2)
            if c.dpp and vd & c.uses:
                n = max(n, 2)
            if c.op.startswith(("v_readlane", "v_readfirstlane")) and vd & c.uses:
                n = max(n, 1)
            if p.trans and not c.trans and vd & c.uses:
                n = max(n, 1)
            if sd & c.uses:
                n = max(n, 4 if c.op.startswith(("v_readlane", "v_writelane")) else 2)
            if ("op_sel" in p.mods and not p.op.startswith("v_pk_") or "_sdwa" in p.op) and vd & (c.uses | c.defs):
                n = max(n, 1)
        if c.vmem and sd & c.uses:
            n = max(n, 5)
        if c.salu and sd & c.uses and not c.op.startswith("s_cbranch"):
            n = max(n, 1)
    if p.vmem and p.store_data:
        if p.store_data & c.defs:
            n = max(n, 2 if (c.valu or c.mfma) else 1)
    if p.salu and regs("m0") & p.defs and c.lds_dma:
        n = max(n, 1)
    return n


HORIZON = 22


def _elapsed(path):
    t = 0
    last_m = None
    times = []
    for ins in path:
        if ins.mfma and last_m is not None:
            t = max(t, last_m[0] + last_m[1])
        times.append(t)
        if ins.mfma:
            last_m = (t, ins.passes)
        t += ins.slots()
    return times[-1] - times[0] - 1


def fix_hazards(lines, verbose=False):
    ins = [Ins(l) for l in lines]
    total = 0
    i = 0

    def build():
        labels = {x.label: k for k, x in enumerate(ins) if x.label}
        jumps = {}
        for k, x in enumerate(ins):
            if x.op and (x.op.startswith("s_cbranch") or x.op == "s_branch"):
                jumps.setdefault(labels[x.ops[0]], []).append(k)
        return jumps

    jumps = build()

    def preds(k):
        out = []
        if k > 0:
            p = ins[k - 1]
            if not (p.op in ("s_branch", "s_endpgm")):
                out.append(k - 1)
        if ins[k].label:
            out += jumps.get(k, [])
        return out

    while i < len(ins):
        c = ins[i]
        if c.op is None or c.op in ("s_nop", "s_waitcnt", "s_barrier", "s_branch", "s_endpgm"):
            i += 1
            continue
        need = 0
        why = None
        stack = [(k, [c], 0) for k in preds(i)]
        seen = set()
        while stack:
            k, path, dist = stack.pop()
            p = ins[k]
            if p.op is not None:
                r = required(p, c)
                full = [p] + path
                if r:
                    short = r - _elapsed(full)
                    if short > 0:
                        pad = short
                        while r - _elapsed(full[:-1] + [Ins(f"s_nop {pad - 1}"), c]) > 0:
                            pad += 1
                        if pad > need:
                            need, why = pad, p.text
                path = full
                dist += p.slots()
            if dist >= HORIZON:
                continue
            key = (k, dist)
            if key in seen:
                continue
            seen.add(key)
            for q in preds(k):
                stack.append((q, path, dist))
        if need:
            if verbose:
                print(f"pad {need} before '{c.text}' (after '{why}')")
            new = []
            left = need
            while left > 0:
                n = min(left, 16)
                new.append(Ins(f"s_nop {n - 1}"))
                left -= n
            ins[i:i] = new
            jumps = build()
            i += len(new)
            total += 1
        i += 1
    return [x.text for x in ins], total


class Asm:
    def __init__(self):
        self.L = []
        self.n = 0

    def __call__(self, x):
        for l in x.split("\n"):
            l = l.strip()
            if l:
                self.L.append(l)

    def lab(self, p="L"):
        self.n += 1
        return f"{p}_{self.n}"

    def lines(self, fix=True, verbose=False):
        if not fix:
            return list(self.L)
        out, n = fix_hazards(self.L, verbose)
        self.pads = n
        return out


def vr(b, n=4, k="v"):
    return f"{k}{b}" if n == 1 else f"{k}[{b}:{b + n - 1}]"


def ar(b, n=4):
    return vr(b, n, "a")


def sr(b, n=2):
    return vr(b, n, "s")
```

```python
from gen_common import *

aQ, aK, aV, aO = 0, 64, 128, 192
wt = lambda bank, c, t: ar(bank + (c * 2 + t) * 8, 8)

vIDX, vLIN, vOST, vMST, vKX, vMM, vVM, vVAL = 1, 2, 3, 4, 5, 6, 7, 8
vLDSW, vT0, vT1 = 9, 10, 11
vLIN8 = 233
vCV = 12
vFL = 14
vA = 16
vQ0, vK0, vQ1, vK1 = 32, 36, 40, 44
vV0, vV1, vW0, vW1 = 48, 52, 56, 60
vP0, vP1 = 64, 68
vZ0, vZ1 = 72, 76
vSELT, vSELV, vONE, vPOI = 80, 84, 88, 92
vR = 96
vZF = 120
vKX0, vKX1, vVX0, vVX1 = 124, 128, 132, 136
vS0, vS1, vSM = 140, 144, 148
vP = [152, 168, 16, 96, 108]
vVA = 184
vVA0, vVA1 = 188, 192
vBX, vBM = 196, 200
vL, vO0, vO1 = 204, 208, 212
vE = 216
vD2 = 224
vX = 228
vM = 236

sJ = sRANK
sSTEP, sPROG, sSEL = "s60", "s61", "s62"
sMEMR, sMEMW, sOR, sOW = "s63", "s64", "s65", "s66"
sSC = [f"s{67 + k}" for k in range(4)]
sPXB = "s71"
sPX = [f"s{72 + k}" for k in range(4)]
sKX, sKMO, sFLG, sU0, sU1 = "s76", "s77", "s78", "s79", "s80"
sLO, sHI = "s[82:83]", "s[84:85]"
sH = "s81"
sKMB = "s87"
ZB, VB, WB, KVB = 0, 8192, 12288, 16384


def smf(e, acc, a, bank, c, t):
    e(f"v_smfmac_f32_16x16x64_bf16 {vr(acc)}, {vr(a)}, {wt(bank, c, t)}, v{vIDX}")


def mf(e, d, a, b, c=None):
    e(f"v_mfma_f32_16x16x32_bf16 {vr(d)}, {vr(a)}, {vr(b)}, {'0' if c is None else vr(c)}")


def cvt2(e, d, s):
    e(f"v_cvt_pk_bf16_f32 v{d}, v{s}, v{s + 1}\nv_cvt_pk_bf16_f32 v{d + 1}, v{s + 2}, v{s + 3}")


def zero(e, b, n):
    for i in range(0, n, 2):
        e(f"v_mov_b64 {vr(b + i, 2)}, 0")


def zero1(e, b, n):
    for i in range(n):
        e(f"v_mov_b32 v{b + i}, 0")


class Stamps:
    def __init__(self, e, on):
        self.e, self.on, self.names = e, on, []

    def __call__(self, name):
        if not self.on:
            return
        i = len(self.names)
        self.names.append(name)
        self.e(f"s_memtime s[{8 + 2 * i}:{9 + 2 * i}]")

    def collect(self, total):
        if not self.on:
            return
        e, n = self.e, len(self.names)
        e("s_waitcnt lgkmcnt(0)")
        order = list(range(n, total)) + list(range(n))
        for i in order:
            e(f"s_sub_u32 s89, s{8 + 2 * i}, s88\ns_mov_b32 s88, s{8 + 2 * i}\nv_add_u32 v{240 + i}, s89, v{240 + i}")


TRACE = DIAG + 65536


def tr(e, opt, i):
    if opt.get("trace"):
        e(f"s_memtime s[{8 + 2 * i}:{9 + 2 * i}]")


def tr_dump(e, opt):
    if not opt.get("trace"):
        return
    sk = e.lab("notr")
    e(f"""s_sub_u32 s89, {sSTEP}, 30
    s_cmp_lt_u32 s89, 8
    s_cbranch_scc0 {sk}
    s_waitcnt lgkmcnt(0)
    s_mov_b32 m0, s89""")
    for i in range(12):
        e(f"v_writelane_b32 v{240 + i}, s{8 + 2 * i}, m0")
    e(f"{sk}:")


def tr_out(e, opt):
    if not opt.get("trace"):
        return
    e(f"""s_lshl_b32 {sU0}, {sH}, 2
    s_add_u32 {sU0}, {sU0}, {sWAVE}
    s_lshl_b32 {sU0}, {sU0}, 9
    s_add_u32 {sU0}, {sU0}, {TRACE}
    s_memtime s[8:9]
    s_memrealtime s[10:11]
    s_waitcnt lgkmcnt(0)
    v_mov_b32 v252, s8
    v_mov_b32 v253, s10
    v_lshlrev_b32 v{vT1}, 6, v0
    s_mov_b64 exec, 0xff""")
    for q in range(4):
        e(f"buffer_store_dwordx4 {vr(240 + 4 * q)}, v{vT1}, {R(rWS)}, {sU0} offen offset:{16 * q}")


def load_weights(e):
    NS = 10
    mats = [(aK, pWK, 8192), (aQ, pWQ, 8192), (aV, pWV, 8192), (aO, pWO, 2048)]
    vG8, vG2, vTR = 16, 17, 18
    sB8, sB2, sL = "s63", "s64", "s65"
    e(f"""v_bfe_u32 v19, v0, 2, 3
    v_and_b32 v20, 32, v0
    v_add_u32 v19, v19, v20
    v_and_b32 v20, 3, v0
    v_lshlrev_b32 v20, 4, v20
    v_lshl_add_u32 v{vG8}, v19, 13, v20
    v_lshl_add_u32 v{vG2}, v19, 11, v20
    v_lshrrev_b32 v21, 5, v0
    v_lshlrev_b32 v21, 4, v21
    v_bfe_u32 v22, v0, 4, 1
    v_lshl_add_u32 v21, v22, 2, v21
    v_bfe_u32 v22, v0, 2, 1
    v_add_u32 v21, v21, v22
    v_bfe_u32 v22, v0, 3, 1
    v_lshl_add_u32 v21, v22, 3, v21
    v_lshl_add_u32 v{vTR}, v21, 6, v20
    s_mul_i32 {sL}, {sWAVE}, {NS * 4096}
    v_add_u32 v{vTR}, {sL}, v{vTR}
    s_lshl_b32 {sB8}, {sWAVE}, 21
    s_lshl_b32 {sT}, {sA}, 5
    s_add_u32 {sT}, {sT}, {sJ}
    s_lshl_b32 {sT}, {sT}, 6
    s_add_u32 {sB8}, {sB8}, {sT}
    s_lshl_b32 {sB2}, {sA}, 2
    s_add_u32 {sB2}, {sB2}, {sWAVE}
    s_lshl_b32 {sB2}, {sB2}, 19
    s_lshl_b32 {sT}, {sJ}, 6
    s_add_u32 {sB2}, {sB2}, {sT}""")
    state = {"srd": {}}

    def issue(n):
        m, c = divmod(n, 4)
        bank, p, pitch = mats[m]
        r = rB1 if m % 2 == 0 else rB2
        if state["srd"].get(r) != m:
            srd(e, r, p, 8 * MB)
            state["srd"][r] = m
        for i in range(4):
            row0 = i * 64 + c * 8
            e(f"""s_add_u32 m0, {sL}, {(n % NS) * 4096 + i * 1024}
            s_add_u32 {sT}, {sB8 if pitch == 8192 else sB2}, {row0 * pitch}
            buffer_load_dwordx4 v{vG8 if pitch == 8192 else vG2}, {R(r)}, {sT} offen lds""")

    for n in range(NS):
        issue(n)
    yield "issued"
    for n in range(16):
        m, c = divmod(n, 4)
        later = min(16, n + NS) - n - 1
        e(f"s_waitcnt vmcnt({later * 4})")
        if n == 0:
            e(f"s_cmp_eq_u32 {sWAVE}, 0\ns_cbranch_scc0 Lc_nosig")
            signal_ready(e, (vT0, vT1))
            e("Lc_nosig:")
        for t in range(2):
            for H in range(2):
                for q in range(2):
                    d = mats[m][0] + (c * 2 + t) * 8 + 4 * H + 2 * q
                    off = (n % NS) * 4096 + (32 * H + 2 * q) * 64 + 8 * t
                    e(f"ds_read_b64_tr_b16 {ar(d, 2)}, v{vTR} offset:{off}")
        if n + NS < 16:
            e("s_waitcnt lgkmcnt(0)")
            issue(n + NS)
    e("s_waitcnt lgkmcnt(0)")
    yield "done"


def gather_load(e, soff, c):
    e(f"buffer_load_dwordx4 {vr(vA + 4 * c)}, v{vLIN}, {R(rWS)}, {soff} offen offset:{1024 * c} sc1")


def gather(e, opt, name, soff, halves, work, tail, accs, ci, gaps):
    diag = opt.get("stamps") or opt.get("total")
    tr(e, opt, 0 + 5 * ci)
    for c in range(4):
        gather_load(e, soff, c)
        if c < 3:
            gaps[c]()
            filler(e, opt.get("gap", 8))
    e(f"{name}_rot:")
    for c in range(4):
        a = vA + 4 * c
        e("s_waitcnt vmcnt(3)")
        if halves:
            e(f"v_max_u32 v{vVAL}, v{a}, v{a + 2}\nv_cmp_eq_u32 vcc, -1, v{vVAL}")
        else:
            e(f"v_cmp_eq_u32 vcc, -1, v{a}")
        e(f"s_cbranch_vccz {name}_got{c}")
        gather_load(e, soff, c)
        if diag:
            e(f"s_add_u32 s{90 + ci}, s{90 + ci}, 1")
    spin_fail(e, f"{name}_rot", f"{name}_late")
    e(f"{name}_redo:")
    for c in range(4):
        gather_load(e, soff, c)
    zero(e, *accs)
    e(f"s_branch {name}_rot\n{name}_late:\ns_waitcnt vmcnt(3)")
    for c0 in range(4):
        e(f"{name}_got{c0}:")
        tr(e, opt, 1 + 5 * ci)
        for k in range(4):
            c = (c0 + k) % 4
            a = vA + 4 * c
            if k:
                e(f"s_waitcnt vmcnt({3 - k})")

            def check(i, k=k, a=a):
                if k and i == 0:
                    if halves:
                        e(f"v_max3_u32 v{vVAL}, v{vVAL}, v{a}, v{a + 2}")
                    elif k == 1:
                        e(f"v_mov_b32 v{vVAL}, v{a}")
                    else:
                        e(f"v_max_u32 v{vVAL}, v{vVAL}, v{a}")
                    if k == 3:
                        e(f"v_cmp_eq_u32 vcc, -1, v{vVAL}")
                if k == 3 and i == 1:
                    e(f"s_cbranch_vccnz {name}_bad{c0}\n{name}_ok{c0}:")
            work(c, k == 3, check)
        tr(e, opt, 2 + 5 * ci)
        tail()
        e(f"s_branch {name}_join")
        e(f"{name}_bad{c0}:")
        if diag:
            e(f"s_add_u32 s{90 + ci}, s{90 + ci}, 0x10000")
        spin_fail(e, f"{name}_redo", f"{name}_ok{c0}")
    e(f"{name}_join:")


def work_a(e):
    def work(c, last, check):
        a = vA + 4 * c
        smf(e, vQ0, a, aQ, c, 0)
        check(0)
        smf(e, vK0, a, aK, c, 0)
        smf(e, vQ1, a, aQ, c, 1)
        if last:
            cvt2(e, vP0, vQ0)
        smf(e, vK1, a, aK, c, 1)
        if last:
            cvt2(e, vP0 + 2, vK0)
        check(1)
    return work


def fold_a(e):
    mf(e, vZ0, vP0, vSELT)
    cvt2(e, vP1, vQ1)
    cvt2(e, vP1 + 2, vK1)
    mf(e, vZ1, vP1, vSELT)


def work_f(e):
    def work(c, last, check):
        a = vA + 4 * c
        smf(e, vW0, a, aO, c, 0)
        check(0)
        smf(e, vW1, a, aO, c, 1)
        check(1)
    return work


def gaps_a(e):
    return [lambda: zero(e, vQ0, 8), lambda: zero(e, vQ1, 8), lambda: zero(e, vV0, 8)]


def gaps_f(e):
    return [lambda: zero1(e, vW0, 4), lambda: zero1(e, vW1, 4), lambda: zero1(e, vP1, 4)]


def v_tiles():
    return [(acc, c, t) for c in range(4) for acc, t in ((vV0, 0), (vV1, 1))]


def helper(e, opt):
    vt = v_tiles()
    sv = lambda k: smf(e, vt[k][0], vA + 4 * vt[k][1], aV, vt[k][1], vt[k][2])

    def tail_a():
        fold_a(e)
        e(f"ds_write_b128 v{vLDSW}, {vr(vZ0)} offset:{ZB}")
        sv(0)
        sv(1)
        e(f"ds_write_b128 v{vLDSW}, {vr(vZ1)} offset:{ZB + 4096}")
        sv(2)

    def tail_f():
        cvt2(e, vP0, vW0)
        cvt2(e, vP0 + 2, vW1)
        e(f"ds_write_b128 v{vLDSW}, {vr(vP0)} offset:{WB}")

    e("Lh_step:\ns_barrier")
    gather(e, opt, "LhA", sMEMR, True, work_a(e), tail_a, (vQ0, 16), 0, gaps_a(e))
    sv(3)
    e("s_waitcnt lgkmcnt(0)\ns_barrier")
    for k in range(4, 8):
        sv(k)
    cvt2(e, vP0, vV0)
    cvt2(e, vP0 + 2, vV1)
    e(f"ds_write_b128 v{vLDSW}, {vr(vP0)} offset:{VB}")
    e(f"""s_xor_b32 {sMEMR}, {sMEMR}, 0x4000
    s_waitcnt lgkmcnt(0)
    s_barrier
    s_cmp_eq_u32 {sSTEP}, {NSEG - 1}
    s_cbranch_scc1 L_chain_done
    s_add_u32 {sU1}, {sSTEP}, 2
    s_add_u32 {sKX}, {sKX}, 0x40000
    s_barrier""")
    gather(e, opt, "LhF", sOR, False, work_f(e), tail_f, (vW0, 8), 1, gaps_f(e))
    hd = opt.get("hd", "kw")
    done = "s_waitcnt lgkmcnt(0)\ns_barrier"
    e(f"""s_cmp_ge_u32 {sWAVE}, 2
    s_cbranch_scc1 Lh_w23
    s_cmp_ge_u32 {sPROG}, {sU1}
    s_cbranch_scc0 Lh_kvwait
    {done}
    Lh_kvok:""")
    if "k" in hd:
        load_kv(e)
    e(f"""s_add_u32 {sU1}, {sU1}, 2
    s_min_u32 {sU1}, {sU1}, {NSEG}
    s_cmp_ge_u32 {sPROG}, {sU1}
    s_cbranch_scc1 Lh_next
    s_mov_b32 {sU1}, 0""")
    wait_kv(e, sU1)
    e(f"s_branch Lh_next\nLh_kvwait:\n{done}")
    wait_kv(e, sU1)
    e(f"""s_branch Lh_kvok
    Lh_w23:
    s_cmp_eq_u32 {sWAVE}, 3
    {done}
    s_cbranch_scc1 Lh_next""")
    if "w" in hd:
        store_flag(e, sSTEP)
    e("Lh_next:")
    tr_dump(e, opt)
    e("s_waitcnt vmcnt(0)")
    e(f"""s_xor_b32 {sOR}, {sOR}, 0x4000
    s_add_u32 {sSTEP}, {sSTEP}, 1""")
    e("s_branch Lh_step")


def z_reduce(e):
    for t, z in ((0, vZ0), (1, vZ1)):
        for w in range(3):
            r = vR + (t * 3 + w) * 4
            n = t * 3 + w
            if n in (0, 1, 3):
                e(f"s_waitcnt lgkmcnt({ {0: 5, 1: 3, 3: 0}[n] })")
            for i in (0, 2):
                e(f"v_pk_fma_f32 {vr(z + i, 2)}, {vr(r + i, 2)}, {vr(vCV, 2)}, {vr(z + i, 2)}")
        cvt2(e, vZF + 2 * t, z)


def v_reduce_issue(e):
    cvt2(e, vP0, vV0)
    cvt2(e, vP0 + 2, vV1)
    e("s_barrier")
    for w in range(3):
        e(f"ds_read_b128 {vr(vR + 4 * w)}, v{vLIN} offset:{VB + 1024 * (w + 1)}")
    mf(e, vVA, vSELV, vP0)


def v_reduce_finish(e, between=None):
    for w in range(3):
        e(f"s_waitcnt lgkmcnt({2 - w})")
        mf(e, vVA, vSELV, vR + 4 * w, vVA)
    if between:
        between()
    e(f"v_cvt_pk_bf16_f32 v{vVA0}, v{vVA}, v{vVA + 1}\nv_cvt_pk_bf16_f32 v{vVA1}, v{vVA + 2}, v{vVA + 3}")


def pack_kv(e):
    e(f"""v_mov_b32_dpp v{vZF}, v{vVA0} quad_perm:[0,1,2,3] row_mask:0xf bank_mask:0x3
    v_mov_b32_dpp v{vZF + 1}, v{vVA1} quad_perm:[0,1,2,3] row_mask:0xf bank_mask:0x3
    v_mov_b32_dpp v{vZF + 2}, v{vVA0} row_ror:8 row_mask:0xf bank_mask:0x3
    v_mov_b32_dpp v{vZF + 3}, v{vVA1} row_ror:8 row_mask:0xf bank_mask:0x3""")


def publish_kv(e):
    e(f"buffer_store_dwordx4 {vr(vZF)}, v{vLIN}, {R(rWS)}, {sKMO} offen sc1")


def store_flag(e, val):
    e(f"""v_mov_b32 v{vT0}, {val}
    v_mov_b32 v{vT1}, {FCO}
    s_mov_b64 exec, 1
    buffer_store_dword v{vT0}, v{vT1}, {R(rWS)}, {sFLG} offen sc1
    s_mov_b64 exec, -1""")


def load_kv(e):
    e(f"""s_add_u32 {sU0}, {sKX}, {VX - KX}
    s_mov_b32 m0, {KVB}
    buffer_load_dwordx4 v{vKX}, {R(rWS)}, {sKX} offen sc1 lds
    s_mov_b32 m0, {KVB + 1024 - 128}
    buffer_load_dwordx4 v{vKX}, {R(rWS)}, {sKX} offen offset:128 sc1 lds
    s_mov_b32 m0, {KVB + 2048}
    buffer_load_dwordx4 v{vKX}, {R(rWS)}, {sU0} offen sc1 lds
    s_mov_b32 m0, {KVB + 3072 - 128}
    buffer_load_dwordx4 v{vKX}, {R(rWS)}, {sU0} offen offset:128 sc1 lds""")


def read_kv(e, i):
    e(f"ds_read_b128 {vr(vKX0 + 4 * i)}, v{vLIN} offset:{KVB + 1024 * i}")


def wait_kv(e, need):
    top, ok = e.lab("kv"), e.lab("kvok")
    e(f"""{top}:
    v_mov_b32 v{vT1}, 0
    buffer_load_dwordx2 {vr(vFL, 2)}, v{vT1}, {R(rWS)}, {sFLG} offen sc1
    s_waitcnt vmcnt(0)
    v_min_u32 v{vT0}, v{vFL}, v{vFL + 1}
    v_readfirstlane_b32 {sPROG}, v{vT0}
    s_cmp_ge_u32 {sPROG}, {need}
    s_cbranch_scc1 {ok}""")
    spin_fail(e, top, ok)
    e(f"{ok}:")


def poll_d(e, s):
    for k in (1, 2, 3):
        e(f"buffer_load_dwordx4 {vr(s + 4 * (k - 1))}, v{vLIN}, {R(rWS)}, {sSC[k]} offen sc1")
    for k in range(4):
        e(f"buffer_load_dword v{s + 12 + k}, v{vMM}, {R(rWS)}, {sSC[k]} offen sc1")


def sum_d(e, s, left):
    e(f"s_waitcnt vmcnt({left + 6})")
    for i in (0, 2):
        e(f"v_pk_add_f32 {vr(vX + i, 2)}, {vr(vS0 + i, 2)}, {vr(s + i, 2)}")
    e(f"s_waitcnt vmcnt({left + 4})")
    for i in (0, 2):
        e(f"v_pk_add_f32 {vr(vE + i, 2)}, {vr(s + 4 + i, 2)}, {vr(s + 8 + i, 2)}")
    e(f"v_max3_u32 v{vVAL}, v{s}, v{s + 4}, v{s + 8}")
    for i in (0, 2):
        e(f"v_pk_add_f32 {vr(vX + i, 2)}, {vr(vX + i, 2)}, {vr(vE + i, 2)}")
    e(f"""s_waitcnt vmcnt({left})
    v_max3_u32 v{vVAL}, v{vVAL}, v{s + 12}, v{s + 13}
    v_max3_u32 v{vVAL}, v{vVAL}, v{s + 14}, v{s + 15}
    v_cmp_eq_u32 vcc, -1, v{vVAL}
    v_add_f32 v{vE}, v{s + 12}, v{s + 13}
    v_add_f32 v{vE + 1}, v{s + 14}, v{s + 15}
    v_max3_f32 v{vM}, v{vX}, v{vX + 1}, v{vX + 2}
    v_add_f32 v{vX + 4}, v{vE}, v{vE + 1}
    v_max3_f32 v{vM}, v{vM}, v{vX + 3}, v{vX + 4}""")


def poll_h(e, s, rep):
    for k in (1, 2, 3):
        e(f"buffer_load_dwordx2 {vr(s + 2 * (k - 1), 2)}, v{vLIN8}, {R(rWS)}, {sPX[k]} offen offset:{512 * rep} sc1")


def valid_h(e, s):
    e(f"v_max3_u32 v{vVAL}, v{s}, v{s + 2}, v{s + 4}\nv_cmp_eq_u32 vcc, -1, v{vVAL}")


def sum_h(e, s, left):
    for k in range(3):
        r = s + 2 * k
        if left is not None:
            e(f"s_waitcnt vmcnt({left + 2 - k})")
            if k == 2:
                valid_h(e, s)
        e(f"""v_lshlrev_b32 v{vE}, 16, v{r}
        v_and_b32 v{vE + 1}, 0xffff0000, v{r}
        v_lshlrev_b32 v{vE + 2}, 16, v{r + 1}
        v_and_b32 v{vE + 3}, 0xffff0000, v{r + 1}""")
        for i in (0, 2):
            e(f"v_pk_add_f32 {vr(vX + i, 2)}, {vr((vD2 if k == 0 else vX) + i, 2)}, {vr(vE + i, 2)}")
    cvt2(e, vE + 4, vX)


def step_pages(e):
    e(f"""s_lshl_b32 {sU0}, {sSTEP}, 18
    s_and_b32 {sU1}, {sSTEP}, 8
    s_lshl_b32 {sU1}, {sU1}, 10
    s_add_u32 {sPX[0]}, {sPXB}, {sU0}
    s_xor_b32 {sPX[0]}, {sPX[0]}, {sU1}
    s_add_u32 {sKMO}, {sKMB}, {sU0}
    s_xor_b32 {sKMO}, {sKMO}, {sU1}""")
    for k in (1, 2, 3):
        e(f"s_xor_b32 {sPX[k]}, {sPX[0]}, {k << 10}")


def filler(e, n):
    for _ in range(n):
        e(f"v_mov_b32 v{vT0}, v{vT0}")


def leader(e, opt):
    st = Stamps(e, opt.get("stamps"))
    cnt = (lambda i: e(f"s_add_u32 s{90 + i}, s{90 + i}, 1")) if opt.get("stamps") or opt.get("total") else (lambda i: None)
    vt = v_tiles()
    ror8 = "row_ror:8 row_mask:0xf"
    sv = lambda k: smf(e, vt[k][0], vA + 4 * vt[k][1], aV, vt[k][1], vt[k][2])

    def tail_a():
        fold_a(e)
        sv(0)
        for i in (0, 2):
            e(f"v_pk_mul_f32 {vr(vZ0 + i, 2)}, {vr(vZ0 + i, 2)}, {vr(vCV, 2)}")
        sv(1)

    def tail_f():
        cvt2(e, vP0, vW0)
        cvt2(e, vP0 + 2, vW1)

    e("Ll_step:\ns_barrier")
    ga = gaps_a(e)
    gl = [lambda: (ga[0](), read_kv(e, 0), read_kv(e, 1)), lambda: (ga[1](), read_kv(e, 2), read_kv(e, 3)), ga[2]]
    gather(e, opt, "LlA", sMEMR, True, work_a(e), tail_a, (vQ0, 16), 0, gl)
    st("A")
    sv(2)
    for i in (0, 2):
        e(f"v_pk_mul_f32 {vr(vZ1 + i, 2)}, {vr(vZ1 + i, 2)}, {vr(vCV, 2)}")
    sv(3)
    e(f"s_cmp_eq_u32 {sSTEP}, {NSEG - 1}")
    sv(4)
    e("s_cbranch_scc1 Ll_last")
    sv(5)

    def z_reads():
        e("s_barrier")
        for t in range(2):
            for w in range(3):
                e(f"ds_read_b128 {vr(vR + (t * 3 + w) * 4)}, v{vLIN} offset:{ZB + 4096 * t + 1024 * (w + 1)}")
    z_reads()
    z_reduce(e)
    mf(e, vS0, vKX0, vZF)
    mf(e, vS1, vKX1, vZF)
    mf(e, vSM, vZF, vZF)
    e(f"""s_mov_b64 exec, {sLO}
    buffer_store_dwordx4 {vr(vS0)}, v{vLIN}, {R(rWS)}, {sSC[0]} offen
    buffer_store_dwordx4 {vr(vS1)}, v{vLIN}, {R(rWS)}, {sSC[0]} offen offset:128
    buffer_store_dwordx4 {vr(vSM)}, v{vLIN}, {R(rWS)}, {sSC[0]} offen offset:1024
    s_mov_b64 exec, -1""")
    st("BC")
    tr(e, opt, 3)
    sv(6)
    sv(7)
    for i in range(4):
        e(f"v_mov_b32_dpp v{vS0 + i}, v{vS1 + i} {ror8} bank_mask:0xc")
    filler(e, opt.get("dD", 10))
    nD = opt.get("nD", 3)
    poll_d(e, vP[0])
    v_reduce_issue(e)
    poll_d(e, vP[1])
    v_reduce_finish(e, lambda: [poll_d(e, vP[i]) for i in range(2, nD)])
    sum_d(e, vP[0], 7 * (nD - 1))
    e("s_cbranch_vccnz Ll_redoD")
    e("Ll_okD:")
    st("D")
    tr(e, opt, 4)
    e(f"""v_max_f32_dpp v{vM}, v{vM}, v{vM} {ror8} bank_mask:0xf
    v_mov_b32 v{vE}, v{vM}
    v_permlane16_swap_b32 v{vM}, v{vE}
    v_max_f32 v{vM}, v{vM}, v{vE}
    v_mov_b32 v{vE}, v{vM}
    v_permlane32_swap_b32 v{vM}, v{vE}
    v_max_f32 v{vM}, v{vM}, v{vE}
    v_sub_f32 v{vX + 4}, v{vX + 4}, v{vM}
    v_pk_add_f32 {vr(vX, 2)}, {vr(vX, 2)}, {vr(vM, 2)} op_sel_hi:[1,0] neg_lo:[0,1] neg_hi:[0,1]
    v_exp_f32 v{vX + 4}, v{vX + 4}
    v_pk_add_f32 {vr(vX + 2, 2)}, {vr(vX + 2, 2)}, {vr(vM, 2)} op_sel_hi:[1,0] neg_lo:[0,1] neg_hi:[0,1]
    v_exp_f32 v{vX}, v{vX}
    v_mov_b32_dpp v{vE}, v{vX + 4} {ror8} bank_mask:0xf
    v_exp_f32 v{vX + 1}, v{vX + 1}
    v_cvt_pk_bf16_f32 v{vBM}, v{vX + 4}, v{vE}
    v_exp_f32 v{vX + 2}, v{vX + 2}
    v_exp_f32 v{vX + 3}, v{vX + 3}""")
    mf(e, vL, vONE, vBM)
    e(f"v_cvt_pk_bf16_f32 v{vBX}, v{vX}, v{vX + 1}\nv_cvt_pk_bf16_f32 v{vBX + 1}, v{vX + 2}, v{vX + 3}")
    mf(e, vO0, vVA0, vBM)
    e(f"""v_mov_b32_dpp v{vBX + 2}, v{vBX} {ror8} bank_mask:0xf
    v_mov_b32_dpp v{vBX + 3}, v{vBX + 1} {ror8} bank_mask:0xf""")
    mf(e, vO1, vVA1, vBM)
    mf(e, vL, vONE, vBX, vL)
    mf(e, vO0, vVX0, vBX, vO0)
    mf(e, vO1, vVX1, vBX, vO1)
    e(f"v_rcp_f32 v{vM}, v{vL}\ns_mov_b64 exec, {sLO}")
    for o, d in ((vO0, vE), (vO1, vE + 2)):
        for i in (0, 2):
            e(f"v_pk_mul_f32 {vr(o + i, 2)}, {vr(o + i, 2)}, {vr(vM, 2)} op_sel_hi:[1,0]")
        cvt2(e, d, o)
    e(f"""buffer_store_dwordx4 {vr(vE)}, v{vOST}, {R(rWS)}, {sOW} offen
    s_mov_b64 exec, -1""")
    st("E")
    tr(e, opt, 8)
    pack_kv(e)
    filler(e, opt.get("dF", 0))
    e("s_barrier")
    gather(e, opt, "LlF", sOR, False, work_f(e), tail_f, (vW0, 8), 1, gaps_f(e))
    st("F")
    mf(e, vD2, vP0, vSELT)
    e("s_barrier")
    for w in range(3):
        e(f"ds_read_b128 {vr(vR + 4 * w)}, v{vLIN} offset:{WB + 1024 * (w + 1)}")
    if opt.get("pub", 1):
        publish_kv(e)
    for w in range(3):
        e(f"s_waitcnt lgkmcnt({2 - w})")
        mf(e, vD2, vR + 4 * w, vSELT, vD2)
    cvt2(e, vE, vD2)
    for r in range(2):
        e(f"buffer_store_dwordx2 {vr(vE, 2)}, v{vLIN8}, {R(rWS)}, {sPX[0]} offen offset:{512 * r} sc1")
    st("G")
    tr(e, opt, 9)
    if opt.get("trace"):
        e("s_memrealtime s[30:31]")
    e(f"""s_xor_b32 {sOW}, {sOW}, 0x4000
    s_xor_b32 {sU0}, {sMEMW}, 0x4000
    buffer_store_dwordx2 {vr(vPOI, 2)}, v{vMST}, {R(rWS)}, {sOW} offen
    buffer_store_dwordx2 {vr(vPOI, 2)}, v{vMST}, {R(rWS)}, {sU0} offen
    buffer_store_dwordx4 {vr(vPOI)}, v{vLIN}, {R(rWS)}, {sSC[0]} offen
    buffer_store_dwordx4 {vr(vPOI)}, v{vLIN}, {R(rWS)}, {sSC[0]} offen offset:1024""")
    st.collect(7)
    tr_dump(e, opt)
    vH = [152, 158]
    filler(e, opt.get("dH", 55))
    poll_h(e, vH[0], 0)
    filler(e, opt.get("gH", 45))
    poll_h(e, vH[1], 1)
    sum_h(e, vH[0], 3)
    e("s_cbranch_vccnz Ll_redoH")
    e("Ll_okH:")
    e(f"buffer_store_dwordx2 {vr(vE + 4, 2)}, v{vMST}, {R(rWS)}, {sMEMW} offen")
    st("H")
    tr(e, opt, 10)
    e(f"""s_add_u32 {sSTEP}, {sSTEP}, 1
    s_xor_b32 {sMEMW}, {sMEMW}, 0x4000
    s_xor_b32 {sMEMR}, {sMEMR}, 0x4000
    s_xor_b32 {sOR}, {sOR}, 0x4000
""")
    step_pages(e)
    filler(e, opt.get("dA", 0))
    e("s_branch Ll_step")

    top = e.lab("top")
    e("Ll_redoD:")
    cnt(2)
    for i in range(1, nD):
        if i == nD - 1:
            poll_d(e, vP[0])
            sum_d(e, vP[i], 7)
        else:
            sum_d(e, vP[i], 7 * (nD - 1 - i))
        e("s_cbranch_vccz Ll_okD")
        cnt(3)
    e(f"{top}:")
    for i in range(2):
        poll_d(e, vP[1 - i])
        sum_d(e, vP[i], 7)
        e("s_cbranch_vccz Ll_okD")
        cnt(3)
    spin_fail(e, top, "Ll_okD")

    top = e.lab("top")
    e("Ll_redoH:")
    cnt(4)
    e(f"{top}:")
    for i in (1, 0):
        poll_h(e, vH[1 - i], 1 - i)
        e("s_waitcnt vmcnt(3)")
        valid_h(e, vH[i])
        e(f"s_cbranch_vccz Ll_sumH{i}")
        cnt(5)
    spin_fail(e, top, "Ll_okH")
    for i in range(2):
        e(f"Ll_sumH{i}:")
        sum_h(e, vH[i], None)
        e("s_branch Ll_okH")

    e("Ll_last:")
    for k in (5, 6, 7):
        sv(k)
    z_reads()
    z_reduce(e)
    store_flag(e, sSTEP)
    v_reduce_issue(e)
    v_reduce_finish(e)
    pack_kv(e)
    publish_kv(e)
    e("s_waitcnt vmcnt(0)")
    store_flag(e, NSEG)
    if opt.get("stamps") or opt.get("total"):
        e("s_memtime s[8:9]\ns_memrealtime s[98:99]\ns_waitcnt lgkmcnt(0)\ns_sub_u32 s8, s8, s96\nv_mov_b32 v247, s8")
        e(f"s_sub_u32 {sSEL}, s98, s100")
        e(f"""s_lshl_b32 {sU0}, {sA}, 5
        s_add_u32 {sU0}, {sU0}, {sJ}
        s_lshl_b32 {sU0}, {sU0}, 6
        s_add_u32 {sU0}, {sU0}, {DIAG}
        v_mov_b32 v{vT1}, 0""")
        for i in range(6):
            e(f"v_mov_b32 v{248 + i}, s{90 + i}")
        e(f"v_mov_b32 v254, {sTO}\nv_mov_b32 v255, {sSEL}\ns_mov_b64 exec, 1")
        for q in range(4):
            e(f"buffer_store_dwordx4 {vr(240 + 4 * q)}, v{vT1}, {R(rWS)}, {sU0} offen offset:{16 * q}")
    e("s_branch L_chain_done")
    opt["stamp_names"] = st.names


def chain(e, opt):
    e("L_chain:")
    if "C" in opt.get("skip", ""):
        e(f"s_cmp_eq_u32 {sWAVE}, 0\ns_cbranch_scc0 L_exit")
        signal_ready(e)
        e("s_endpgm")
        return
    e(f"v_lshlrev_b32 v{vLIN8}, 3, v0")
    lw = load_weights(e)
    e(f"""v_lshlrev_b32 v{vLIN}, 4, v0
    v_lshrrev_b32 v30, 4, v0
    v_and_b32 v31, 7, v0
    v_bfe_u32 v29, v0, 3, 1
    v_lshlrev_b32 v{vOST}, 4, v31
    v_lshl_add_u32 v{vOST}, v30, 10, v{vOST}
    v_lshl_add_u32 v{vMST}, v29, 3, v{vOST}
    s_lshl_b32 {sH}, {sA}, 5
    s_add_u32 {sH}, {sH}, {sJ}
    s_lshl_b32 {sU0}, {sH}, 11
    s_add_u32 {sSC[0]}, {sU0}, {SC}
    s_add_u32 {sKX}, {sU0}, {KX}
    s_lshr_b32 {sU0}, {sH}, 2
    s_lshl_b32 {sU0}, {sU0}, 7
    s_and_b32 {sU1}, {sH}, 3
    s_lshl_b32 {sU1}, {sU1}, 4
    s_add_u32 {sFLG}, {sU0}, {sU1}
    s_add_u32 {sFLG}, {sFLG}, {FLG}
    s_lshr_b32 {sU0}, {sJ}, 1
    s_lshl_b32 {sU0}, {sU0}, 14
    s_and_b32 {sU1}, {sJ}, 1
    s_lshl_b32 {sU1}, {sU1}, 12
    s_add_u32 {sPXB}, {sU0}, {sU1}
    s_lshl_b32 {sU0}, {sA}, 10
    s_add_u32 {sPXB}, {sPXB}, {sU0}
    s_lshl_b32 {sU0}, {sA}, 15
    s_lshr_b32 {sU1}, {sJ}, 3
    s_lshl_b32 {sU1}, {sU1}, 12
    s_add_u32 {sOW}, {sU0}, {sU1}
    s_and_b32 {sU1}, {sJ}, 7
    s_lshl_b32 {sU1}, {sU1}, 7
    s_add_u32 {sOW}, {sOW}, {sU1}""")
    for i in range(4):
        e(f"v_mov_b32 v{vPOI + i}, -1")
    e(f"""s_cmp_eq_u32 {sWAVE}, 0
    s_cbranch_scc0 Lc_noinit""")
    for base in (MEMB, MEMB + 0x4000, OB, OB + 0x4000):
        e(f"""s_add_u32 {sU0}, {sOW}, {base}
        buffer_store_dwordx2 {vr(vPOI, 2)}, v{vMST}, {R(rWS)}, {sU0} offen""")
    e(f"""buffer_store_dwordx4 {vr(vPOI)}, v{vLIN}, {R(rWS)}, {sSC[0]} offen
    buffer_store_dwordx4 {vr(vPOI)}, v{vLIN}, {R(rWS)}, {sSC[0]} offen offset:1024""")
    store_flag(e, 0)
    e("Lc_noinit:")
    next(lw)
    one, onehi = 0x3F80, 0x3F800000
    e(f"""v_and_b32 v28, 15, v0
    v_mov_b32 v{vIDX}, 0x4444
    v_mov_b32 v27, 0xeeee
    v_cmp_eq_u32 vcc, 1, v29
    v_cndmask_b32 v{vIDX}, v{vIDX}, v27, vcc
    v_mov_b32 v{vCV}, {hex(f2u(QSCALE))}
    v_cndmask_b32 v{vCV}, v{vCV}, 1.0, vcc
    v_mov_b32 v{vCV + 1}, v{vCV}
    v_lshlrev_b32 v27, 4, v29
    v_add_u32 v27, v27, v31
    v_lshlrev_b32 v{vKX}, 9, v30
    v_lshl_add_u32 v{vKX}, v27, 4, v{vKX}
    v_lshrrev_b32 v26, 1, v30
    v_and_b32 v25, 1, v30
    v_lshlrev_b32 v{vMM}, 8, v26
    v_lshl_add_u32 v{vMM}, v31, 4, v{vMM}
    v_lshl_add_u32 v{vMM}, v25, 3, v{vMM}
    v_lshl_add_u32 v{vMM}, v29, 2, v{vMM}
    v_add_u32 v{vMM}, {1024 + 512}, v{vMM}
    s_lshl_b32 {sU0}, {sWAVE}, 10
    v_add_u32 v{vLDSW}, {sU0}, v{vLIN}
    s_mov_b32 {sU0}, {one}
    s_mov_b32 {sU1}, {onehi}
    v_lshlrev_b32 v24, 2, v25""")
    for d in range(4):
        t, p = d >> 1, d & 1
        e(f"""v_add_u32 v23, {2 * p + 8 * t}, v24
        v_cmp_eq_u32 vcc, v23, v28
        v_mov_b32 v22, {sU0}
        v_cndmask_b32 v{vSELT + d}, 0, v22, vcc
        v_add_u32 v23, 1, v23
        v_cmp_eq_u32 vcc, v23, v28
        v_mov_b32 v22, {sU1}
        v_cndmask_b32 v{vSELT + d}, v{vSELT + d}, v22, vcc""")
        e(f"""v_lshlrev_b32 v23, 1, v24
        v_add_u32 v23, {4 * p + 2 * t}, v23
        v_cmp_eq_u32 vcc, v23, v28
        v_mov_b32 v22, {sU0}
        v_cndmask_b32 v{vSELV + d}, 0, v22, vcc
        v_add_u32 v23, 1, v23
        v_cmp_eq_u32 vcc, v23, v28
        v_mov_b32 v22, {sU1}
        v_cndmask_b32 v{vSELV + d}, v{vSELV + d}, v22, vcc
        v_mov_b32 v{vONE + d}, 0x3f803f80""")
    zero(e, vQ0, 32)
    zero(e, vVA0, 16)
    if opt.get("stamps") or opt.get("total"):
        zero(e, 240, 16)
        for i in range(88, 96):
            e(f"s_mov_b32 s{i}, 0")
    e(f"""s_mov_b32 s82, 0x00ff00ff
    s_mov_b32 s83, 0x00ff00ff
    s_mov_b32 s84, 0xff00ff00
    s_mov_b32 s85, 0xff00ff00
    s_lshr_b32 {sKMB}, {sH}, 3
    s_lshl_b32 {sKMB}, {sKMB}, 14
    s_and_b32 {sU0}, {sH}, 7
    s_lshl_b32 {sU0}, {sU0}, 10
    s_add_u32 {sKMB}, {sKMB}, {sU0}""")
    for k in (1, 2, 3):
        e(f"s_xor_b32 {sSC[k]}, {sSC[0]}, {k << 11}")
    next(lw)
    e(f"""s_lshl_b32 {sU0}, {sA}, 15
    s_lshl_b32 {sU1}, {sWAVE}, 12
    s_add_u32 {sU0}, {sU0}, {sU1}
    s_add_u32 {sMEMR}, {sU0}, {MEMB}
    s_add_u32 {sOR}, {sU0}, {OB}
    s_add_u32 {sMEMW}, {sOW}, {MEMB + 0x4000}
    s_add_u32 {sOW}, {sOW}, {OB}
    s_mov_b32 {sSTEP}, 0
    s_mov_b32 {sSEL}, 0
    s_mov_b32 {sPROG}, 0
    s_barrier""")
    wait_ready(e, vT0, vFL, sSEL)
    e(f"""s_and_b32 {sU0}, {sSEL}, 1
    s_lshl_b32 {sU0}, {sU0}, 13
    s_add_u32 {sPXB}, {sPXB}, {sU0}
    s_add_u32 {sPXB}, {sPXB}, {PXF}
    s_add_u32 {sKMB}, {sKMB}, {sU0}
    s_add_u32 {sKMB}, {sKMB}, {KM}""")
    step_pages(e)
    e(f"""s_cmp_eq_u32 {sWAVE}, 1
    s_cbranch_scc0 Lc_first
    s_mov_b32 {sU1}, 1""")
    wait_kv(e, sU1)
    load_kv(e)
    e("s_waitcnt vmcnt(0)\nLc_first:\ns_barrier")
    for i in range(4):
        read_kv(e, i)
    srd(e, rB1, pMEM0, 16384)
    e(f"""v_lshrrev_b32 v{vT0}, 3, v0
    v_and_b32 v{vT1}, 7, v0
    v_lshlrev_b32 v{vT1}, 11, v{vT1}
    v_lshl_add_u32 v{vT0}, v{vT0}, 6, v{vT1}
    s_lshl_b32 {sU0}, {sWAVE}, 9""")
    for c in range(4):
        e(f"buffer_load_dwordx4 {vr(vA + 4 * c)}, v{vT0}, {R(rB1)}, {sU0} offen offset:{16 * c}")
    if opt.get("stamps") or opt.get("total"):
        e("s_memtime s[96:97]\ns_memrealtime s[100:101]\ns_waitcnt lgkmcnt(0)\ns_mov_b32 s88, s96\ns_mov_b32 s20, s96")
    e(f"""s_cmp_eq_u32 {sWAVE}, 0
    s_cbranch_scc1 LlA_rot
    s_branch LhA_rot""")
    helper(e, opt)
    leader(e, opt)
    e("L_chain_done:")
    tr_out(e, opt)
    e("s_endpgm")
```

```python
import math
import os
import struct
from asmlib import Asm, vr, ar, sr

KNAME = "concat_heads__memory_aug_recurrent_mem_tr__ssm_conv_s4__prompt_kernel"
MB = 1 << 20
WS_BYTES = 256 * MB
LDS_BYTES = 163840

LOC = 2 * MB
MEMB = LOC
OB = LOC + 128 * 1024
SC = LOC + 256 * 1024
FLG = LOC + MB
FCO = 4096
FO = FLG + 8192
FP = FLG + 16384
DIAG = LOC + MB + 65536
KX = 16 * MB
VX = 32 * MB
OX = 64 * MB
OP = 96 * MB
PXF = 128 * MB
KM = 144 * MB
PROBE = 160 * MB

NSEG = 64
QSCALE = (128 ** -0.5) * math.log2(math.e)
SPIN_BUDGET = 400000


def f2u(x):
    return struct.unpack("<I", struct.pack("<f", x))[0]


sWAVE, sXCC, sRANK, sT = "s4", "s5", "s6", "s7"
pX, pMEM0, pWQ, pWK, pWV, pWO, pU = 8, 10, 12, 14, 16, 18, 22
pARE, pAIM, pBRE, pBIM, pCRE, pCIM, pLDT, pDSK = 24, 26, 28, 30, 32, 34, 36, 38
pOUT, pDBG, pWS = 40, 42, 44
rWS, rB1, rB2 = 48, 52, 56
sTO = "s46"
sA = "s47"


def srd(e, r, p, nbytes):
    e(f"""s_mov_b32 s{r}, s{p}
    s_and_b32 s{r + 1}, s{p + 1}, 0xffff
    s_mov_b32 s{r + 2}, {nbytes}
    s_mov_b32 s{r + 3}, 0x20000""")


def R(r):
    return f"s[{r}:{r + 3}]"


def spin_fail(e, again, giveup):
    e(f"""s_sub_u32 {sTO}, {sTO}, 1
    s_cbranch_scc0 {again}
    s_mov_b32 {sTO}, 0
    s_branch {giveup}""")


def entry(e, opt):
    e(f"""s_cmp_ge_u32 s2, 256
    s_cbranch_scc1 L_exit
    s_load_dwordx4 s[40:43], s[0:1], 128
    s_load_dwordx2 s[44:45], s[0:1], 144
    s_load_dwordx16 s[8:23], s[0:1], 0
    s_load_dwordx16 s[24:39], s[0:1], 64
    s_getreg_b32 {sXCC}, hwreg(HW_REG_XCC_ID, 0, 3)
    v_lshrrev_b32 v1, 6, v0
    v_readfirstlane_b32 {sWAVE}, v1
    v_and_b32 v0, 63, v0
    s_mov_b32 {sTO}, {SPIN_BUDGET}
    s_lshl_b32 {sT}, {sXCC}, 5
    v_mov_b32 v1, {sT}
    v_mov_b32 v2, 1
    v_mov_b32 v3, 0
    v_mov_b32 v4, 0
    s_waitcnt lgkmcnt(0)
    s_cmp_eq_u32 {sWAVE}, 0
    s_cbranch_scc0 L_no_ticket
    s_mov_b64 exec, 1
    global_atomic_add v3, v1, v2, {sr(pDBG)} sc0 sc1
    s_waitcnt vmcnt(0)
    ds_write_b32 v4, v3
    s_waitcnt lgkmcnt(0)
    s_mov_b64 exec, -1
    L_no_ticket:
    s_barrier
    ds_read_b32 v3, v4
    s_waitcnt lgkmcnt(0)
    v_readfirstlane_b32 {sRANK}, v3
    s_barrier""")
    srd(e, rWS, pWS, WS_BYTES)
    e(f"""s_cmp_ge_u32 {sRANK}, 32
    s_cbranch_scc1 L_exit
    s_and_b32 {sA}, {sXCC}, 3
    s_cmp_lt_u32 {sXCC}, 4
    s_cbranch_scc1 L_chain
    s_branch L_worker
    L_exit:
    s_endpgm""")


def signal_ready(e, v=(1, 2)):
    a, d = v
    e(f"""s_lshl_b32 {sT}, {sXCC}, 5
    v_mov_b32 v{a}, {sT}
    v_mov_b32 v{d}, 1
    s_mov_b64 exec, 1
    global_atomic_add v{a}, v{d}, {sr(pDBG)} offset:4 sc1
    s_mov_b64 exec, -1""")


def wait_ready(e, va, vd, sel=None):
    top, ok = e.lab("rdy"), e.lab("rdyok")
    e(f"""v_and_b32 v{va}, 7, v0
    v_lshlrev_b32 v{va}, 5, v{va}
    {top}:
    global_load_dwordx2 {vr(vd, 2)}, v{va}, {sr(pDBG)} offset:4 sc1
    s_waitcnt vmcnt(0)
    v_cmp_ne_u32 vcc, 32, v{vd}""")
    if sel:
        bad = e.lab("rdybad")
        e(f"""v_readfirstlane_b32 {sel}, v{vd + 1}
        s_cbranch_vccnz {bad}
        s_cmp_lg_u32 {sel}, 0
        s_cbranch_scc1 {ok}
        {bad}:""")
    else:
        e(f"s_cbranch_vccz {ok}")
    spin_fail(e, top, ok)
    e(f"{ok}:")


def wrap(lines):
    here = os.path.dirname(os.path.dirname(os.path.abspath(__file__)))
    hdr = open(here + "/concat_heads__memory_aug_recurrent_mem_tr__ssm_conv_s4__prompt.s.ref").read().split("\n")
    head = []
    for l in hdr:
        if l.startswith("; @launch"):
            break
        head.append(l)
    body = "\n".join(l if l.endswith(":") else "    " + l for l in lines)
    return "\n".join(head) + f"""
; @launch grid=(256,1,1) block=(256,1,1) lds={LDS_BYTES}
.amdgcn_target "amdgcn-amd-amdhsa--gfx950"
.text
.globl {KNAME}
.p2align 8
.type {KNAME},@function
{KNAME}:
{body}
.section .rodata,"a"
.p2align 6
.amdhsa_kernel {KNAME}
  .amdhsa_next_free_vgpr 512
  .amdhsa_next_free_sgpr 102
  .amdhsa_accum_offset 256
  .amdhsa_group_segment_fixed_size 0
  .amdhsa_kernarg_size 152
  .amdhsa_user_sgpr_count 2
  .amdhsa_user_sgpr_kernarg_segment_ptr 1
  .amdhsa_system_sgpr_workgroup_id_x 1
  .amdhsa_float_denorm_mode_32 3
.end_amdhsa_kernel
"""
```

```python
from gen_common import *

WREG = 40960
CS = 4160
KC, UT, KD = 0, 16640, 24320
TP = 272
TX, TY = 0, 21 * 272
KZERO = 672

sD, sU0, sU1, sIT = "s60", "s61", "s62", "s63"
sLD, sDS = 64, 66
sPU, sP2, sPI0, sPI1 = "s68", "s69", "s70", "s71"

vT0, vT1, vT2, vT3 = 2, 3, 4, 5
vTW, vTR, vKW, vCW, vAR, vBR, vUW = 6, 7, 8, 11, 12, 13, 14
vDT = 15
vPAR = 16
vGA = 40
vW = 76
vACC = [128, 144]
vFB, vFA = 160, 176
vU = 192


def cmul(e, d, z, w):
    e(f"""v_pk_mul_f32 {vr(d, 2)}, {vr(z, 2)}, {vr(w, 2)} op_sel_hi:[1,0]
    v_pk_fma_f32 {vr(d, 2)}, {vr(z, 2)}, {vr(w, 2)}, {vr(d, 2)} op_sel:[1,1,0] op_sel_hi:[0,1,1] neg_lo:[1,0,0]""")


def cexp(e, d, lam, t):
    e(f"""v_mul_f32 v{vT0}, {hex(f2u(float(t)))}, v{lam}
    v_mul_f32 v{vT1}, {hex(f2u(float(t)))}, v{lam + 1}
    v_exp_f32 v{vT0}, v{vT0}
    v_fract_f32 v{vT1}, v{vT1}
    v_cos_f32 v{d}, v{vT1}
    v_sin_f32 v{d + 1}, v{vT1}
    v_pk_mul_f32 {vr(d, 2)}, {vr(d, 2)}, {vr(vT0, 2)} op_sel_hi:[1,0]""")


def tables(e, half):
    lam, cb, e1, e8, e256, g = vW, vW + 2, vW + 4, vW + 6, vW + 8, vW + 10
    bb, cc = vW + 14, vW + 16
    xs = vW + 18
    z = [vW + 34, vW + 36]
    pk = [vW + 38, vW + 39, vW + 40, vW + 41]
    cnt = [0]

    def up(d, s):
        e(f"v_and_b32 v{d}, 0xffff0000, v{s}" if half else f"v_lshlrev_b32 v{d}, 16, v{s}")

    def put(base, row, r, neg):
        p = pk[cnt[0] % 4]
        cnt[0] += 1
        e(f"""v_cvt_pk_bf16_f32 v{p}, v{r}, {'-' if neg else ''}v{r + 1}
        ds_write_b32 v{vTW}, v{p} offset:{base + row * TP}""")

    for i, d in enumerate((lam, lam + 1, bb, bb + 1, cc, cc + 1)):
        up(d, vPAR + i)
    e(f"""v_mul_f32 v{lam}, v{vDT}, v{lam}
    v_mul_f32 v{lam + 1}, v{vDT}, v{lam + 1}
    v_mul_f32 v{bb}, v{vDT}, v{bb}
    v_mul_f32 v{bb + 1}, v{vDT}, v{bb + 1}
    v_mul_f32 v{lam}, {hex(f2u(math.log2(math.e)))}, v{lam}
    v_mul_f32 v{lam + 1}, 0.15915494, v{lam + 1}""")
    cmul(e, xs, cc, bb)
    cexp(e, e1, lam, 1)
    cexp(e, e8, lam, 8)
    cexp(e, e256, lam, 256)
    e(f"v_mov_b32 v{pk[3]}, 0x3f80\nds_write_b32 v{vTW}, v{pk[3]} offset:{TY}")
    put(TY, 1, e8, False)
    prev = e8
    for b in range(2, 32):
        cmul(e, z[b & 1], prev, e8)
        prev = z[b & 1]
        put(TY, b, prev, False)
    put(TX, 0, xs, True)
    for r in range(1, 8):
        cmul(e, xs + 2 * r, xs + 2 * r - 2, e1)
        put(TX, r, xs + 2 * r, True)
    for i in range(4):
        cmul(e, z[i & 1], xs + 4 * i, e256)
        put(TX, 8 + i, z[i & 1], True)
    prev = e256
    for m in range(2, 9):
        cur = g + 2 * (m & 1)
        cmul(e, cur, prev, e256)
        prev = cur
        rows = [(12 + 2 * (m - 2), 0), (13 + 2 * (m - 2), 4)] if m < 4 else [(12 + m, 0)]
        for k, (row, r) in enumerate(rows):
            cmul(e, z[k], xs + 2 * r, cur)
            put(TX, row, z[k], True)
    e("s_waitcnt lgkmcnt(0)")
    acc = vACC[0]
    for kk in range(8):
        a, b = vFA + 4 * (kk & 3), vFB + 4 * (kk & 3)
        if kk % 4 == 0:
            for j in range(4):
                e(f"""ds_read_b128 {vr(vFA + 4 * j)}, v{vTR} offset:{TX + (kk + j) * 32}
                ds_read_b128 {vr(vFB + 4 * j)}, v{vTR} offset:{TY + (kk + j) * 32}""")
        e(f"s_waitcnt lgkmcnt({6 - 2 * (kk & 3)})")
        first = half == 0 and kk == 0
        e(f"v_mfma_f32_32x32x16_bf16 {vr(acc, 16)}, {vr(a)}, {vr(b)}, {'0' if first else vr(acc, 16)}")


def expand(e):
    acc = vACC[0]
    g = vW
    for i in range(4):
        e(f"ds_write_b32 v{vKW}, v{acc + i} offset:{KD + 4 * i}")
    e("s_mov_b64 exec, 0xffffffff")
    for i in range(4):
        e(f"ds_write_b32 v{vKW + 1}, v{acc + 4 + i} offset:{KD + 4 * (256 + i)}")
        e(f"ds_write_b32 v{vKW + 2}, v{acc + 8 + i} offset:{KD + 4 * (512 + 32 * i)}")
    e("s_not_b64 exec, exec")
    for i in range(4):
        e(f"ds_write_b32 v{vKW + 1}, v{acc + 4 + i} offset:{KD + 4 * (384 + 64 * (i >> 1) + (i & 1))}")
    e(f"ds_write_b32 v{vKW + 2}, v{acc + 8} offset:{KD + 4 * 640}")
    e("s_mov_b64 exec, -1\ns_waitcnt lgkmcnt(0)")
    for t in range(35):
        e(f"ds_read_b32 v{g + t}, v{vGA + t}")
        if t % 12 == 11:
            e("s_waitcnt lgkmcnt(0)")
    e("s_waitcnt lgkmcnt(0)")
    for c in range(4):
        for q in range(4):
            d = vFB + 4 * ((c * 4 + q) % 8)
            for i in range(4):
                t = 3 - c + 2 * (4 * q + i)
                e(f"v_cvt_pk_bf16_f32 v{d + i}, v{g + t}, v{g + t + 1}")
            e(f"ds_write_b128 v{vCW}, {vr(d)} offset:{KC + c * CS + 16 * q}")
    e(f"""v_mov_b32 v{vT0}, 0
    v_lshrrev_b32 v{vT1}, 4, v0
    v_mul_u32_u24 v{vT1}, {CS - 64}, v{vT1}
    v_add_u32 v{vT1}, v{vT1}, v{vTW}
    ds_write_b32 v{vT1}, v{vT0} offset:{KC + 4096}""")


def stage_u(e):
    for ah in range(2):
        for q in range(4):
            k = ah * 16 + q * 4
            d = vFA + 2 * ((ah * 4 + q) % 8)
            for j in range(2):
                e(f"v_perm_b32 v{d + j}, v{vU + 2 * (k + 2 * j + 1)}, v{vU + 2 * (k + 2 * j)}, {sP2}")
            e(f"ds_write_b64 v{vUW}, {vr(d, 2)} offset:{UT + (32 + 32 * ah) * 80 + 16 * q}")


def conv(e):
    ops = []
    for sg in range(-32, 32):
        for hh in range(2):
            ops.append((sg, hh, 1, sg + 32))
            if sg >= 0:
                ops.append((sg, hh, 0, sg))
    pend, bslot = [], {}
    nb = [0]

    def fetch(n):
        sg, hh, ai, dl = ops[n]
        if (sg, hh) not in bslot:
            bslot[(sg, hh)] = vFB + 4 * (nb[0] % 4)
            nb[0] += 1
            e(f"ds_read_b128 {vr(bslot[(sg, hh)])}, v{vBR} offset:{UT + (31 - sg) * 80 + hh * 32}")
            pend.append(None)
        a = vFA + 4 * (n % 4)
        off = KC + 2 * (2016 - (32 * dl - 16 * hh))
        e(f"ds_read_b64 {vr(a, 2)}, v{vAR} offset:{off}\nds_read_b64 {vr(a + 2, 2)}, v{vAR} offset:{off + 8}")
        pend.extend([None, n])

    D = 3
    for n in range(D):
        fetch(n)
    for n, (sg, hh, ai, dl) in enumerate(ops):
        if n + D < len(ops):
            fetch(n + D)
        i = pend.index(n)
        e(f"s_waitcnt lgkmcnt({len(pend) - 1 - i})")
        del pend[:i + 1]
        acc = vACC[ai]
        e(f"v_mfma_f32_32x32x16_bf16 {vr(acc, 16)}, {vr(vFA + 4 * (n % 4))}, {vr(bslot[(sg, hh)])}, {vr(acc, 16)}")


def ssm(e, opt):
    e(f"""s_barrier
    s_lshl_b32 {sD}, {sA}, 4
    s_add_u32 {sD}, {sD}, {sRANK}
    s_lshl_b32 {sD}, {sD}, 2
    s_add_u32 {sD}, {sD}, {sWAVE}
    s_lshl_b32 {sU0}, {sD}, 3
    s_load_dwordx2 {sr(sLD)}, {sr(pLDT)}, {sU0}
    s_load_dwordx2 {sr(sDS)}, {sr(pDSK)}, {sU0}
    s_lshl_b32 {sU1}, {sD}, 10
    v_lshl_add_u32 v{vT0}, v0, 2, {sU1}""")
    for c in range(4):
        for i, p in enumerate((pARE, pAIM, pBRE, pBIM, pCRE, pCIM)):
            e(f"global_load_dword v{vPAR + 6 * c + i}, v{vT0}, {sr(p)} offset:{256 * c}")
    srd(e, rB1, pU, 4 * MB)
    srd(e, rB2, pOUT, 8 * MB)
    e(f"""v_and_b32 v{vT2}, 31, v0
    v_lshrrev_b32 v{vT3}, 5, v0
    v_lshlrev_b32 v{vT1}, 16, v{vT2}
    v_lshl_add_u32 v{vT1}, v{vT3}, 13, v{vT1}""")
    for k in range(32):
        ah, q, v = k >> 4, (k >> 2) & 3, k & 3
        if v % 2 == 0:
            e(f"s_add_u32 {sU1}, {sU0}, {(1024 * ah + 8 * q + v) * 2048}")
        e(f"buffer_load_dwordx2 {vr(vU + 2 * k, 2)}, v{vT1}, {R(rB1)}, {sU1} offen offset:{2048 * (v & 1)}")
    e(f"""s_mul_i32 {sU1}, {sWAVE}, {WREG}
    v_lshl_add_u32 v{vTW}, v0, 2, {sU1}
    v_mul_u32_u24 v{vTR}, {TP}, v{vT2}
    v_lshl_add_u32 v{vTR}, v{vT3}, 4, v{vTR}
    v_add_u32 v{vTR}, {sU1}, v{vTR}
    v_lshlrev_b32 v{vKW}, 5, v{vT2}
    v_lshl_add_u32 v{vKW}, v{vT3}, 4, v{vKW}
    v_add_u32 v{vKW}, {sU1}, v{vKW}
    v_sub_u32 v{vT0}, 4, v{vT3}
    v_lshlrev_b32 v{vKW + 1}, v{vT0}, v{vT2}
    v_add_u32 v{vKW + 1}, {sU1}, v{vKW + 1}
    v_lshl_add_u32 v{vKW + 2}, v{vT2}, 2, {sU1}
    v_lshl_add_u32 v{vCW}, v0, 6, {sU1}
    v_and_b32 v{vT0}, 3, v0
    v_mul_u32_u24 v{vAR}, {CS}, v{vT0}
    v_lshrrev_b32 v{vT0}, 2, v{vT2}
    v_sub_u32 v{vT0}, 7, v{vT0}
    v_lshl_add_u32 v{vAR}, v{vT0}, 3, v{vAR}
    v_lshl_add_u32 v{vAR}, v{vT3}, 4, v{vAR}
    v_add_u32 v{vAR}, {sU1}, v{vAR}
    v_mul_u32_u24 v{vUW}, 80, v{vT2}
    v_add_u32 v{vUW}, {sU1}, v{vUW}
    v_lshl_add_u32 v{vBR}, v{vT3}, 4, v{vUW}
    v_add_u32 v{vBR}, 80, v{vBR}
    v_lshl_add_u32 v{vUW}, v{vT3}, 3, v{vUW}
    s_add_u32 {sU1}, {sU1}, {KD}
    v_lshlrev_b32 v{vT0}, 5, v0""")
    for t in range(35):
        e(f"""v_sub_u32 v{vT1}, {2047 - t}, v{vT0}
        v_cvt_f32_i32 v{vW}, v{vT1}
        v_cvt_pk_bf16_f32 v{vW}, v{vW}, v{vW}
        v_and_b32 v{vW}, 0xffff, v{vW}
        v_subrev_u32 v{vW}, {0x4380 - 256}, v{vW}
        v_cmp_gt_i32 vcc, 0x100, v{vT1}
        v_cndmask_b32 v{vW}, v{vW}, v{vT1}, vcc""")
        if t > 31:
            e(f"""v_mov_b32 v{vW + 1}, {KZERO}
            v_cmp_gt_i32 vcc, 0, v{vT1}
            v_cndmask_b32 v{vW}, v{vW}, v{vW + 1}, vcc""")
        e(f"v_lshl_add_u32 v{vGA + t}, v{vW}, 2, {sU1}")
    e(f"v_mov_b32 v{vT0}, 0\nds_write_b32 v{vTW}, v{vT0} offset:{KD + 4 * KZERO}")
    for i in range(10):
        e(f"ds_write_b32 v{vTW}, v{vT0} offset:{UT + 256 * i}")
    e(f"s_mov_b32 {sIT}, 0\ns_waitcnt lgkmcnt(0) vmcnt(32)\nLs_chan:")
    e(f"""s_lshl_b32 {sU0}, s{sLD}, 16
    v_mov_b32 v{vDT}, {hex(f2u(math.log2(math.e)))}
    v_mul_f32 v{vDT}, {sU0}, v{vDT}
    v_exp_f32 v{vDT}, v{vDT}
    s_bitcmp1_b32 {sIT}, 0
    s_mov_b32 {sPU}, 0x01000c0c
    s_mov_b32 {sP2}, 0x05040100
    s_mov_b32 {sPI0}, 0x03020504
    s_mov_b32 {sPI1}, 0x03020706
    s_cmov_b32 {sPU}, 0x03020c0c
    s_cmov_b32 {sP2}, 0x07060302
    s_cmov_b32 {sPI0}, 0x05040100
    s_cmov_b32 {sPI1}, 0x07060100
    v_cvt_pk_bf16_f32 v{vDT}, v{vDT}, v{vDT}
    v_lshlrev_b32 v{vDT}, 16, v{vDT}""")
    tables(e, 0)
    tables(e, 1)
    e("s_waitcnt vmcnt(0)")
    stage_u(e)
    expand(e)
    e(f"s_lshl_b32 {sU0}, s{sDS}, 16")
    for k in range(32):
        a = vACC[k >> 4] + (k & 15)
        e(f"v_perm_b32 v{a}, v{vU + 2 * k}, v{vU + 2 * k}, {sPU}\nv_mul_f32 v{a}, {sU0}, v{a}")
    e("s_waitcnt lgkmcnt(0)")
    conv(e)
    for i in range(18):
        e(f"v_mov_b32 v{vPAR + i}, v{vPAR + 6 + i}")
    for k in range(0, 32, 2):
        a = vACC[k >> 4] + (k & 15)
        e(f"""v_cvt_pk_bf16_f32 v{vT0}, v{a}, v{a + 1}
        v_perm_b32 v{vU + 2 * k}, v{vT0}, v{vU + 2 * k}, {sPI0}
        v_perm_b32 v{vU + 2 * k + 2}, v{vT0}, v{vU + 2 * k + 2}, {sPI1}""")
    e(f"""s_lshr_b64 {sr(sLD)}, {sr(sLD)}, 16
    s_lshr_b64 {sr(sDS)}, {sr(sDS)}, 16
    s_bitcmp1_b32 {sIT}, 0
    s_cbranch_scc0 Ls_noswap""")
    for k in range(32):
        e(f"v_swap_b32 v{vU + 2 * k}, v{vU + 2 * k + 1}")
    e(f"""Ls_noswap:
    s_add_u32 {sIT}, {sIT}, 1
    s_cmp_lt_u32 {sIT}, 4
    s_cbranch_scc1 Ls_chan""")
    e(f"""s_barrier
    v_mul_u32_u24 v{vT0}, 1040, v{vT2}
    v_lshl_add_u32 v{vT0}, v{vT3}, 7, v{vT0}
    s_lshl_b32 {sU0}, {sWAVE}, 3
    v_add_u32 v{vT0}, {sU0}, v{vT0}""")
    for k in range(32):
        ah, q, v = k >> 4, (k >> 2) & 3, k & 3
        e(f"ds_write_b64 v{vT0}, {vr(vU + 2 * k, 2)} offset:{ah * 32 * 1040 + (8 * q + v) * 32}")
    e(f"""s_mul_i32 {sU0}, {sWAVE}, {16 * 1040}
    v_lshl_add_u32 v{vT1}, v0, 4, {sU0}
    v_lshrrev_b32 v{vT2}, 1, v0
    v_and_b32 v{vT3}, 1, v0
    v_lshlrev_b32 v{vT3}, 4, v{vT3}
    v_lshl_add_u32 v{vT2}, v{vT2}, 12, v{vT3}
    s_lshr_b32 {sU0}, {sD}, 2
    s_lshl_b32 {sU0}, {sU0}, 5
    s_lshl_b32 {sU1}, {sWAVE}, 21
    s_add_u32 {sU0}, {sU0}, {sU1}
    s_add_u32 {sU0}, {sU0}, 2048
    s_waitcnt lgkmcnt(0)
    s_barrier""")
    for h in range(2):
        for i in range(8):
            e(f"ds_read_b128 {vr(vW + 4 * i)}, v{vT1} offset:{(8 * h + i) * 1040}")
        for i in range(8):
            e(f"""s_waitcnt lgkmcnt({7 - i})
            s_add_u32 {sU1}, {sU0}, {(8 * h + i) << 17}
            buffer_store_dwordx4 {vr(vW + 4 * i)}, v{vT2}, {R(rB2)}, {sU1} offen""")
        if h == 0:
            e("s_waitcnt vmcnt(0)")
```

```python
from gen_common import *
import gen_ssm

sROLE, sHL, sH, sSEG, sSEL = "s60", "s61", "s62", "s63", "s64"
sXO, sM0, sOUT, sFL, sU0, sU1, sU2 = "s65", "s66", "s67", "s68", "s69", "s70", "s71"
sG, sPRE = "s72", "s73"
MASK0 = 8

vLIN, vDMA, vT0, vT1 = 1, 2, 3, 4
vRD = 8
vFR = 16
vACC = [48, 64]
vPK = 80
QBUF = 131072
NF, PF = 8, 4


def mf32(e, d, a, b, c):
    e(f"v_mfma_f32_32x32x16_bf16 {vr(d, 16)}, {a}, {b}, {'0' if c is None else vr(c, 16)}")


def probe(e):
    e(f"""v_mov_b32 v{vT0}, 0
    s_mov_b32 s74, -1
    s_mov_b32 s75, -1
    s_mov_b32 s76, 0
    s_mov_b64 exec, 1
    Lp_loop:""")
    for cand in range(2):
        e(f"""s_mov_b32 s77, {PROBE + cand * 8192}
        s_memtime s[78:79]
        s_waitcnt lgkmcnt(0)
        buffer_store_dword v{vT0}, v{vT0}, {R(rWS)}, s77 offen sc1
        s_waitcnt vmcnt(0)
        s_memtime s[80:81]
        s_waitcnt lgkmcnt(0)
        s_sub_u32 s80, s80, s78
        s_min_u32 s{74 + cand}, s{74 + cand}, s80""")
    e(f"""s_add_u32 s76, s76, 1
    s_cmp_lt_u32 s76, 4
    s_cbranch_scc1 Lp_loop
    s_cmp_gt_u32 s75, s74
    s_cselect_b32 s76, 3, 2
    v_mov_b32 v{vT1}, s76
    global_store_dword v{vT0}, v{vT1}, {sr(pDBG)} offset:8 sc1
    s_waitcnt vmcnt(0)
    s_mov_b64 exec, -1""")


def wait_sel(e):
    top, ok = e.lab("sel"), e.lab("selok")
    e(f"""v_mov_b32 v{vT0}, 0
    {top}:
    global_load_dword v{vT1}, v{vT0}, {sr(pDBG)} offset:8 sc1
    s_waitcnt vmcnt(0)
    v_readfirstlane_b32 {sSEL}, v{vT1}
    s_cmp_lg_u32 {sSEL}, 0
    s_cbranch_scc1 {ok}""")
    spin_fail(e, top, ok)
    e(f"{ok}:\ns_and_b32 {sSEL}, {sSEL}, 1")


def near_base(e, dst, base, seg):
    e(f"""s_lshr_b32 {sU0}, {seg}, 3
    s_xor_b32 {sU0}, {sU0}, {sSEL}
    s_and_b32 {sU0}, {sU0}, 1
    s_lshl_b32 {sU0}, {sU0}, 13
    s_lshl_b32 {dst}, {seg}, 18
    s_add_u32 {dst}, {dst}, {sU0}
    s_add_u32 {dst}, {dst}, {base}""")


def poison_slots(e):
    e(f"""s_lshl_b32 {sU1}, {sA}, 4
    s_add_u32 {sU1}, {sU1}, {sRANK}
    s_sub_u32 {sU1}, {sU1}, 16""")
    near_base(e, sU2, PXF, sU1)
    e(f"""s_lshl_b32 {sU0}, {sWAVE}, 16
    s_add_u32 {sU2}, {sU2}, {sU0}""")
    for i in range(4):
        e(f"v_mov_b32 v{vFR + i}, -1")
    for blk in range(4):
        for half in range(2):
            e(f"s_add_u32 {sU0}, {sU2}, {blk * 16384 + half * 4096}")
            for i in range(4):
                e(f"buffer_store_dwordx4 {vr(vFR)}, v{vLIN}, {R(rWS)}, {sU0} offen offset:{1024 * i} sc1")


def store_word(e, val, soff, flag):
    e(f"""v_mov_b32 v{vT0}, {val}
    v_mov_b32 v{vT1}, 0
    s_mov_b64 exec, 1
    buffer_store_dword v{vT0}, v{vT1}, {R(rWS)}, {soff} offen {flag}
    s_mov_b64 exec, -1""")


def wait_words(e, va, soff, lanes, need, vd=None):
    vd = vT1 if vd is None else vd
    top, ok = e.lab("w"), e.lab("wok")
    e(f"""s_mov_b64 exec, {(1 << lanes) - 1}
    {top}:
    buffer_load_dword v{vd}, v{va}, {R(rWS)}, {soff} offen sc1
    s_waitcnt vmcnt(0)
    v_cmp_gt_u32 vcc, {need}, v{vd}
    s_cbranch_vccz {ok}
    s_sleep 2""")
    spin_fail(e, top, ok)
    e(f"{ok}:\ns_mov_b64 exec, -1")


def load_weights(e, hook):
    NG = 6
    vG, vTR = vFR, vFR + 1
    sL, sST = sM0, sOUT
    e(f"""v_lshrrev_b32 v{vT0}, 2, v0
    v_lshlrev_b32 v{vT0}, {sU2}, v{vT0}
    v_and_b32 v{vT1}, 3, v0
    v_lshl_add_u32 v{vG}, v{vT1}, 4, v{vT0}
    v_lshrrev_b32 v{vT0}, 5, v0
    v_bfe_u32 v{vT1}, v0, 2, 2
    v_lshl_add_u32 v{vT0}, v{vT0}, 3, v{vT1}
    v_lshlrev_b32 v{vTR}, 6, v{vT0}
    v_bfe_u32 v{vT0}, v0, 4, 1
    v_lshl_add_u32 v{vTR}, v{vT0}, 5, v{vTR}
    v_and_b32 v{vT0}, 1, v0
    v_lshl_add_u32 v{vTR}, v{vT0}, 4, v{vTR}
    v_bfe_u32 v{vT0}, v0, 1, 1
    v_lshl_add_u32 v{vTR}, v{vT0}, 3, v{vTR}
    s_mul_i32 {sL}, {sWAVE}, {NG * 4096}
    s_add_u32 {sL}, {sL}, 65536
    v_add_u32 v{vTR}, {sL}, v{vTR}
    s_lshl_b32 {sST}, 16, {sU2}""")

    def issue(n):
        for i in range(4):
            e(f"""s_add_u32 m0, {sL}, {(n % NG) * 4096 + i * 1024}
            buffer_load_dwordx4 v{vG}, {R(rB1)}, {sU1} offen lds
            s_add_u32 {sU1}, {sU1}, {sST}""")

    for n in range(NG):
        issue(n)
    for n in range(16):
        e(f"s_waitcnt vmcnt({(min(16, n + NG) - n - 1) * 4})")
        if n == 0:
            hook()
        for i in range(4):
            for q in range(2):
                e(f"ds_read_b64_tr_b16 {ar((n * 4 + i) * 4 + 2 * q, 2)}, v{vTR} offset:{(n % NG) * 4096 + i * 1024 + q * 256}")
        if n + NG < 16:
            e("s_waitcnt lgkmcnt(0)")
            issue(n + NG)
    e("s_waitcnt lgkmcnt(0)")


def x_setup(e):
    srd(e, rB2, pX, 4 * MB)
    e(f"""v_lshrrev_b32 v{vT0}, 3, v0
    s_lshl_b32 {sU0}, {sWAVE}, 3
    v_add_u32 v{vT0}, {sU0}, v{vT0}
    v_bfe_u32 v{vT1}, v{vT0}, 1, 3
    v_and_b32 v{vDMA}, 7, v0
    v_xor_b32 v{vDMA}, v{vDMA}, v{vT1}
    v_lshlrev_b32 v{vDMA}, 4, v{vDMA}
    v_lshl_add_u32 v{vDMA}, v{vT0}, 11, v{vDMA}
    v_and_b32 v{vT0}, 31, v0
    v_lshlrev_b32 v5, 7, v{vT0}
    v_bfe_u32 v{vT1}, v{vT0}, 1, 3
    v_lshrrev_b32 v{vT0}, 5, v0""")
    for j in range(4):
        e(f"""v_add_u32 v6, {2 * j}, v{vT0}
        v_xor_b32 v6, v6, v{vT1}
        v_lshl_add_u32 v{vRD + j}, v6, 4, v5
        v_add_u32 v{vRD + 4 + j}, 0x10000, v{vRD + j}""")


def x_dma(e, b, ln):
    e(f"""s_add_u32 m0, {sM0}, {b * 65536 + ln * (4096 - 128)}
    buffer_load_dwordx4 v{vDMA}, {R(rB2)}, {sXO} offen offset:{ln * 128} lds""")


def rd(mode, b, kk):
    d = vr(vFR + 4 * (kk % NF))
    if mode == "O":
        return f"ds_read_b128 {d}, v{vRD + 4 * b} offset:{kk * 1024}"
    return f"ds_read_b128 {d}, v{vRD + 4 * b + (kk & 3)} offset:{(kk >> 2) * 4096}"


def epilogue_ops(mode, acc, qslot=None):
    ops = []
    for f in range(2):
        for i in range(4):
            s = acc + 8 * f + 2 * i
            g = []
            if mode == "Q":
                g.append(f"v_pk_mul_f32 {vr(s, 2)}, {vr(s, 2)}, {vr(6, 2)}")
            g.append(f"v_cvt_pk_bf16_f32 v{vPK + 4 * f + i}, v{s}, v{s + 1}")
            ops.append(("v", g))
        if mode == "Q":
            ops.append(("ds", [f"ds_write_b128 v5, {vr(vPK + 4 * f)} offset:{qslot * 8192 + f * 1024}"]))
        else:
            ops.append(("vm", [f"buffer_store_dwordx4 {vr(vPK + 4 * f)}, v{vLIN}, {R(rWS)}, {sOUT} offen offset:{f * 1024} sc1"]))
    return ops


def segment(e, mode, b, prev, primed=True, prime_next=True, dma=True, qslot=None):
    acc = vACC[b]
    pend = []

    def lds(txt, tag):
        e(txt)
        pend.append(tag)

    def need(tag):
        if tag in pend:
            i = pend.index(tag)
            e(f"s_waitcnt lgkmcnt({len(pend) - 1 - i})")
            del pend[:i + 1]

    if primed:
        pend += list(range(PF))
    else:
        for kk in range(PF):
            lds(rd(mode, b, kk), kk)
    extra = {}
    if prev:
        slot = 2
        for kind, g in epilogue_ops(mode, vACC[1 - b], qslot):
            extra.setdefault(slot if kind == "v" else slot - 1, []).append((kind, g))
            slot += kind == "v"
    nvm = 0
    for kk in range(64):
        if kk + PF < 64:
            lds(rd(mode, b, kk + PF), kk + PF)
        else:
            if kk + PF == 64:
                e(f"s_waitcnt vmcnt({nvm}) lgkmcnt(0)\ns_barrier")
                del pend[:]
            if prime_next:
                lds(rd(mode, 1 - b, kk + PF - 64), ("n", kk))
        need(kk)
        w, x = ar(4 * kk), vr(vFR + 4 * (kk % NF))
        if mode == "V":
            mf32(e, acc, x, w, acc if kk else None)
        else:
            mf32(e, acc, w, x, acc if kk else None)
        for kind, g in extra.get(kk, []):
            for t in g:
                lds(t, "w") if kind == "ds" else e(t)
        if dma and 12 <= kk < 44 and kk % 2 == 0:
            x_dma(e, 1 - b, (kk - 12) // 2)
        if prev and mode in "KV" and kk == 46:
            e(f"s_waitcnt vmcnt({16 if dma else 0})")
            store_word(e, sSEG, sFL, "sc1")
            e(f"s_add_u32 {sOUT}, {sOUT}, 0x40000")
            nvm = 1
    e(f"s_add_u32 {sSEG}, {sSEG}, 1\ns_add_u32 {sXO}, {sXO}, 0x10000")


def flush(e, mode, acc, qslot=None):
    for kind, g in epilogue_ops(mode, acc, qslot):
        for t in g:
            e(t)


def role_kv(e, mode, opt):
    e(f"""Lw_{mode}:
    s_lshl_b32 {sOUT}, {sH}, 2
    s_add_u32 {sOUT}, {sOUT}, {sWAVE}
    s_lshl_b32 {sOUT}, {sOUT}, 11
    s_add_u32 {sOUT}, {sOUT}, {KX if mode == 'K' else VX}""")
    segment(e, mode, 0, False, primed=False)
    e(f"Lw_{mode}loop:")
    segment(e, mode, 1, True)
    e(f"s_cmp_eq_u32 {sSEG}, {NSEG}\ns_cbranch_scc1 Lw_{mode}end")
    segment(e, mode, 0, True)
    e(f"s_branch Lw_{mode}loop\nLw_{mode}end:")
    flush(e, mode, vACC[1])
    e("s_waitcnt vmcnt(0)")
    store_word(e, NSEG, sFL, "sc1")
    e("s_waitcnt vmcnt(0) lgkmcnt(0)\ns_branch L_ssm")


def attention(e, opt):
    vQ, vK, vKM, vV, vVM = 96, 128, 160, 192, 224
    vS, vSM, vP, vPM = 48, 64, 80, 88
    vO = [128, 144, 160, 176]
    vKA, vVA, vFA, vMX, vSUM = 240, 241, 242, 244, 246
    neg = f2u(-999292928.0 * math.log2(math.e))
    e(f"""s_lshl_b32 {sU1}, {sG}, 2
    s_add_u32 {sU1}, {sU1}, {sWAVE}
    s_add_u32 {sPRE}, {sU1}, 1
    s_lshl_b32 {sU2}, {sH}, 7
    s_add_u32 {sU2}, {sU2}, {FLG}""")
    wait_words(e, vFA, sU2, 8, sPRE)
    e(f"""s_lshl_b32 {sOUT}, {sU1}, 18
    s_lshl_b32 {sU0}, {sH}, 13
    s_add_u32 {sOUT}, {sOUT}, {sU0}""")
    for base, dst in ((KX, vK), (VX, vV)):
        for half in range(2):
            e(f"s_add_u32 {sU0}, {sOUT}, {base + half * 4096}")
            for i in range(4):
                e(f"buffer_load_dwordx4 {vr(dst + 4 * (half * 4 + i))}, v{vLIN}, {R(rWS)}, {sU0} offen offset:{1024 * i} sc1")
    for i in range(8):
        e(f"s_waitcnt vmcnt({15 - i})")
        mf32(e, vS, vr(vK + 4 * i), vr(vQ + 4 * i), vS if i else None)
    e(f"s_add_u32 {sU2}, {sU2}, {FCO}")
    wait_words(e, vLIN, sU2, 4, sPRE)
    near_base(e, sU2, KM, sU1)
    e(f"""s_lshr_b32 {sU0}, {sH}, 1
    s_lshl_b32 {sU0}, {sU0}, 14
    s_add_u32 {sU2}, {sU2}, {sU0}
    s_and_b32 {sU0}, {sH}, 1
    s_lshl_b32 {sU0}, {sU0}, 12
    s_add_u32 {sU2}, {sU2}, {sU0}""")
    for i in range(8):
        e(f"buffer_load_dwordx4 {vr(vKM + 4 * i)}, v{vKA}, {R(rWS)}, {sU2} offen offset:{512 * i} sc1")
    for g in range(4):
        for j in range(2):
            e(f"buffer_load_dword v{vVM + 4 * g + j}, v{vVA}, {R(rWS)}, {sU2} offen offset:{1024 * g + 256 * j} sc1")
    e(f"v_mov_b32 v{vMX}, {hex(neg)}")
    for i in range(16):
        e(f"v_cndmask_b32 v{vS + i}, v{vMX}, v{vS + i}, {sr(MASK0 + 2 * i)}")
    e(f"v_max3_f32 v{vMX}, v{vS}, v{vS + 1}, v{vS + 2}")
    for i in range(3, 15, 2):
        e(f"v_max3_f32 v{vMX}, v{vMX}, v{vS + i}, v{vS + i + 1}")
    e(f"v_max_f32 v{vMX}, v{vMX}, v{vS + 15}")
    for i in range(8):
        e(f"s_waitcnt vmcnt({15 - i})")
        mf32(e, vSM, vr(vKM + 4 * i), vr(vQ + 4 * i), vSM if i else None)
    e(f"""v_max3_f32 v{vMX}, v{vMX}, v{vSM}, v{vSM + 1}
    v_max3_f32 v{vMX}, v{vMX}, v{vSM + 2}, v{vSM + 3}
    v_mov_b32 v{vSUM}, v{vMX}
    v_permlane32_swap_b32 v{vMX}, v{vSUM}
    v_max_f32 v{vMX}, v{vMX}, v{vSUM}""")
    vals = [vS + i for i in range(0, 16, 2)] + [vSM, vSM + 2]
    for r in vals:
        e(f"v_pk_add_f32 {vr(r, 2)}, {vr(r, 2)}, {vr(vMX, 2)} op_sel_hi:[1,0] neg_lo:[0,1] neg_hi:[0,1]")
    for r in vals:
        e(f"v_exp_f32 v{r}, v{r}\nv_exp_f32 v{r + 1}, v{r + 1}")
    for k, r in enumerate(vals):
        e(f"v_cvt_pk_bf16_f32 v{vP + k}, v{r}, v{r + 1}")
    e(f"v_mov_b64 {vr(vPM + 2, 2)}, 0\ns_waitcnt vmcnt(0)")
    sums = [f"v_pk_add_f32 {vr(vSUM, 2)}, {vr(vals[0], 2)}, {vr(vals[1], 2)}"]
    sums += [f"v_pk_add_f32 {vr(vSUM, 2)}, {vr(vSUM, 2)}, {vr(r, 2)}" for r in vals[2:]]
    sums += [f"v_add_f32 v{vSUM}, v{vSUM}, v{vSUM + 1}", f"v_mov_b32 v{vSUM + 1}, v{vSUM}",
             f"v_permlane32_swap_b32 v{vSUM}, v{vSUM + 1}", f"v_add_f32 v{vSUM}, v{vSUM}, v{vSUM + 1}",
             f"v_rcp_f32 v{vSUM}, v{vSUM}"]
    for g in range(4):
        for k, (a, p) in enumerate(((vV + 8 * g, vP), (vV + 8 * g + 4, vP + 4), (vVM + 4 * g, vPM))):
            mf32(e, vO[g], vr(a), vr(p), vO[g] if k else None)
            for t in sums[:3]:
                e(t)
            del sums[:3]
    for g in range(4):
        if g % 2 == 0:
            e(f"s_add_u32 {sU0}, {sOUT}, {OX + g * 2048}")
        for f in range(2):
            d = vS + 8 * (g & 1) + 4 * f
            for i in range(4):
                s = vO[g] + 8 * f + 2 * i
                e(f"""v_pk_mul_f32 {vr(s, 2)}, {vr(s, 2)}, {vr(vSUM, 2)} op_sel_hi:[1,0]
                v_cvt_pk_bf16_f32 v{d + i}, v{s}, v{s + 1}""")
            e(f"buffer_store_dwordx4 {vr(d)}, v{vLIN}, {R(rWS)}, {sU0} offen offset:{(g & 1) * 2048 + f * 1024}")
    e(f"s_add_u32 {sU1}, {sG}, 1\ns_waitcnt vmcnt(0)")
    store_word(e, sU1, sFL, "")


def role_q(e, opt):
    vQ, vVM, vKA, vVA, vFA = 96, 224, 240, 241, 242
    e(f"""Lw_Q:
    s_lshl_b32 {sU0}, {sWAVE}, 11
    s_add_u32 {sU0}, {sU0}, {QBUF}
    v_add_u32 v5, {sU0}, v{vLIN}
    s_lshl_b32 {sU0}, {sWAVE}, 13
    s_add_u32 {sU0}, {sU0}, {QBUF}
    v_add_u32 v243, {sU0}, v{vLIN}
    v_mov_b32 v6, {hex(f2u(QSCALE))}
    v_mov_b32 v7, v6
    v_lshrrev_b32 v{vT0}, 5, v0
    v_and_b32 v{vT1}, 7, v0
    v_lshlrev_b32 v{vT1}, 4, v{vT1}
    v_lshl_add_u32 v{vKA}, v{vT0}, 8, v{vT1}
    v_add_u32 v{vKA}, 128, v{vKA}
    v_lshl_add_u32 v{vVA}, v{vT0}, 9, v{vT1}
    v_bfe_u32 v{vT1}, v0, 3, 2
    v_lshl_add_u32 v{vVA}, v{vT1}, 2, v{vVA}
    v_bfe_u32 v{vT1}, v0, 1, 2
    v_and_b32 v{vFA}, 1, v0
    v_lshlrev_b32 v{vFA}, 2, v{vFA}
    v_lshl_add_u32 v{vFA}, v{vT1}, 4, v{vFA}
    v_and_b32 v{vT1}, 31, v0
    v_lshlrev_b32 v{vT0}, 2, v{vT0}
    v_sub_u32 v{vT1}, v{vT1}, v{vT0}""")
    for i in range(16):
        e(f"v_cmp_le_i32 {sr(MASK0 + 2 * i)}, {8 * (i >> 2) + (i & 3)}, v{vT1}")
    for g in range(4):
        e(f"v_mov_b64 {vr(vVM + 4 * g + 2, 2)}, 0")
    e(f"s_mov_b32 {sG}, -1\nLw_Qloop:\ns_cmp_eq_u32 {sG}, 15\ns_cbranch_scc1 Lw_Qatt")
    for i in range(4):
        segment(e, "Q", i & 1, i > 0, primed=i > 0, prime_next=i < 3, qslot=i - 1)
    flush(e, "Q", vACC[1], 3)
    e(f"s_cmp_eq_u32 {sG}, -1\ns_cbranch_scc1 Lw_Qpick\nLw_Qatt:")
    attention(e, opt)
    e(f"""s_cmp_eq_u32 {sG}, 15
    s_cbranch_scc1 Lw_end
    Lw_Qpick:
    s_waitcnt lgkmcnt(0)
    s_barrier""")
    for i in range(8):
        e(f"ds_read_b128 {vr(vQ + 4 * i)}, v243 offset:{1024 * i}")
    e(f"""s_add_u32 {sG}, {sG}, 1
    s_waitcnt lgkmcnt(0)
    s_barrier
    s_branch Lw_Qloop""")


def role_o(e, opt):
    vSV, vPT, vFA, vOA = 96, 112, 5, 6
    sFO, sFP, sOP, sRD = "s74", "s75", "s76", "s77"
    srd(e, rB2, pOUT, 8 * MB)
    e(f"""v_mov_b32 v{vRD}, v{vLIN}
    v_add_u32 v{vRD + 4}, 0x10000, v{vLIN}
    v_lshlrev_b32 v{vFA}, 2, v0
    v_and_b32 v{vT0}, 31, v0
    v_lshrrev_b32 v{vT1}, 5, v0
    v_lshlrev_b32 v{vT1}, 4, v{vT1}
    v_lshl_add_u32 v{vOA}, v{vT0}, 12, v{vT1}
    s_lshl_b32 {sFO}, {sA}, 9
    s_add_u32 {sFO}, {sFO}, {FO}
    s_lshl_b32 {sU0}, {sHL}, 2
    s_add_u32 {sU0}, {sU0}, {sWAVE}
    s_lshl_b32 {sFP}, {sU0}, 7
    s_add_u32 {sFP}, {sFP}, {FP}
    s_lshl_b32 {sOP}, {sU0}, 14
    s_add_u32 {sOP}, {sOP}, {OP}
    s_lshl_b32 {sOUT}, {sU0}, 6
    s_lshl_b32 {sXO}, {sA}, 16
    s_lshl_b32 {sM0}, {sWAVE}, 14
    s_add_u32 {sXO}, {sXO}, {sM0}
    s_add_u32 {sXO}, {sXO}, {OX}""")

    def flag_addr(seg):
        e(f"""s_and_b32 {sU0}, {seg}, 3
        s_lshl_b32 {sU0}, {sU0}, 7
        s_add_u32 {sU2}, {sU0}, {sFO}
        s_lshr_b32 {sU1}, {seg}, 2
        s_add_u32 {sU1}, {sU1}, 1""")

    def fetch(b):
        for q in range(4):
            e(f"s_add_u32 m0, {sM0}, {b * 65536 + q * 4096}\ns_add_u32 {sU0}, {sXO}, {q * 4096}")
            for i in range(4):
                e(f"buffer_load_dwordx4 v{vLIN}, {R(rWS)}, {sU0} offen offset:{1024 * i} sc1 lds")
        e(f"s_add_u32 {sXO}, {sXO}, 0x40000")

    def finalize():
        e(f"s_add_u32 {sU1}, {sRD}, 1")
        wait_words(e, vFA, sFP, 4, sU1)
        e(f"s_lshl_b32 {sU2}, {sRD}, 19\ns_add_u32 {sU2}, {sU2}, {sOP}")
        for k in (1, 2, 3):
            e(f"s_xor_b32 {sU0}, {sA}, {k}\ns_lshl_b32 {sU0}, {sU0}, 12\ns_add_u32 {sU0}, {sU0}, {sU2}")
            for q in range(4):
                e(f"buffer_load_dwordx4 {vr(vPT + 16 * (k - 1) + 4 * q)}, v{vLIN}, {R(rWS)}, {sU0} offen offset:{1024 * q} sc1")
        for k in range(3):
            e(f"s_waitcnt vmcnt({8 - 4 * k})")
            for i in range(0, 16, 2):
                e(f"v_pk_add_f32 {vr(vSV + i, 2)}, {vr(vSV + i, 2)}, {vr(vPT + 16 * k + i, 2)}")
        e(f"s_lshl_b32 {sU0}, {sRD}, 17\ns_add_u32 {sU0}, {sU0}, {sOUT}")
        for f in range(2):
            for i in range(4):
                s = vSV + 8 * f + 2 * i
                e(f"v_cvt_pk_bf16_f32 v{vPK + 4 * f + i}, v{s}, v{s + 1}")
            e(f"buffer_store_dwordx4 {vr(vPK + 4 * f)}, v{vOA}, {R(rB2)}, {sU0} offen offset:{32 * f}")

    e(f"s_mov_b32 {sPRE}, 0")
    e("Lw_Oloop:")
    for b in range(2):
        have, nopre, own, nxt, nofin = (e.lab(x) for x in ("have", "nopre", "own", "nxt", "nofin"))
        acc = vACC[b]
        e(f"s_cmp_eq_u32 {sPRE}, 1\ns_cbranch_scc1 {have}")
        flag_addr(sSEG)
        wait_words(e, vFA, sU2, 8, sU1)
        fetch(b)
        e(f"{have}:\ns_waitcnt vmcnt(0)\ns_barrier")
        e(f"""s_mov_b32 {sPRE}, 0
        s_add_u32 {sRD}, {sSEG}, 1
        s_cmp_eq_u32 {sRD}, {NSEG}
        s_cbranch_scc1 {nopre}""")
        flag_addr(sRD)
        e(f"""s_mov_b64 exec, 0xff
        buffer_load_dword v{vT1}, v{vFA}, {R(rWS)}, {sU2} offen sc1
        s_waitcnt vmcnt(0)
        v_cmp_gt_u32 vcc, {sU1}, v{vT1}
        s_mov_b64 exec, -1
        s_cbranch_vccnz {nopre}
        s_mov_b32 {sPRE}, 1""")
        fetch(1 - b)
        e(f"{nopre}:")
        for kk in range(PF):
            e(rd("O", b, kk))
        for kk in range(64):
            if kk + PF < 64:
                e(rd("O", b, kk + PF))
            e(f"s_waitcnt lgkmcnt({min(PF, 63 - kk)})")
            mf32(e, acc, ar(4 * kk), vr(vFR + 4 * (kk % NF)), acc if kk else None)
        e(f"""s_cmp_eq_u32 {sWAVE}, {sA}
        s_cbranch_scc1 {own}
        s_lshl_b32 {sU2}, {sSEG}, 19
        s_add_u32 {sU2}, {sU2}, {sOP}
        s_lshl_b32 {sU0}, {sA}, 12
        s_add_u32 {sU2}, {sU2}, {sU0}""")
        for q in range(4):
            e(f"buffer_store_dwordx4 {vr(acc + 4 * q)}, v{vLIN}, {R(rWS)}, {sU2} offen offset:{1024 * q} sc1")
        e(f"s_add_u32 {sU1}, {sSEG}, 1\ns_waitcnt vmcnt(0)")
        store_word(e, sU1, sFL, "sc1")
        e(f"""s_branch {nxt}
        {own}:
        s_cmp_eq_u32 {sSEG}, 0
        s_cbranch_scc1 {nofin}
        s_sub_u32 {sRD}, {sSEG}, 1""")
        finalize()
        e(f"{nofin}:")
        for i in range(0, 16, 2):
            e(f"v_mov_b64 {vr(vSV + i, 2)}, {vr(acc + i, 2)}")
        e(f"{nxt}:\ns_add_u32 {sSEG}, {sSEG}, 1")
    e(f"""s_cmp_lt_u32 {sSEG}, {NSEG}
    s_cbranch_scc1 Lw_Oloop
    s_cmp_eq_u32 {sWAVE}, {sA}
    s_cbranch_scc0 Lw_end
    s_mov_b32 {sRD}, {NSEG - 1}""")
    finalize()
    e("s_branch Lw_end")


def worker(e, opt):
    skip = opt.get("skip", "")
    e(f"""L_worker:
    s_lshr_b32 {sROLE}, {sRANK}, 3
    s_and_b32 {sHL}, {sRANK}, 7
    s_lshl_b32 {sH}, {sA}, 3
    s_add_u32 {sH}, {sH}, {sHL}
    v_lshlrev_b32 v{vLIN}, 4, v0
    s_mov_b32 {sSEG}, 0
    s_mov_b32 {sSEL}, 0
    s_mov_b32 {sXO}, 0""")
    e(f"""s_lshl_b32 {sFL}, {sH}, 7
    s_lshl_b32 {sU0}, {sWAVE}, 4
    s_add_u32 {sFL}, {sFL}, {sU0}
    s_lshl_b32 {sU0}, {sROLE}, 2
    s_add_u32 {sFL}, {sFL}, {sU0}
    s_add_u32 {sFL}, {sFL}, {FLG}
    s_lshl_b32 {sU0}, {sA}, 2
    s_add_u32 {sU0}, {sU0}, {sWAVE}
    s_lshl_b32 {sU0}, {sU0}, 7
    s_lshl_b32 {sU1}, {sHL}, 2
    s_add_u32 {sU0}, {sU0}, {sU1}
    s_add_u32 {sU0}, {sU0}, {FO}
    s_cmp_eq_u32 {sROLE}, 2
    s_cselect_b32 {sFL}, {sU0}, {sFL}
    s_add_u32 {sU0}, {sU1}, {sWAVE}
    s_lshl_b32 {sU0}, {sU0}, 7
    s_lshl_b32 {sU1}, {sA}, 2
    s_add_u32 {sU0}, {sU0}, {sU1}
    s_add_u32 {sU0}, {sU0}, {FP}
    s_cmp_eq_u32 {sROLE}, 3
    s_cselect_b32 {sFL}, {sU0}, {sFL}
    s_cselect_b32 {sU1}, {sA}, -1
    s_cmp_eq_u32 {sU1}, {sWAVE}
    s_cselect_b32 {sU1}, -1, 0""")
    for r, ch in enumerate("KVQO"):
        if ch in skip:
            e(f"s_cmp_eq_u32 {sROLE}, {r}\ns_cbranch_scc1 Lw_noclr")
    store_word(e, sU1, sFL, "sc1")
    e(f"""Lw_noclr:
    s_cmp_lt_u32 {sROLE}, 2
    s_cbranch_scc1 Lw_nopoi
    s_lshl_b32 {sU0}, {sA}, 7
    s_lshl_b32 {sU1}, {sRANK}, 2
    s_add_u32 {sU0}, {sU0}, {sU1}
    s_add_u32 {sU0}, {sU0}, {sWAVE}
    s_cmp_eq_u32 {sU0}, {24 * 4}
    s_cbranch_scc0 Lw_noprobe""")
    probe(e)
    e("Lw_noprobe:\ns_barrier")
    wait_sel(e)
    poison_slots(e)
    e("Lw_nopoi:")
    x_setup(e)
    e(f"""s_lshl_b32 {sM0}, {sWAVE}, 10
    s_cmp_eq_u32 {sROLE}, 3
    s_cbranch_scc1 Lw_nox""")
    for ln in range(16):
        x_dma(e, 0, ln)
    e(f"""Lw_nox:
    s_mov_b32 {sXO}, 0x10000
    s_cmp_eq_u32 {sROLE}, 0
    s_cselect_b64 s[74:75], {sr(pWK)}, {sr(pWV)}
    s_cmp_eq_u32 {sROLE}, 2
    s_cselect_b64 s[74:75], {sr(pWQ)}, s[74:75]
    s_lshl_b32 {sU1}, {sH}, 8
    s_lshl_b32 {sU0}, {sA}, 21
    s_lshl_b32 {sU2}, {sHL}, 8
    s_add_u32 {sU0}, {sU0}, {sU2}
    s_cmp_eq_u32 {sROLE}, 3
    s_cselect_b64 s[74:75], {sr(pWO)}, s[74:75]
    s_cselect_b32 {sU1}, {sU0}, {sU1}
    s_cselect_b32 {sU2}, 11, 13
    s_lshl_b32 {sU0}, {sWAVE}, 6
    s_add_u32 {sU1}, {sU1}, {sU0}""")
    srd(e, rB1, 74, 8 * MB)

    def ready():
        e(f"s_barrier\ns_cmp_eq_u32 {sWAVE}, 0\ns_cbranch_scc0 Lw_nosig")
        signal_ready(e, (vT0, vT1))
        e("Lw_nosig:")

    load_weights(e, ready)
    e(f"""s_lshl_b32 {sM0}, {sWAVE}, 10
    s_cmp_lt_u32 {sROLE}, 2
    s_cbranch_scc1 Lw_go""")
    wait_ready(e, vT0, vFR)
    e("Lw_go:\ns_barrier")
    for r, ch in enumerate("KVQO"):
        if ch in skip:
            e(f"s_cmp_eq_u32 {sROLE}, {r}\ns_cbranch_scc1 {'L_ssm' if ch in 'KV' else 'Lw_end'}")
    e(f"""s_cmp_eq_u32 {sROLE}, 0
    s_cbranch_scc1 Lw_K
    s_cmp_eq_u32 {sROLE}, 1
    s_cbranch_scc1 Lw_V
    s_cmp_eq_u32 {sROLE}, 2
    s_cbranch_scc1 Lw_Q""")
    role_o(e, opt)
    role_q(e, opt)
    e("Lw_end:\ns_endpgm")
    role_kv(e, "K", opt)
    role_kv(e, "V", opt)
    e("L_ssm:")
    if "S" not in skip:
        gen_ssm.ssm(e, opt)
    e("s_endpgm")
```

```python
import sys
sys.path.insert(0, "tools")
sys.path.insert(0, "tools")
from gen_common import *
import gen_chain, gen_worker


def generate(opt=None, verbose=False):
    opt = opt if opt is not None else {}
    e = Asm()
    entry(e, opt)
    gen_chain.chain(e, opt)
    gen_worker.worker(e, opt)
    return wrap(e.lines(verbose=verbose))


if __name__ == "__main__":
    out = sys.argv[1]
    opt = {}
    for a in sys.argv[2:]:
        k, v = a.split("=")
        opt[k] = int(v) if v.lstrip("-").isdigit() else v
    open(out, "w").write(generate(opt, verbose=bool(opt.get("verbose"))))
```

```python
from gen_common import *

aQ, aK, aV, aO = 0, 64, 128, 192
wt = lambda bank, c, t: ar(bank + (c * 2 + t) * 8, 8)

vIDX, vLIN, vOST, vMST, vKX, vMM, vVM, vVAL = 1, 2, 3, 4, 5, 6, 7, 8
vLDSW, vT0, vT1 = 9, 10, 11
vLIN8 = 233
vCV = 12
vFL = 14
vA = 16
vQ0, vK0, vQ1, vK1 = 32, 36, 40, 44
vV0, vV1, vW0, vW1 = 48, 52, 56, 60
vP0, vP1 = 64, 68
vZ0, vZ1 = 72, 76
vSELT, vSELV, vONE, vPOI = 80, 84, 88, 92
vR = 96
vZF = 120
vKX0, vKX1, vVX0, vVX1 = 124, 128, 132, 136
vS0, vS1, vSM = 140, 144, 148
vP = [152, 168, 16, 96, 108]
vVA = 184
vVA0, vVA1 = 188, 192
vBX, vBM = 196, 200
vL, vO0, vO1 = 204, 208, 212
vE = 216
vD2 = 224
vX = 228
vM = 236

sJ = sRANK
sSTEP, sPROG, sSEL = "s60", "s61", "s62"
sMEMR, sMEMW, sOR, sOW = "s63", "s64", "s65", "s66"
sSC = [f"s{67 + k}" for k in range(4)]
sPXB = "s71"
sPX = [f"s{72 + k}" for k in range(4)]
sKX, sKMO, sFLG, sU0, sU1 = "s76", "s77", "s78", "s79", "s80"
sLO, sHI = "s[82:83]", "s[84:85]"
sH = "s81"
sKMB = "s87"
ZB, VB, WB, KVB = 0, 8192, 12288, 16384


def smf(e, acc, a, bank, c, t):
    e(f"v_smfmac_f32_16x16x64_bf16 {vr(acc)}, {vr(a)}, {wt(bank, c, t)}, v{vIDX}")


def mf(e, d, a, b, c=None):
    e(f"v_mfma_f32_16x16x32_bf16 {vr(d)}, {vr(a)}, {vr(b)}, {'0' if c is None else vr(c)}")


def cvt2(e, d, s):
    e(f"v_cvt_pk_bf16_f32 v{d}, v{s}, v{s + 1}\nv_cvt_pk_bf16_f32 v{d + 1}, v{s + 2}, v{s + 3}")


def zero(e, b, n):
    for i in range(0, n, 2):
        e(f"v_mov_b64 {vr(b + i, 2)}, 0")


def zero1(e, b, n):
    for i in range(n):
        e(f"v_mov_b32 v{b + i}, 0")


class Stamps:
    def __init__(self, e, on):
        self.e, self.on, self.names = e, on, []

    def __call__(self, name):
        if not self.on:
            return
        i = len(self.names)
        self.names.append(name)
        self.e(f"s_memtime s[{8 + 2 * i}:{9 + 2 * i}]")

    def collect(self, total):
        if not self.on:
            return
        e, n = self.e, len(self.names)
        e("s_waitcnt lgkmcnt(0)")
        order = list(range(n, total)) + list(range(n))
        for i in order:
            e(f"s_sub_u32 s89, s{8 + 2 * i}, s88\ns_mov_b32 s88, s{8 + 2 * i}\nv_add_u32 v{240 + i}, s89, v{240 + i}")


TRACE = DIAG + 65536


def tr(e, opt, i):
    if opt.get("trace"):
        e(f"s_memtime s[{8 + 2 * i}:{9 + 2 * i}]")


def tr_dump(e, opt):
    if not opt.get("trace"):
        return
    sk = e.lab("notr")
    e(f"""s_sub_u32 s89, {sSTEP}, 30
    s_cmp_lt_u32 s89, 8
    s_cbranch_scc0 {sk}
    s_waitcnt lgkmcnt(0)
    s_mov_b32 m0, s89""")
    for i in range(12):
        e(f"v_writelane_b32 v{240 + i}, s{8 + 2 * i}, m0")
    e(f"{sk}:")


def tr_out(e, opt):
    if not opt.get("trace"):
        return
    e(f"""s_lshl_b32 {sU0}, {sH}, 2
    s_add_u32 {sU0}, {sU0}, {sWAVE}
    s_lshl_b32 {sU0}, {sU0}, 9
    s_add_u32 {sU0}, {sU0}, {TRACE}
    s_memtime s[8:9]
    s_memrealtime s[10:11]
    s_waitcnt lgkmcnt(0)
    v_mov_b32 v252, s8
    v_mov_b32 v253, s10
    v_lshlrev_b32 v{vT1}, 6, v0
    s_mov_b64 exec, 0xff""")
    for q in range(4):
        e(f"buffer_store_dwordx4 {vr(240 + 4 * q)}, v{vT1}, {R(rWS)}, {sU0} offen offset:{16 * q}")


def load_weights(e):
    NS = 10
    mats = [(aK, pWK, 8192), (aQ, pWQ, 8192), (aV, pWV, 8192), (aO, pWO, 2048)]
    vG8, vG2, vTR = 16, 17, 18
    sB8, sB2, sL = "s63", "s64", "s65"
    e(f"""v_bfe_u32 v19, v0, 2, 3
    v_and_b32 v20, 32, v0
    v_add_u32 v19, v19, v20
    v_and_b32 v20, 3, v0
    v_lshlrev_b32 v20, 4, v20
    v_lshl_add_u32 v{vG8}, v19, 13, v20
    v_lshl_add_u32 v{vG2}, v19, 11, v20
    v_lshrrev_b32 v21, 5, v0
    v_lshlrev_b32 v21, 4, v21
    v_bfe_u32 v22, v0, 4, 1
    v_lshl_add_u32 v21, v22, 2, v21
    v_bfe_u32 v22, v0, 2, 1
    v_add_u32 v21, v21, v22
    v_bfe_u32 v22, v0, 3, 1
    v_lshl_add_u32 v21, v22, 3, v21
    v_lshl_add_u32 v{vTR}, v21, 6, v20
    s_mul_i32 {sL}, {sWAVE}, {NS * 4096}
    v_add_u32 v{vTR}, {sL}, v{vTR}
    s_lshl_b32 {sB8}, {sWAVE}, 21
    s_lshl_b32 {sT}, {sA}, 5
    s_add_u32 {sT}, {sT}, {sJ}
    s_lshl_b32 {sT}, {sT}, 6
    s_add_u32 {sB8}, {sB8}, {sT}
    s_lshl_b32 {sB2}, {sA}, 2
    s_add_u32 {sB2}, {sB2}, {sWAVE}
    s_lshl_b32 {sB2}, {sB2}, 19
    s_lshl_b32 {sT}, {sJ}, 6
    s_add_u32 {sB2}, {sB2}, {sT}""")
    state = {"srd": {}}

    def issue(n):
        m, c = divmod(n, 4)
        bank, p, pitch = mats[m]
        r = rB1 if m % 2 == 0 else rB2
        if state["srd"].get(r) != m:
            srd(e, r, p, 8 * MB)
            state["srd"][r] = m
        for i in range(4):
            row0 = i * 64 + c * 8
            e(f"""s_add_u32 m0, {sL}, {(n % NS) * 4096 + i * 1024}
            s_add_u32 {sT}, {sB8 if pitch == 8192 else sB2}, {row0 * pitch}
            buffer_load_dwordx4 v{vG8 if pitch == 8192 else vG2}, {R(r)}, {sT} offen nt lds""")

    for n in range(NS):
        issue(n)
    yield "issued"
    for n in range(16):
        m, c = divmod(n, 4)
        later = min(16, n + NS) - n - 1
        e(f"s_waitcnt vmcnt({later * 4})")
        for t in range(2):
            for H in range(2):
                for q in range(2):
                    d = mats[m][0] + (c * 2 + t) * 8 + 4 * H + 2 * q
                    off = (n % NS) * 4096 + (32 * H + 2 * q) * 64 + 8 * t
                    e(f"ds_read_b64_tr_b16 {ar(d, 2)}, v{vTR} offset:{off}")
        if n + NS < 16:
            e("s_waitcnt lgkmcnt(0)")
            issue(n + NS)
    e("s_waitcnt lgkmcnt(0)")
    yield "done"


def gather_load(e, soff, c):
    e(f"buffer_load_dwordx4 {vr(vA + 4 * c)}, v{vLIN}, {R(rWS)}, {soff} offen offset:{1024 * c} sc1")


def gather(e, opt, name, soff, halves, work, tail, accs, ci, gaps):
    diag = opt.get("stamps") or opt.get("total")
    tr(e, opt, 0 + 5 * ci)
    for c in range(4):
        gather_load(e, soff, c)
        if c < 3:
            gaps[c]()
            filler(e, opt.get("gap", 8))
    e(f"{name}_rot:")
    for c in range(4):
        a = vA + 4 * c
        e("s_waitcnt vmcnt(3)")
        if halves:
            e(f"v_max_u32 v{vVAL}, v{a}, v{a + 2}\nv_cmp_eq_u32 vcc, -1, v{vVAL}")
        else:
            e(f"v_cmp_eq_u32 vcc, -1, v{a}")
        e(f"s_cbranch_vccz {name}_got{c}")
        gather_load(e, soff, c)
        if diag:
            e(f"s_add_u32 s{90 + ci}, s{90 + ci}, 1")
    spin_fail(e, f"{name}_rot", f"{name}_late")
    e(f"{name}_redo:")
    for c in range(4):
        gather_load(e, soff, c)
    zero(e, *accs)
    e(f"s_branch {name}_rot\n{name}_late:\ns_waitcnt vmcnt(3)")
    for c0 in range(4):
        e(f"{name}_got{c0}:")
        tr(e, opt, 1 + 5 * ci)
        for k in range(4):
            c = (c0 + k) % 4
            a = vA + 4 * c
            if k:
                e(f"s_waitcnt vmcnt({3 - k})")

            def check(i, k=k, a=a):
                if k and i == 0:
                    if halves:
                        e(f"v_max3_u32 v{vVAL}, v{vVAL}, v{a}, v{a + 2}")
                    elif k == 1:
                        e(f"v_mov_b32 v{vVAL}, v{a}")
                    else:
                        e(f"v_max_u32 v{vVAL}, v{vVAL}, v{a}")
                    if k == 3:
                        e(f"v_cmp_eq_u32 vcc, -1, v{vVAL}")
                if k == 3 and i == 1:
                    e(f"s_cbranch_vccnz {name}_bad{c0}\n{name}_ok{c0}:")
            work(c, k == 3, check)
        tr(e, opt, 2 + 5 * ci)
        tail()
        e(f"s_branch {name}_join")
        e(f"{name}_bad{c0}:")
        if diag:
            e(f"s_add_u32 s{90 + ci}, s{90 + ci}, 0x10000")
        spin_fail(e, f"{name}_redo", f"{name}_ok{c0}")
    e(f"{name}_join:")


def work_a(e):
    def work(c, last, check):
        a = vA + 4 * c
        smf(e, vQ0, a, aQ, c, 0)
        check(0)
        smf(e, vK0, a, aK, c, 0)
        smf(e, vQ1, a, aQ, c, 1)
        if last:
            cvt2(e, vP0, vQ0)
        smf(e, vK1, a, aK, c, 1)
        if last:
            cvt2(e, vP0 + 2, vK0)
        check(1)
    return work


def fold_a(e):
    mf(e, vZ0, vP0, vSELT)
    cvt2(e, vP1, vQ1)
    cvt2(e, vP1 + 2, vK1)
    mf(e, vZ1, vP1, vSELT)


def work_f(e):
    def work(c, last, check):
        a = vA + 4 * c
        smf(e, vW0, a, aO, c, 0)
        check(0)
        smf(e, vW1, a, aO, c, 1)
        check(1)
    return work


def gaps_a(e):
    return [lambda: zero(e, vQ0, 8), lambda: zero(e, vQ1, 8), lambda: zero(e, vV0, 8)]


def gaps_f(e):
    return [lambda: zero1(e, vW0, 4), lambda: zero1(e, vW1, 4), lambda: zero1(e, vP1, 4)]


def v_tiles():
    return [(acc, c, t) for c in range(4) for acc, t in ((vV0, 0), (vV1, 1))]


def helper(e, opt):
    vt = v_tiles()
    sv = lambda k: smf(e, vt[k][0], vA + 4 * vt[k][1], aV, vt[k][1], vt[k][2])

    def tail_a():
        fold_a(e)
        e(f"ds_write_b128 v{vLDSW}, {vr(vZ0)} offset:{ZB}")
        sv(0)
        sv(1)
        e(f"ds_write_b128 v{vLDSW}, {vr(vZ1)} offset:{ZB + 4096}")
        sv(2)

    def tail_f():
        cvt2(e, vP0, vW0)
        cvt2(e, vP0 + 2, vW1)
        e(f"ds_write_b128 v{vLDSW}, {vr(vP0)} offset:{WB}")

    e("Lh_step:\ns_barrier")
    gather(e, opt, "LhA", sMEMR, True, work_a(e), tail_a, (vQ0, 16), 0, gaps_a(e))
    sv(3)
    e("s_waitcnt lgkmcnt(0)\ns_barrier")
    for k in range(4, 8):
        sv(k)
    cvt2(e, vP0, vV0)
    cvt2(e, vP0 + 2, vV1)
    e(f"ds_write_b128 v{vLDSW}, {vr(vP0)} offset:{VB}")
    e(f"""s_xor_b32 {sMEMR}, {sMEMR}, 0x4000
    s_waitcnt lgkmcnt(0)
    s_barrier
    s_cmp_eq_u32 {sSTEP}, {NSEG - 1}
    s_cbranch_scc1 L_chain_done
    s_add_u32 {sU1}, {sSTEP}, 2
    s_add_u32 {sKX}, {sKX}, 0x40000
    s_barrier""")
    gather(e, opt, "LhF", sOR, False, work_f(e), tail_f, (vW0, 8), 1, gaps_f(e))
    hd = opt.get("hd", "kw")
    done = "s_waitcnt lgkmcnt(0)\ns_barrier"
    e(f"""s_cmp_ge_u32 {sWAVE}, 2
    s_cbranch_scc1 Lh_w23
    s_cmp_ge_u32 {sPROG}, {sU1}
    s_cbranch_scc0 Lh_kvwait
    {done}
    Lh_kvok:""")
    if "k" in hd:
        load_kv(e)
    e(f"""s_add_u32 {sU1}, {sU1}, 2
    s_min_u32 {sU1}, {sU1}, {NSEG}
    s_cmp_ge_u32 {sPROG}, {sU1}
    s_cbranch_scc1 Lh_next
    s_mov_b32 {sU1}, 0""")
    wait_kv(e, sU1)
    e(f"s_branch Lh_next\nLh_kvwait:\n{done}")
    wait_kv(e, sU1)
    e(f"""s_branch Lh_kvok
    Lh_w23:
    s_cmp_eq_u32 {sWAVE}, 3
    {done}
    s_cbranch_scc1 Lh_next""")
    if "w" in hd:
        store_flag(e, sSTEP)
    e("Lh_next:")
    tr_dump(e, opt)
    e("s_waitcnt vmcnt(0)")
    e(f"""s_xor_b32 {sOR}, {sOR}, 0x4000
    s_add_u32 {sSTEP}, {sSTEP}, 1""")
    e("s_branch Lh_step")


def z_reduce(e):
    for t, z in ((0, vZ0), (1, vZ1)):
        for w in range(3):
            r = vR + (t * 3 + w) * 4
            n = t * 3 + w
            if n in (0, 1, 3):
                e(f"s_waitcnt lgkmcnt({ {0: 5, 1: 3, 3: 0}[n] })")
            for i in (0, 2):
                e(f"v_pk_fma_f32 {vr(z + i, 2)}, {vr(r + i, 2)}, {vr(vCV, 2)}, {vr(z + i, 2)}")
        cvt2(e, vZF + 2 * t, z)


def v_reduce_issue(e):
    cvt2(e, vP0, vV0)
    cvt2(e, vP0 + 2, vV1)
    e("s_barrier")
    for w in range(3):
        e(f"ds_read_b128 {vr(vR + 4 * w)}, v{vLIN} offset:{VB + 1024 * (w + 1)}")
    mf(e, vVA, vSELV, vP0)


def v_reduce_finish(e, between=None):
    for w in range(3):
        e(f"s_waitcnt lgkmcnt({2 - w})")
        mf(e, vVA, vSELV, vR + 4 * w, vVA)
    if between:
        between()
    e(f"v_cvt_pk_bf16_f32 v{vVA0}, v{vVA}, v{vVA + 1}\nv_cvt_pk_bf16_f32 v{vVA1}, v{vVA + 2}, v{vVA + 3}")


def pack_kv(e):
    e(f"""v_mov_b32_dpp v{vZF}, v{vVA0} quad_perm:[0,1,2,3] row_mask:0xf bank_mask:0x3
    v_mov_b32_dpp v{vZF + 1}, v{vVA1} quad_perm:[0,1,2,3] row_mask:0xf bank_mask:0x3
    v_mov_b32_dpp v{vZF + 2}, v{vVA0} row_ror:8 row_mask:0xf bank_mask:0x3
    v_mov_b32_dpp v{vZF + 3}, v{vVA1} row_ror:8 row_mask:0xf bank_mask:0x3""")


def publish_kv(e):
    e(f"buffer_store_dwordx4 {vr(vZF)}, v{vLIN}, {R(rWS)}, {sKMO} offen sc1")


def store_flag(e, val):
    e(f"""v_mov_b32 v{vT0}, {val}
    v_mov_b32 v{vT1}, {FCO}
    s_mov_b64 exec, 1
    buffer_store_dword v{vT0}, v{vT1}, {R(rWS)}, {sFLG} offen sc1
    s_mov_b64 exec, -1""")


def load_kv(e):
    e(f"""s_add_u32 {sU0}, {sKX}, {VX - KX}
    s_mov_b32 m0, {KVB}
    buffer_load_dwordx4 v{vKX}, {R(rWS)}, {sKX} offen sc1 lds
    s_mov_b32 m0, {KVB + 1024 - 128}
    buffer_load_dwordx4 v{vKX}, {R(rWS)}, {sKX} offen offset:128 sc1 lds
    s_mov_b32 m0, {KVB + 2048}
    buffer_load_dwordx4 v{vKX}, {R(rWS)}, {sU0} offen sc1 lds
    s_mov_b32 m0, {KVB + 3072 - 128}
    buffer_load_dwordx4 v{vKX}, {R(rWS)}, {sU0} offen offset:128 sc1 lds""")


def read_kv(e, i):
    e(f"ds_read_b128 {vr(vKX0 + 4 * i)}, v{vLIN} offset:{KVB + 1024 * i}")


def wait_kv(e, need):
    top, ok = e.lab("kv"), e.lab("kvok")
    e(f"""{top}:
    v_mov_b32 v{vT1}, 0
    buffer_load_dwordx2 {vr(vFL, 2)}, v{vT1}, {R(rWS)}, {sFLG} offen sc1
    s_waitcnt vmcnt(0)
    v_min_u32 v{vT0}, v{vFL}, v{vFL + 1}
    v_readfirstlane_b32 {sPROG}, v{vT0}
    s_cmp_ge_u32 {sPROG}, {need}
    s_cbranch_scc1 {ok}""")
    spin_fail(e, top, ok)
    e(f"{ok}:")


def poll_d(e, s):
    for k in (1, 2, 3):
        e(f"buffer_load_dwordx4 {vr(s + 4 * (k - 1))}, v{vLIN}, {R(rWS)}, {sSC[k]} offen sc1")
    for k in range(4):
        e(f"buffer_load_dword v{s + 12 + k}, v{vMM}, {R(rWS)}, {sSC[k]} offen sc1")


def sum_d(e, s, left):
    e(f"s_waitcnt vmcnt({left + 6})")
    for i in (0, 2):
        e(f"v_pk_add_f32 {vr(vX + i, 2)}, {vr(vS0 + i, 2)}, {vr(s + i, 2)}")
    e(f"s_waitcnt vmcnt({left + 4})")
    for i in (0, 2):
        e(f"v_pk_add_f32 {vr(vE + i, 2)}, {vr(s + 4 + i, 2)}, {vr(s + 8 + i, 2)}")
    e(f"v_max3_u32 v{vVAL}, v{s}, v{s + 4}, v{s + 8}")
    for i in (0, 2):
        e(f"v_pk_add_f32 {vr(vX + i, 2)}, {vr(vX + i, 2)}, {vr(vE + i, 2)}")
    e(f"""s_waitcnt vmcnt({left})
    v_max3_u32 v{vVAL}, v{vVAL}, v{s + 12}, v{s + 13}
    v_max3_u32 v{vVAL}, v{vVAL}, v{s + 14}, v{s + 15}
    v_cmp_eq_u32 vcc, -1, v{vVAL}
    v_add_f32 v{vE}, v{s + 12}, v{s + 13}
    v_add_f32 v{vE + 1}, v{s + 14}, v{s + 15}
    v_max3_f32 v{vM}, v{vX}, v{vX + 1}, v{vX + 2}
    v_add_f32 v{vX + 4}, v{vE}, v{vE + 1}
    v_max3_f32 v{vM}, v{vM}, v{vX + 3}, v{vX + 4}""")


def poll_h(e, s, rep):
    for k in (1, 2, 3):
        e(f"buffer_load_dwordx2 {vr(s + 2 * (k - 1), 2)}, v{vLIN8}, {R(rWS)}, {sPX[k]} offen offset:{512 * rep} sc1")


def valid_h(e, s):
    e(f"v_max3_u32 v{vVAL}, v{s}, v{s + 2}, v{s + 4}\nv_cmp_eq_u32 vcc, -1, v{vVAL}")


def sum_h(e, s, left):
    for k in range(3):
        r = s + 2 * k
        if left is not None:
            e(f"s_waitcnt vmcnt({left + 2 - k})")
            if k == 2:
                valid_h(e, s)
        e(f"""v_lshlrev_b32 v{vE}, 16, v{r}
        v_and_b32 v{vE + 1}, 0xffff0000, v{r}
        v_lshlrev_b32 v{vE + 2}, 16, v{r + 1}
        v_and_b32 v{vE + 3}, 0xffff0000, v{r + 1}""")
        for i in (0, 2):
            e(f"v_pk_add_f32 {vr(vX + i, 2)}, {vr((vD2 if k == 0 else vX) + i, 2)}, {vr(vE + i, 2)}")
    cvt2(e, vE + 4, vX)


def step_pages(e):
    e(f"""s_lshl_b32 {sU0}, {sSTEP}, 18
    s_and_b32 {sU1}, {sSTEP}, 8
    s_lshl_b32 {sU1}, {sU1}, 10
    s_add_u32 {sPX[0]}, {sPXB}, {sU0}
    s_xor_b32 {sPX[0]}, {sPX[0]}, {sU1}
    s_add_u32 {sKMO}, {sKMB}, {sU0}
    s_xor_b32 {sKMO}, {sKMO}, {sU1}""")
    for k in (1, 2, 3):
        e(f"s_xor_b32 {sPX[k]}, {sPX[0]}, {k << 10}")


def filler(e, n):
    for _ in range(n):
        e(f"v_mov_b32 v{vT0}, v{vT0}")


def leader(e, opt):
    st = Stamps(e, opt.get("stamps"))
    cnt = (lambda i: e(f"s_add_u32 s{90 + i}, s{90 + i}, 1")) if opt.get("stamps") or opt.get("total") else (lambda i: None)
    vt = v_tiles()
    ror8 = "row_ror:8 row_mask:0xf"
    sv = lambda k: smf(e, vt[k][0], vA + 4 * vt[k][1], aV, vt[k][1], vt[k][2])

    def tail_a():
        fold_a(e)
        sv(0)
        for i in (0, 2):
            e(f"v_pk_mul_f32 {vr(vZ0 + i, 2)}, {vr(vZ0 + i, 2)}, {vr(vCV, 2)}")
        sv(1)

    def tail_f():
        cvt2(e, vP0, vW0)
        cvt2(e, vP0 + 2, vW1)

    e("Ll_step:\ns_barrier")
    ga = gaps_a(e)
    gl = [lambda: (ga[0](), read_kv(e, 0), read_kv(e, 1)), lambda: (ga[1](), read_kv(e, 2), read_kv(e, 3)), ga[2]]
    gather(e, opt, "LlA", sMEMR, True, work_a(e), tail_a, (vQ0, 16), 0, gl)
    st("A")
    sv(2)
    for i in (0, 2):
        e(f"v_pk_mul_f32 {vr(vZ1 + i, 2)}, {vr(vZ1 + i, 2)}, {vr(vCV, 2)}")
    sv(3)
    e(f"s_cmp_eq_u32 {sSTEP}, {NSEG - 1}")
    sv(4)
    e("s_cbranch_scc1 Ll_last")
    sv(5)

    def z_reads():
        e("s_barrier")
        for t in range(2):
            for w in range(3):
                e(f"ds_read_b128 {vr(vR + (t * 3 + w) * 4)}, v{vLIN} offset:{ZB + 4096 * t + 1024 * (w + 1)}")
    z_reads()
    z_reduce(e)
    mf(e, vS0, vKX0, vZF)
    mf(e, vS1, vKX1, vZF)
    mf(e, vSM, vZF, vZF)
    e(f"""s_mov_b64 exec, {sLO}
    buffer_store_dwordx4 {vr(vS0)}, v{vLIN}, {R(rWS)}, {sSC[0]} offen
    buffer_store_dwordx4 {vr(vS1)}, v{vLIN}, {R(rWS)}, {sSC[0]} offen offset:128
    buffer_store_dwordx4 {vr(vSM)}, v{vLIN}, {R(rWS)}, {sSC[0]} offen offset:1024
    s_mov_b64 exec, -1""")
    st("BC")
    tr(e, opt, 3)
    sv(6)
    sv(7)
    for i in range(4):
        e(f"v_mov_b32_dpp v{vS0 + i}, v{vS1 + i} {ror8} bank_mask:0xc")
    filler(e, opt.get("dD", 10))
    nD = opt.get("nD", 3)
    poll_d(e, vP[0])
    v_reduce_issue(e)
    poll_d(e, vP[1])
    v_reduce_finish(e, lambda: [poll_d(e, vP[i]) for i in range(2, nD)])
    sum_d(e, vP[0], 7 * (nD - 1))
    e("s_cbranch_vccnz Ll_redoD")
    e("Ll_okD:")
    st("D")
    tr(e, opt, 4)
    e(f"""v_max_f32_dpp v{vM}, v{vM}, v{vM} {ror8} bank_mask:0xf
    v_mov_b32 v{vE}, v{vM}
    v_permlane16_swap_b32 v{vM}, v{vE}
    v_max_f32 v{vM}, v{vM}, v{vE}
    v_mov_b32 v{vE}, v{vM}
    v_permlane32_swap_b32 v{vM}, v{vE}
    v_max_f32 v{vM}, v{vM}, v{vE}
    v_sub_f32 v{vX + 4}, v{vX + 4}, v{vM}
    v_pk_add_f32 {vr(vX, 2)}, {vr(vX, 2)}, {vr(vM, 2)} op_sel_hi:[1,0] neg_lo:[0,1] neg_hi:[0,1]
    v_exp_f32 v{vX + 4}, v{vX + 4}
    v_pk_add_f32 {vr(vX + 2, 2)}, {vr(vX + 2, 2)}, {vr(vM, 2)} op_sel_hi:[1,0] neg_lo:[0,1] neg_hi:[0,1]
    v_exp_f32 v{vX}, v{vX}
    v_mov_b32_dpp v{vE}, v{vX + 4} {ror8} bank_mask:0xf
    v_exp_f32 v{vX + 1}, v{vX + 1}
    v_cvt_pk_bf16_f32 v{vBM}, v{vX + 4}, v{vE}
    v_exp_f32 v{vX + 2}, v{vX + 2}
    v_exp_f32 v{vX + 3}, v{vX + 3}""")
    mf(e, vL, vONE, vBM)
    e(f"v_cvt_pk_bf16_f32 v{vBX}, v{vX}, v{vX + 1}\nv_cvt_pk_bf16_f32 v{vBX + 1}, v{vX + 2}, v{vX + 3}")
    mf(e, vO0, vVA0, vBM)
    e(f"""v_mov_b32_dpp v{vBX + 2}, v{vBX} {ror8} bank_mask:0xf
    v_mov_b32_dpp v{vBX + 3}, v{vBX + 1} {ror8} bank_mask:0xf""")
    mf(e, vO1, vVA1, vBM)
    mf(e, vL, vONE, vBX, vL)
    mf(e, vO0, vVX0, vBX, vO0)
    mf(e, vO1, vVX1, vBX, vO1)
    e(f"v_rcp_f32 v{vM}, v{vL}\ns_mov_b64 exec, {sLO}")
    for o, d in ((vO0, vE), (vO1, vE + 2)):
        for i in (0, 2):
            e(f"v_pk_mul_f32 {vr(o + i, 2)}, {vr(o + i, 2)}, {vr(vM, 2)} op_sel_hi:[1,0]")
        cvt2(e, d, o)
    e(f"""buffer_store_dwordx4 {vr(vE)}, v{vOST}, {R(rWS)}, {sOW} offen
    s_mov_b64 exec, -1""")
    st("E")
    tr(e, opt, 8)
    pack_kv(e)
    filler(e, opt.get("dF", 0))
    e("s_barrier")
    gather(e, opt, "LlF", sOR, False, work_f(e), tail_f, (vW0, 8), 1, gaps_f(e))
    st("F")
    mf(e, vD2, vP0, vSELT)
    e("s_barrier")
    for w in range(3):
        e(f"ds_read_b128 {vr(vR + 4 * w)}, v{vLIN} offset:{WB + 1024 * (w + 1)}")
    if opt.get("pub", 1):
        publish_kv(e)
    for w in range(3):
        e(f"s_waitcnt lgkmcnt({2 - w})")
        mf(e, vD2, vR + 4 * w, vSELT, vD2)
    cvt2(e, vE, vD2)
    for r in range(2):
        e(f"buffer_store_dwordx2 {vr(vE, 2)}, v{vLIN8}, {R(rWS)}, {sPX[0]} offen offset:{512 * r} sc1")
    st("G")
    tr(e, opt, 9)
    if opt.get("trace"):
        e("s_memrealtime s[30:31]")
    e(f"""s_xor_b32 {sOW}, {sOW}, 0x4000
    s_xor_b32 {sU0}, {sMEMW}, 0x4000
    buffer_store_dwordx2 {vr(vPOI, 2)}, v{vMST}, {R(rWS)}, {sOW} offen
    buffer_store_dwordx2 {vr(vPOI, 2)}, v{vMST}, {R(rWS)}, {sU0} offen
    buffer_store_dwordx4 {vr(vPOI)}, v{vLIN}, {R(rWS)}, {sSC[0]} offen
    buffer_store_dwordx4 {vr(vPOI)}, v{vLIN}, {R(rWS)}, {sSC[0]} offen offset:1024""")
    st.collect(7)
    tr_dump(e, opt)
    vH = [152, 158]
    filler(e, opt.get("dH", 55))
    poll_h(e, vH[0], 0)
    filler(e, opt.get("gH", 45))
    poll_h(e, vH[1], 1)
    sum_h(e, vH[0], 3)
    e("s_cbranch_vccnz Ll_redoH")
    e("Ll_okH:")
    e(f"buffer_store_dwordx2 {vr(vE + 4, 2)}, v{vMST}, {R(rWS)}, {sMEMW} offen")
    st("H")
    tr(e, opt, 10)
    e(f"""s_add_u32 {sSTEP}, {sSTEP}, 1
    s_xor_b32 {sMEMW}, {sMEMW}, 0x4000
    s_xor_b32 {sMEMR}, {sMEMR}, 0x4000
    s_xor_b32 {sOR}, {sOR}, 0x4000
""")
    step_pages(e)
    filler(e, opt.get("dA", 0))
    e("s_branch Ll_step")

    top = e.lab("top")
    e("Ll_redoD:")
    cnt(2)
    for i in range(1, nD):
        if i == nD - 1:
            poll_d(e, vP[0])
            sum_d(e, vP[i], 7)
        else:
            sum_d(e, vP[i], 7 * (nD - 1 - i))
        e("s_cbranch_vccz Ll_okD")
        cnt(3)
    e(f"{top}:")
    for i in range(2):
        poll_d(e, vP[1 - i])
        sum_d(e, vP[i], 7)
        e("s_cbranch_vccz Ll_okD")
        cnt(3)
    spin_fail(e, top, "Ll_okD")

    top = e.lab("top")
    e("Ll_redoH:")
    cnt(4)
    e(f"{top}:")
    for i in (1, 0):
        poll_h(e, vH[1 - i], 1 - i)
        e("s_waitcnt vmcnt(3)")
        valid_h(e, vH[i])
        e(f"s_cbranch_vccz Ll_sumH{i}")
        cnt(5)
    spin_fail(e, top, "Ll_okH")
    for i in range(2):
        e(f"Ll_sumH{i}:")
        sum_h(e, vH[i], None)
        e("s_branch Ll_okH")

    e("Ll_last:")
    for k in (5, 6, 7):
        sv(k)
    z_reads()
    z_reduce(e)
    store_flag(e, sSTEP)
    v_reduce_issue(e)
    v_reduce_finish(e)
    pack_kv(e)
    publish_kv(e)
    e("s_waitcnt vmcnt(0)")
    store_flag(e, NSEG)
    if opt.get("stamps") or opt.get("total"):
        e("s_memtime s[8:9]\ns_memrealtime s[98:99]\ns_waitcnt lgkmcnt(0)\ns_sub_u32 s8, s8, s96\nv_mov_b32 v247, s8")
        e(f"s_sub_u32 {sSEL}, s98, s100")
        e(f"""s_lshl_b32 {sU0}, {sA}, 5
        s_add_u32 {sU0}, {sU0}, {sJ}
        s_lshl_b32 {sU0}, {sU0}, 6
        s_add_u32 {sU0}, {sU0}, {DIAG}
        v_mov_b32 v{vT1}, 0""")
        for i in range(6):
            e(f"v_mov_b32 v{248 + i}, s{90 + i}")
        e(f"v_mov_b32 v254, {sTO}\nv_mov_b32 v255, {sSEL}\ns_mov_b64 exec, 1")
        for q in range(4):
            e(f"buffer_store_dwordx4 {vr(240 + 4 * q)}, v{vT1}, {R(rWS)}, {sU0} offen offset:{16 * q}")
    span(e, opt, 0)
    span(e, opt, 2)
    e("s_branch L_chain_done")
    opt["stamp_names"] = st.names


def chain(e, opt):
    e("L_chain:")
    if "C" in opt.get("skip", ""):
        e(f"s_cmp_eq_u32 {sWAVE}, 0\ns_cbranch_scc0 L_exit")
        arrive(e, C_CHAIN, B_CHAIN, 1, 2)
        e("s_endpgm")
        return
    e(f"v_lshlrev_b32 v{vLIN8}, 3, v0")
    lw = load_weights(e)
    e(f"""v_lshlrev_b32 v{vLIN}, 4, v0
    v_lshrrev_b32 v30, 4, v0
    v_and_b32 v31, 7, v0
    v_bfe_u32 v29, v0, 3, 1
    v_lshlrev_b32 v{vOST}, 4, v31
    v_lshl_add_u32 v{vOST}, v30, 10, v{vOST}
    v_lshl_add_u32 v{vMST}, v29, 3, v{vOST}
    s_lshl_b32 {sH}, {sA}, 5
    s_add_u32 {sH}, {sH}, {sJ}
    s_lshl_b32 {sU0}, {sH}, 11
    s_add_u32 {sSC[0]}, {sU0}, {SC}
    s_add_u32 {sKX}, {sU0}, {KX}
    s_lshr_b32 {sU0}, {sH}, 2
    s_lshl_b32 {sU0}, {sU0}, 7
    s_and_b32 {sU1}, {sH}, 3
    s_lshl_b32 {sU1}, {sU1}, 4
    s_add_u32 {sFLG}, {sU0}, {sU1}
    s_add_u32 {sFLG}, {sFLG}, {FLG}
    s_lshr_b32 {sU0}, {sJ}, 1
    s_lshl_b32 {sU0}, {sU0}, 14
    s_and_b32 {sU1}, {sJ}, 1
    s_lshl_b32 {sU1}, {sU1}, 12
    s_add_u32 {sPXB}, {sU0}, {sU1}
    s_lshl_b32 {sU0}, {sA}, 10
    s_add_u32 {sPXB}, {sPXB}, {sU0}
    s_lshl_b32 {sU0}, {sA}, 15
    s_lshr_b32 {sU1}, {sJ}, 3
    s_lshl_b32 {sU1}, {sU1}, 12
    s_add_u32 {sOW}, {sU0}, {sU1}
    s_and_b32 {sU1}, {sJ}, 7
    s_lshl_b32 {sU1}, {sU1}, 7
    s_add_u32 {sOW}, {sOW}, {sU1}""")
    for i in range(4):
        e(f"v_mov_b32 v{vPOI + i}, -1")
    e(f"""s_cmp_eq_u32 {sWAVE}, 0
    s_cbranch_scc0 Lc_noinit""")
    for base in (MEMB, MEMB + 0x4000, OB, OB + 0x4000):
        e(f"""s_add_u32 {sU0}, {sOW}, {base}
        buffer_store_dwordx2 {vr(vPOI, 2)}, v{vMST}, {R(rWS)}, {sU0} offen""")
    e(f"""buffer_store_dwordx4 {vr(vPOI)}, v{vLIN}, {R(rWS)}, {sSC[0]} offen
    buffer_store_dwordx4 {vr(vPOI)}, v{vLIN}, {R(rWS)}, {sSC[0]} offen offset:1024""")
    for sel in range(2):
        e(f"""s_add_u32 {sU0}, {sPXB}, {PXF + (sel << 13)}
        buffer_store_dwordx4 {vr(vPOI)}, v{vLIN}, {R(rWS)}, {sU0} offen sc1""")
    store_flag(e, 0)
    e("s_waitcnt vmcnt(0)")
    arrive(e, C_CHAIN, B_CHAIN, vT0, vT1)
    e("Lc_noinit:")
    next(lw)
    one, onehi = 0x3F80, 0x3F800000
    e(f"""v_and_b32 v28, 15, v0
    v_mov_b32 v{vIDX}, 0x4444
    v_mov_b32 v27, 0xeeee
    v_cmp_eq_u32 vcc, 1, v29
    v_cndmask_b32 v{vIDX}, v{vIDX}, v27, vcc
    v_mov_b32 v{vCV}, {hex(f2u(QSCALE))}
    v_cndmask_b32 v{vCV}, v{vCV}, 1.0, vcc
    v_mov_b32 v{vCV + 1}, v{vCV}
    v_lshlrev_b32 v27, 4, v29
    v_add_u32 v27, v27, v31
    v_lshlrev_b32 v{vKX}, 9, v30
    v_lshl_add_u32 v{vKX}, v27, 4, v{vKX}
    v_lshrrev_b32 v26, 1, v30
    v_and_b32 v25, 1, v30
    v_lshlrev_b32 v{vMM}, 8, v26
    v_lshl_add_u32 v{vMM}, v31, 4, v{vMM}
    v_lshl_add_u32 v{vMM}, v25, 3, v{vMM}
    v_lshl_add_u32 v{vMM}, v29, 2, v{vMM}
    v_add_u32 v{vMM}, {1024 + 512}, v{vMM}
    s_lshl_b32 {sU0}, {sWAVE}, 10
    v_add_u32 v{vLDSW}, {sU0}, v{vLIN}
    s_mov_b32 {sU0}, {one}
    s_mov_b32 {sU1}, {onehi}
    v_lshlrev_b32 v24, 2, v25""")
    for d in range(4):
        t, p = d >> 1, d & 1
        e(f"""v_add_u32 v23, {2 * p + 8 * t}, v24
        v_cmp_eq_u32 vcc, v23, v28
        v_mov_b32 v22, {sU0}
        v_cndmask_b32 v{vSELT + d}, 0, v22, vcc
        v_add_u32 v23, 1, v23
        v_cmp_eq_u32 vcc, v23, v28
        v_mov_b32 v22, {sU1}
        v_cndmask_b32 v{vSELT + d}, v{vSELT + d}, v22, vcc""")
        e(f"""v_lshlrev_b32 v23, 1, v24
        v_add_u32 v23, {4 * p + 2 * t}, v23
        v_cmp_eq_u32 vcc, v23, v28
        v_mov_b32 v22, {sU0}
        v_cndmask_b32 v{vSELV + d}, 0, v22, vcc
        v_add_u32 v23, 1, v23
        v_cmp_eq_u32 vcc, v23, v28
        v_mov_b32 v22, {sU1}
        v_cndmask_b32 v{vSELV + d}, v{vSELV + d}, v22, vcc
        v_mov_b32 v{vONE + d}, 0x3f803f80""")
    zero(e, vQ0, 32)
    zero(e, vVA0, 16)
    if opt.get("stamps") or opt.get("total"):
        zero(e, 240, 16)
        for i in range(88, 96):
            e(f"s_mov_b32 s{i}, 0")
    e(f"""s_mov_b32 s82, 0x00ff00ff
    s_mov_b32 s83, 0x00ff00ff
    s_mov_b32 s84, 0xff00ff00
    s_mov_b32 s85, 0xff00ff00
    s_lshr_b32 {sKMB}, {sH}, 3
    s_lshl_b32 {sKMB}, {sKMB}, 14
    s_and_b32 {sU0}, {sH}, 7
    s_lshl_b32 {sU0}, {sU0}, 10
    s_add_u32 {sKMB}, {sKMB}, {sU0}""")
    for k in (1, 2, 3):
        e(f"s_xor_b32 {sSC[k]}, {sSC[0]}, {k << 11}")
    next(lw)
    tl(e, opt, 2)
    e(f"""s_lshl_b32 {sU0}, {sA}, 15
    s_lshl_b32 {sU1}, {sWAVE}, 12
    s_add_u32 {sU0}, {sU0}, {sU1}
    s_add_u32 {sMEMR}, {sU0}, {MEMB}
    s_add_u32 {sOR}, {sU0}, {OB}
    s_add_u32 {sMEMW}, {sOW}, {MEMB + 0x4000}
    s_add_u32 {sOW}, {sOW}, {OB}
    s_mov_b32 {sSTEP}, 0
    s_mov_b32 {sSEL}, 0
    s_mov_b32 {sPROG}, 0
    s_barrier""")
    wait_news(e, B_CHAIN | B_WORK | B_VOTE, vT0, vT1, sSEL)
    e(f"""s_and_b32 {sU0}, {sSEL}, 1
    s_lshl_b32 {sU0}, {sU0}, 13
    s_add_u32 {sPXB}, {sPXB}, {sU0}
    s_add_u32 {sPXB}, {sPXB}, {PXF}
    s_add_u32 {sKMB}, {sKMB}, {sU0}
    s_add_u32 {sKMB}, {sKMB}, {KM}""")
    step_pages(e)
    tl(e, opt, 3)
    e(f"""s_cmp_eq_u32 {sWAVE}, 1
    s_cbranch_scc0 Lc_first
    s_mov_b32 {sU1}, 1""")
    wait_kv(e, sU1)
    load_kv(e)
    span(e, opt, 1)
    e("s_waitcnt vmcnt(0)\nLc_first:\ns_barrier")
    for i in range(4):
        read_kv(e, i)
    tl(e, opt, 4)
    srd(e, rB1, pMEM0, 16384)
    e(f"""v_lshrrev_b32 v{vT0}, 3, v0
    v_and_b32 v{vT1}, 7, v0
    v_lshlrev_b32 v{vT1}, 11, v{vT1}
    v_lshl_add_u32 v{vT0}, v{vT0}, 6, v{vT1}
    s_lshl_b32 {sU0}, {sWAVE}, 9""")
    for c in range(4):
        e(f"buffer_load_dwordx4 {vr(vA + 4 * c)}, v{vT0}, {R(rB1)}, {sU0} offen offset:{16 * c}")
    if opt.get("stamps") or opt.get("total"):
        e("s_memtime s[96:97]\ns_memrealtime s[100:101]\ns_waitcnt lgkmcnt(0)\ns_mov_b32 s88, s96\ns_mov_b32 s20, s96")
    e(f"""s_cmp_eq_u32 {sWAVE}, 0
    s_cbranch_scc1 LlA_rot
    s_branch LhA_rot""")
    helper(e, opt)
    leader(e, opt)
    e("L_chain_done:")
    tl(e, opt, 5)
    tr_out(e, opt)
    e("s_endpgm")
```

```python
import math
import os
import struct
from asmlib import Asm, vr, ar, sr

KNAME = "concat_heads__memory_aug_recurrent_mem_tr__ssm_conv_s4__prompt_kernel"
MB = 1 << 20
WS_BYTES = 256 * MB
LDS_BYTES = 163840

LOC = 2 * MB
MEMB = LOC
OB = LOC + 128 * 1024
SC = LOC + 256 * 1024
FLG = LOC + MB
FCO = 4096
FO = FLG + 8192
FP = FLG + 16384
DIAG = LOC + MB + 65536
XF = 8 * MB
KX = 16 * MB
VX = 32 * MB
OX = VX
OP = 96 * MB
PXF = 128 * MB
KM = 148 * MB
PROBE = 164 * MB

NSEG = 64
QSCALE = (128 ** -0.5) * math.log2(math.e)
SPIN_BUDGET = 400000


def f2u(x):
    return struct.unpack("<I", struct.pack("<f", x))[0]


sWAVE, sXCC, sRANK, sT = "s4", "s5", "s6", "s7"
pX, pMEM0, pWQ, pWK, pWV, pWO, pU = 8, 10, 12, 14, 16, 18, 22
pARE, pAIM, pBRE, pBIM, pCRE, pCIM, pLDT, pDSK = 24, 26, 28, 30, 32, 34, 36, 38
pOUT, pDBG, pWS = 40, 42, 44
rWS, rB1, rB2 = 48, 52, 56
sTO = "s46"
sA = "s47"


def srd(e, r, p, nbytes):
    e(f"""s_mov_b32 s{r}, s{p}
    s_and_b32 s{r + 1}, s{p + 1}, 0xffff
    s_mov_b32 s{r + 2}, {nbytes}
    s_mov_b32 s{r + 3}, 0x20000""")


def R(r):
    return f"s[{r}:{r + 3}]"


def spin_fail(e, again, giveup):
    e(f"""s_sub_u32 {sTO}, {sTO}, 1
    s_cbranch_scc0 {again}
    s_mov_b32 {sTO}, 0
    s_branch {giveup}""")


TL = DIAG + 0x80000


def tl(e, opt, i):
    if not opt.get("tl"):
        return
    e(f"""s_memrealtime s[100:101]
    s_lshl_b32 s99, {sXCC}, 5
    s_add_u32 s99, s99, {sRANK}
    s_lshl_b32 s99, s99, 2
    s_add_u32 s99, s99, {sWAVE}
    s_lshl_b32 s99, s99, 6
    s_add_u32 s99, s99, {TL + 4 * i}
    s_waitcnt lgkmcnt(0)
    v_mov_b32 v254, {'s98' if i == 0 else 's100'}
    v_mov_b32 v255, 0
    s_mov_b64 exec, 1
    buffer_store_dword v254, v255, {R(rWS)}, s99 offen
    s_mov_b64 exec, -1""")


WP = DIAG + 0xa0000


def wp(e, opt, i):
    if not opt.get("wp"):
        return
    e("s_memtime s[96:97]\ns_waitcnt lgkmcnt(0)")
    if i < 0:
        for k in range(84, 96):
            e(f"s_mov_b32 s{k}, 0")
    else:
        e(f"s_sub_u32 s97, s96, s83\ns_add_u32 s{84 + i}, s{84 + i}, s97")
    e("s_mov_b32 s83, s96")


def wp_out(e, opt):
    if not opt.get("wp"):
        return
    e(f"""s_lshl_b32 s99, {sXCC}, 5
    s_add_u32 s99, s99, {sRANK}
    s_lshl_b32 s99, s99, 2
    s_add_u32 s99, s99, {sWAVE}
    s_lshl_b32 s99, s99, 6
    s_add_u32 s99, s99, {WP}
    v_mov_b32 v255, 0""")
    for k in range(12):
        e(f"v_mov_b32 v254, s{84 + k}\nbuffer_store_dword v254, v255, {R(rWS)}, s99 offen offset:{4 * k}")


def span(e, opt, i):
    if not opt.get("span"):
        return
    e("s_memrealtime s[100:101]\ns_waitcnt lgkmcnt(0)")
    if i == 0:
        e("s_not_b32 s100, s98")
    e(f"""v_mov_b32 v254, s100
    v_mov_b32 v255, 0
    s_mov_b64 exec, 1
    global_atomic_umax v255, v254, {sr(pDBG)} offset:{12 + 4 * i} sc1
    s_mov_b64 exec, -1""")


def entry(e, opt):
    if opt.get("tl") or opt.get("span"):
        e("s_memrealtime s[98:99]")
    e(f"""s_cmp_ge_u32 s2, 256
    s_cbranch_scc1 L_exit
    s_load_dwordx4 s[40:43], s[0:1], 128
    s_load_dwordx2 s[44:45], s[0:1], 144
    s_load_dwordx16 s[8:23], s[0:1], 0
    s_load_dwordx16 s[24:39], s[0:1], 64
    s_getreg_b32 {sXCC}, hwreg(HW_REG_XCC_ID, 0, 3)
    v_lshrrev_b32 v1, 6, v0
    v_readfirstlane_b32 {sWAVE}, v1
    v_and_b32 v0, 63, v0
    s_mov_b32 {sTO}, {SPIN_BUDGET}
    s_lshl_b32 {sT}, {sXCC}, 5
    v_mov_b32 v1, {sT}
    v_mov_b32 v2, 1
    v_mov_b32 v3, 0
    v_mov_b32 v4, 0
    s_waitcnt lgkmcnt(0)
    s_cmp_eq_u32 {sWAVE}, 0
    s_cbranch_scc0 L_no_ticket
    s_mov_b64 exec, 1
    global_atomic_add v3, v1, v2, {sr(pDBG)} sc0 sc1
    s_waitcnt vmcnt(0)
    ds_write_b32 v4, v3
    s_waitcnt lgkmcnt(0)
    s_mov_b64 exec, -1
    L_no_ticket:
    s_barrier
    ds_read_b32 v3, v4
    s_waitcnt lgkmcnt(0)
    v_readfirstlane_b32 {sRANK}, v3
    s_barrier""")
    srd(e, rWS, pWS, WS_BYTES)
    e(f"""s_cmp_ge_u32 {sRANK}, 32
    s_cbranch_scc1 L_exit""")
    tl(e, opt, 0)
    tl(e, opt, 1)
    e(f"""s_and_b32 {sA}, {sXCC}, 3
    s_cmp_lt_u32 {sXCC}, 4
    s_cbranch_scc1 L_chain
    s_branch L_worker
    L_exit:
    s_endpgm""")


C_CHAIN, C_WORK, C_XF1, C_XF2, C_VOTE = (4, 128), (68, 128), (36, 32), (40, 32), (100, 32)
D_NEWS = 132
B_CHAIN, B_WORK, B_XF1, B_XF2, B_VOTE, B_SEL = 1, 2, 4, 8, 16, 32


def arrive(e, ctr, bit, va, vd, vote=None):
    off, total = ctr
    sk = e.lab("arr")
    e(f"v_mov_b32 v{va}, 0")
    if vote:
        e(f"s_add_u32 {vote}, {vote}, {1 << 24}\nv_mov_b32 v{vd}, {vote}")
    else:
        e(f"v_mov_b32 v{vd}, 1")
    e(f"""s_mov_b64 exec, 1
    global_atomic_add v{vd}, v{va}, v{vd}, {sr(pDBG)} offset:{off} sc0 sc1
    s_waitcnt vmcnt(0)
    v_readfirstlane_b32 {sT}, v{vd}""")
    if vote:
        e(f"""s_add_u32 {sT}, {sT}, {vote}
        s_lshr_b32 {vote}, {sT}, 24
        s_cmp_eq_u32 {vote}, {total}
        s_cbranch_scc0 {sk}
        s_and_b32 {sT}, {sT}, 0xffffff
        s_cmp_gt_u32 {sT}, {total * 1024}
        s_cselect_b32 {sT}, {bit | B_SEL}, {bit}
        v_mov_b32 v{vd}, {sT}""")
    else:
        e(f"""s_cmp_eq_u32 {sT}, {total - 1}
        s_cbranch_scc0 {sk}
        v_mov_b32 v{vd}, {bit}""")
    e(f"""global_atomic_or v{va}, v{vd}, {sr(pDBG)} offset:{D_NEWS} sc1
    {sk}:
    s_mov_b64 exec, -1""")


def wait_news(e, bits, va, vd, sel=None):
    top, ok = e.lab("news"), e.lab("newsok")
    e(f"""v_mov_b32 v{va}, 0
    {top}:
    global_load_dword v{vd}, v{va}, {sr(pDBG)} offset:{D_NEWS} sc1
    s_waitcnt vmcnt(0)
    v_readfirstlane_b32 {sT}, v{vd}""")
    if sel:
        e(f"s_bfe_u32 {sel}, {sT}, 0x10005")
    e(f"""s_and_b32 {sT}, {sT}, {bits}
    s_cmp_eq_u32 {sT}, {bits}
    s_cbranch_scc1 {ok}
    s_sleep 2""")
    spin_fail(e, top, ok)
    e(f"{ok}:")


def wrap(lines):
    here = os.path.dirname(os.path.dirname(os.path.abspath(__file__)))
    hdr = open(here + "/concat_heads__memory_aug_recurrent_mem_tr__ssm_conv_s4__prompt.s.ref").read().split("\n")
    head = []
    for l in hdr:
        if l.startswith("; @launch"):
            break
        head.append(l)
    body = "\n".join(l if l.endswith(":") else " " + l for l in lines)
    return "\n".join(head) + f"""
; @launch grid=(256,1,1) block=(256,1,1) lds={LDS_BYTES}
.amdgcn_target "amdgcn-amd-amdhsa--gfx950"
.text
.globl {KNAME}
.p2align 8
.type {KNAME},@function
{KNAME}:
{body}
.section .rodata,"a"
.p2align 6
.amdhsa_kernel {KNAME}
  .amdhsa_next_free_vgpr 512
  .amdhsa_next_free_sgpr 102
  .amdhsa_accum_offset 256
  .amdhsa_group_segment_fixed_size 0
  .amdhsa_kernarg_size 152
  .amdhsa_user_sgpr_count 2
  .amdhsa_user_sgpr_kernarg_segment_ptr 1
  .amdhsa_system_sgpr_workgroup_id_x 1
  .amdhsa_float_denorm_mode_32 3
.end_amdhsa_kernel
"""
```

```python
from gen_common import *

WREG = 40960
CS = 4160
KC, UT, KD = 0, 16640, 24320
TP = 272
TX, TY = 0, 21 * 272
KZERO = 672

sD, sU0, sU1, sIT = "s60", "s61", "s62", "s63"
sLD, sDS = 64, 66
sPU, sP2, sPI0, sPI1 = "s68", "s69", "s70", "s71"

vT0, vT1, vT2, vT3 = 2, 3, 4, 5
vTW, vTR, vKW, vCW, vAR, vBR, vUW = 6, 7, 8, 11, 12, 13, 14
vDT = 15
vIMG = 75
vPAR = 16
vGA = 40
vW = 76
vACC = [128, 144]
vFB, vFA = 160, 176
vU = 192


def cmul(e, d, z, w):
    e(f"""v_pk_mul_f32 {vr(d, 2)}, {vr(z, 2)}, {vr(w, 2)} op_sel_hi:[1,0]
    v_pk_fma_f32 {vr(d, 2)}, {vr(z, 2)}, {vr(w, 2)}, {vr(d, 2)} op_sel:[1,1,0] op_sel_hi:[0,1,1] neg_lo:[1,0,0]""")


def cexp(e, d, lam, t):
    e(f"""v_mul_f32 v{vT0}, {hex(f2u(float(t)))}, v{lam}
    v_mul_f32 v{vT1}, {hex(f2u(float(t)))}, v{lam + 1}
    v_exp_f32 v{vT0}, v{vT0}
    v_fract_f32 v{vT1}, v{vT1}
    v_cos_f32 v{d}, v{vT1}
    v_sin_f32 v{d + 1}, v{vT1}
    v_pk_mul_f32 {vr(d, 2)}, {vr(d, 2)}, {vr(vT0, 2)} op_sel_hi:[1,0]""")


def tables(e, half):
    lam, cb, e1, e8, e256, g = vW, vW + 2, vW + 4, vW + 6, vW + 8, vW + 10
    bb, cc = vW + 14, vW + 16
    xs = vW + 18
    z = [vW + 34, vW + 36]
    pk = [vW + 38, vW + 39, vW + 40, vW + 41]
    cnt = [0]

    def up(d, s):
        e(f"v_and_b32 v{d}, 0xffff0000, v{s}" if half else f"v_lshlrev_b32 v{d}, 16, v{s}")

    def put(base, row, r, neg):
        p = pk[cnt[0] % 4]
        cnt[0] += 1
        e(f"""v_cvt_pk_bf16_f32 v{p}, v{r}, {'-' if neg else ''}v{r + 1}
        ds_write_b32 v{vTW}, v{p} offset:{base + row * TP}""")

    for i, d in enumerate((lam, lam + 1, bb, bb + 1, cc, cc + 1)):
        up(d, vPAR + i)
    e(f"""v_mul_f32 v{lam}, v{vDT}, v{lam}
    v_mul_f32 v{lam + 1}, v{vDT}, v{lam + 1}
    v_mul_f32 v{bb}, v{vDT}, v{bb}
    v_mul_f32 v{bb + 1}, v{vDT}, v{bb + 1}
    v_mul_f32 v{lam}, {hex(f2u(math.log2(math.e)))}, v{lam}
    v_mul_f32 v{lam + 1}, 0.15915494, v{lam + 1}""")
    cmul(e, xs, cc, bb)
    cexp(e, e1, lam, 1)
    cexp(e, e8, lam, 8)
    cexp(e, e256, lam, 256)
    e(f"v_mov_b32 v{pk[3]}, 0x3f80\nds_write_b32 v{vTW}, v{pk[3]} offset:{TY}")
    put(TY, 1, e8, False)
    prev = e8
    for b in range(2, 32):
        cmul(e, z[b & 1], prev, e8)
        prev = z[b & 1]
        put(TY, b, prev, False)
    put(TX, 0, xs, True)
    for r in range(1, 8):
        cmul(e, xs + 2 * r, xs + 2 * r - 2, e1)
        put(TX, r, xs + 2 * r, True)
    for i in range(4):
        cmul(e, z[i & 1], xs + 4 * i, e256)
        put(TX, 8 + i, z[i & 1], True)
    prev = e256
    for m in range(2, 9):
        cur = g + 2 * (m & 1)
        cmul(e, cur, prev, e256)
        prev = cur
        rows = [(12 + 2 * (m - 2), 0), (13 + 2 * (m - 2), 4)] if m < 4 else [(12 + m, 0)]
        for k, (row, r) in enumerate(rows):
            cmul(e, z[k], xs + 2 * r, cur)
            put(TX, row, z[k], True)
    e("s_waitcnt lgkmcnt(0)")
    acc = vACC[0]
    for kk in range(8):
        a, b = vFA + 4 * (kk & 3), vFB + 4 * (kk & 3)
        if kk % 4 == 0:
            for j in range(4):
                e(f"""ds_read_b128 {vr(vFA + 4 * j)}, v{vTR} offset:{TX + (kk + j) * 32}
                ds_read_b128 {vr(vFB + 4 * j)}, v{vTR} offset:{TY + (kk + j) * 32}""")
        e(f"s_waitcnt lgkmcnt({6 - 2 * (kk & 3)})")
        first = half == 0 and kk == 0
        e(f"v_mfma_f32_32x32x16_bf16 {vr(acc, 16)}, {vr(a)}, {vr(b)}, {'0' if first else vr(acc, 16)}")


def expand(e):
    acc = vACC[0]
    g = vW
    for i in range(4):
        e(f"ds_write_b32 v{vKW}, v{acc + i} offset:{KD + 4 * i}")
    e("s_mov_b64 exec, 0xffffffff")
    for i in range(4):
        e(f"ds_write_b32 v{vKW + 1}, v{acc + 4 + i} offset:{KD + 4 * (256 + i)}")
        e(f"ds_write_b32 v{vKW + 2}, v{acc + 8 + i} offset:{KD + 4 * (512 + 32 * i)}")
    e("s_not_b64 exec, exec")
    for i in range(4):
        e(f"ds_write_b32 v{vKW + 1}, v{acc + 4 + i} offset:{KD + 4 * (384 + 64 * (i >> 1) + (i & 1))}")
    e(f"ds_write_b32 v{vKW + 2}, v{acc + 8} offset:{KD + 4 * 640}")
    e("s_mov_b64 exec, -1\ns_waitcnt lgkmcnt(0)")
    for t in range(35):
        e(f"ds_read_b32 v{g + t}, v{vGA + t}")
        if t % 12 == 11:
            e("s_waitcnt lgkmcnt(0)")
    e("s_waitcnt lgkmcnt(0)")
    for c in range(4):
        for q in range(4):
            d = vFB + 4 * ((c * 4 + q) % 8)
            for i in range(4):
                t = 3 - c + 2 * (4 * q + i)
                e(f"v_cvt_pk_bf16_f32 v{d + i}, v{g + t}, v{g + t + 1}")
            e(f"ds_write_b128 v{vCW}, {vr(d)} offset:{KC + c * CS + 16 * q}")
    e(f"""v_mov_b32 v{vT0}, 0
    v_lshrrev_b32 v{vT1}, 4, v0
    v_mul_u32_u24 v{vT1}, {CS - 64}, v{vT1}
    v_add_u32 v{vT1}, v{vT1}, v{vTW}
    ds_write_b32 v{vT1}, v{vT0} offset:{KC + 4096}""")


def stage_u(e):
    for ah in range(2):
        for q in range(4):
            k = ah * 16 + q * 4
            d = vFA + 2 * ((ah * 4 + q) % 8)
            for j in range(2):
                e(f"v_perm_b32 v{d + j}, v{vU + 2 * (k + 2 * j + 1)}, v{vU + 2 * (k + 2 * j)}, {sP2}")
            e(f"ds_write_b64 v{vUW}, {vr(d, 2)} offset:{UT + (32 + 32 * ah) * 80 + 16 * q}")


def conv(e):
    ops = []
    for sg in range(-32, 32):
        for hh in range(2):
            ops.append((sg, hh, 1, sg + 32))
            if sg >= 0:
                ops.append((sg, hh, 0, sg))
    pend, bslot = [], {}
    nb = [0]

    def fetch(n):
        sg, hh, ai, dl = ops[n]
        if (sg, hh) not in bslot:
            bslot[(sg, hh)] = vFB + 4 * (nb[0] % 4)
            nb[0] += 1
            e(f"ds_read_b128 {vr(bslot[(sg, hh)])}, v{vBR} offset:{UT + (31 - sg) * 80 + hh * 32}")
            pend.append(None)
        a = vFA + 4 * (n % 4)
        off = KC + 2 * (2016 - (32 * dl - 16 * hh))
        e(f"ds_read_b64 {vr(a, 2)}, v{vAR} offset:{off}\nds_read_b64 {vr(a + 2, 2)}, v{vAR} offset:{off + 8}")
        pend.extend([None, n])

    D = 3
    for n in range(D):
        fetch(n)
    for n, (sg, hh, ai, dl) in enumerate(ops):
        if n + D < len(ops):
            fetch(n + D)
        i = pend.index(n)
        e(f"s_waitcnt lgkmcnt({len(pend) - 1 - i})")
        del pend[:i + 1]
        acc = vACC[ai]
        e(f"v_mfma_f32_32x32x16_bf16 {vr(acc, 16)}, {vr(vFA + 4 * (n % 4))}, {vr(bslot[(sg, hh)])}, {vr(acc, 16)}")


def ssm(e, opt):
    e(f"""s_barrier
    s_lshl_b32 {sD}, {sA}, 4
    s_add_u32 {sD}, {sD}, {sRANK}
    s_lshl_b32 {sD}, {sD}, 2
    s_add_u32 {sD}, {sD}, {sWAVE}
    s_lshl_b32 {sU0}, {sD}, 3
    s_load_dwordx2 {sr(sLD)}, {sr(pLDT)}, {sU0}
    s_load_dwordx2 {sr(sDS)}, {sr(pDSK)}, {sU0}
    s_lshl_b32 {sU1}, {sD}, 10
    v_lshl_add_u32 v{vT0}, v0, 2, {sU1}""")
    for c in range(4):
        for i, p in enumerate((pARE, pAIM, pBRE, pBIM, pCRE, pCIM)):
            e(f"global_load_dword v{vPAR + 6 * c + i}, v{vT0}, {sr(p)} offset:{256 * c}")
    srd(e, rB1, pU, 4 * MB)
    srd(e, rB2, pOUT, 8 * MB)
    e(f"""v_and_b32 v{vT2}, 31, v0
    v_lshrrev_b32 v{vT3}, 5, v0
    v_lshrrev_b32 v{vT1}, 1, v0
    v_and_b32 v{vDT}, 1, v0
    v_lshlrev_b32 v{vDT}, 4, v{vDT}
    v_lshl_add_u32 v{vT1}, v{vT1}, 11, v{vDT}
    s_lshr_b32 {sU0}, {sD}, 2
    s_lshl_b32 {sU0}, {sU0}, 5
    s_lshl_b32 {sU1}, {sWAVE}, 20
    s_add_u32 {sU0}, {sU0}, {sU1}
    s_mul_i32 {sIT}, {sWAVE}, {16 * 1040}
    s_and_b32 {sPU}, {sRANK}, 3
    s_lshl_b32 {sPU}, {sPU}, 2""")
    for i in range(16):
        e(f"""s_add_u32 {sP2}, {sPU}, {i}
        s_and_b32 {sP2}, {sP2}, 15
        s_mul_i32 {sU1}, {sP2}, 1040
        s_add_u32 m0, {sU1}, {sIT}
        s_lshl_b32 {sU1}, {sP2}, 16
        s_add_u32 {sU1}, {sU1}, {sU0}
        buffer_load_dwordx4 v{vT1}, {R(rB1)}, {sU1} offen lds""")
    e(f"""s_mul_i32 {sU1}, {sWAVE}, {WREG}
    v_lshl_add_u32 v{vTW}, v0, 2, {sU1}
    v_mul_u32_u24 v{vTR}, {TP}, v{vT2}
    v_lshl_add_u32 v{vTR}, v{vT3}, 4, v{vTR}
    v_add_u32 v{vTR}, {sU1}, v{vTR}
    v_lshlrev_b32 v{vKW}, 5, v{vT2}
    v_lshl_add_u32 v{vKW}, v{vT3}, 4, v{vKW}
    v_add_u32 v{vKW}, {sU1}, v{vKW}
    v_sub_u32 v{vT0}, 4, v{vT3}
    v_lshlrev_b32 v{vKW + 1}, v{vT0}, v{vT2}
    v_add_u32 v{vKW + 1}, {sU1}, v{vKW + 1}
    v_lshl_add_u32 v{vKW + 2}, v{vT2}, 2, {sU1}
    v_lshl_add_u32 v{vCW}, v0, 6, {sU1}
    v_and_b32 v{vT0}, 3, v0
    v_mul_u32_u24 v{vAR}, {CS}, v{vT0}
    v_lshrrev_b32 v{vT0}, 2, v{vT2}
    v_sub_u32 v{vT0}, 7, v{vT0}
    v_lshl_add_u32 v{vAR}, v{vT0}, 3, v{vAR}
    v_lshl_add_u32 v{vAR}, v{vT3}, 4, v{vAR}
    v_add_u32 v{vAR}, {sU1}, v{vAR}
    v_mul_u32_u24 v{vUW}, 80, v{vT2}
    v_add_u32 v{vUW}, {sU1}, v{vUW}
    v_lshl_add_u32 v{vBR}, v{vT3}, 4, v{vUW}
    v_add_u32 v{vBR}, 80, v{vBR}
    v_lshl_add_u32 v{vUW}, v{vT3}, 3, v{vUW}
    s_add_u32 {sU1}, {sU1}, {KD}
    v_lshlrev_b32 v{vT0}, 5, v0""")
    for t in range(35):
        e(f"""v_sub_u32 v{vT1}, {2047 - t}, v{vT0}
        v_cvt_f32_i32 v{vW}, v{vT1}
        v_cvt_pk_bf16_f32 v{vW}, v{vW}, v{vW}
        v_and_b32 v{vW}, 0xffff, v{vW}
        v_subrev_u32 v{vW}, {0x4380 - 256}, v{vW}
        v_cmp_gt_i32 vcc, 0x100, v{vT1}
        v_cndmask_b32 v{vW}, v{vW}, v{vT1}, vcc""")
        if t > 31:
            e(f"""v_mov_b32 v{vW + 1}, {KZERO}
            v_cmp_gt_i32 vcc, 0, v{vT1}
            v_cndmask_b32 v{vW}, v{vW}, v{vW + 1}, vcc""")
        e(f"v_lshl_add_u32 v{vGA + t}, v{vW}, 2, {sU1}")
    e(f"""v_mul_u32_u24 v{vIMG}, 1040, v{vT2}
    v_lshl_add_u32 v{vIMG}, v{vT3}, 7, v{vIMG}
    s_lshl_b32 {sU0}, {sWAVE}, 3
    v_add_u32 v{vIMG}, {sU0}, v{vIMG}
    s_waitcnt vmcnt(0)
    s_barrier""")
    img = lambda k: (k >> 4) * 32 * 1040 + (8 * ((k >> 2) & 3) + (k & 3)) * 32
    for k in range(32):
        e(f"ds_read_b64 {vr(vU + 2 * k, 2)}, v{vIMG} offset:{img(k)}")
        if k % 8 == 7:
            e("s_waitcnt lgkmcnt(0)")
    e("s_barrier")
    e(f"v_mov_b32 v{vT0}, 0\nds_write_b32 v{vTW}, v{vT0} offset:{KD + 4 * KZERO}")
    for i in range(10):
        e(f"ds_write_b32 v{vTW}, v{vT0} offset:{UT + 256 * i}")
    e(f"s_mov_b32 {sIT}, 0\ns_waitcnt lgkmcnt(0)\nLs_chan:")
    sp = opt.get("sp")
    stamp = lambda i: e(f"s_memtime s[{74 + 2 * i}:{75 + 2 * i}]") if sp else None
    stamp(0)
    e(f"""s_lshl_b32 {sU0}, s{sLD}, 16
    v_mov_b32 v{vDT}, {hex(f2u(math.log2(math.e)))}
    v_mul_f32 v{vDT}, {sU0}, v{vDT}
    v_exp_f32 v{vDT}, v{vDT}
    s_bitcmp1_b32 {sIT}, 0
    s_mov_b32 {sPU}, 0x01000c0c
    s_mov_b32 {sP2}, 0x05040100
    s_mov_b32 {sPI0}, 0x03020504
    s_mov_b32 {sPI1}, 0x03020706
    s_cmov_b32 {sPU}, 0x03020c0c
    s_cmov_b32 {sP2}, 0x07060302
    s_cmov_b32 {sPI0}, 0x05040100
    s_cmov_b32 {sPI1}, 0x07060100
    v_cvt_pk_bf16_f32 v{vDT}, v{vDT}, v{vDT}
    v_lshlrev_b32 v{vDT}, 16, v{vDT}""")
    tables(e, 0)
    tables(e, 1)
    stamp(1)
    stage_u(e)
    expand(e)
    stamp(2)
    e(f"s_lshl_b32 {sU0}, s{sDS}, 16")
    for k in range(32):
        a = vACC[k >> 4] + (k & 15)
        e(f"v_perm_b32 v{a}, v{vU + 2 * k}, v{vU + 2 * k}, {sPU}\nv_mul_f32 v{a}, {sU0}, v{a}")
    e("s_waitcnt lgkmcnt(0)")
    stamp(3)
    conv(e)
    stamp(4)
    if sp:
        e(f"""s_waitcnt lgkmcnt(0)
        s_lshl_b32 {sU1}, {sD}, 2
        s_add_u32 {sU1}, {sU1}, {sIT}
        s_lshl_b32 {sU1}, {sU1}, 4
        s_add_u32 {sU1}, {sU1}, {DIAG + 0x40000}""")
        for i in range(4):
            e(f"s_sub_u32 s72, s{76 + 2 * i}, s{74 + 2 * i}\nv_mov_b32 v{vW + i}, s72")
        e(f"v_mov_b32 v{vT0}, 0\nbuffer_store_dwordx4 {vr(vW)}, v{vT0}, {R(rWS)}, {sU1} offen")
    for i in range(18):
        e(f"v_mov_b32 v{vPAR + i}, v{vPAR + 6 + i}")
    for k in range(0, 32, 2):
        a = vACC[k >> 4] + (k & 15)
        e(f"""v_cvt_pk_bf16_f32 v{vT0}, v{a}, v{a + 1}
        v_perm_b32 v{vU + 2 * k}, v{vT0}, v{vU + 2 * k}, {sPI0}
        v_perm_b32 v{vU + 2 * k + 2}, v{vT0}, v{vU + 2 * k + 2}, {sPI1}""")
    e(f"""s_lshr_b64 {sr(sLD)}, {sr(sLD)}, 16
    s_lshr_b64 {sr(sDS)}, {sr(sDS)}, 16
    s_bitcmp1_b32 {sIT}, 0
    s_cbranch_scc0 Ls_noswap""")
    for k in range(32):
        e(f"v_swap_b32 v{vU + 2 * k}, v{vU + 2 * k + 1}")
    e(f"""Ls_noswap:
    s_add_u32 {sIT}, {sIT}, 1
    s_cmp_lt_u32 {sIT}, 4
    s_cbranch_scc1 Ls_chan""")
    e("s_barrier")
    for k in range(32):
        e(f"ds_write_b64 v{vIMG}, {vr(vU + 2 * k, 2)} offset:{img(k)}")
    e(f"""s_mul_i32 {sU0}, {sWAVE}, {16 * 1040}
    v_lshl_add_u32 v{vT1}, v0, 4, {sU0}
    v_lshrrev_b32 v{vT2}, 1, v0
    v_and_b32 v{vT3}, 1, v0
    v_lshlrev_b32 v{vT3}, 4, v{vT3}
    v_lshl_add_u32 v{vT2}, v{vT2}, 12, v{vT3}
    s_lshr_b32 {sU0}, {sD}, 2
    s_lshl_b32 {sU0}, {sU0}, 5
    s_lshl_b32 {sU1}, {sWAVE}, 21
    s_add_u32 {sU0}, {sU0}, {sU1}
    s_add_u32 {sU0}, {sU0}, 2048
    s_waitcnt lgkmcnt(0)
    s_barrier""")
    for h in range(2):
        for i in range(8):
            e(f"ds_read_b128 {vr(vW + 4 * i)}, v{vT1} offset:{(8 * h + i) * 1040}")
        for i in range(8):
            e(f"""s_waitcnt lgkmcnt({7 - i})
            s_add_u32 {sU1}, {sU0}, {(8 * h + i) << 17}
            buffer_store_dwordx4 {vr(vW + 4 * i)}, v{vT2}, {R(rB2)}, {sU1} offen""")
        if h == 0:
            e("s_waitcnt vmcnt(0)")
```

```python
from gen_common import *
import gen_ssm

sROLE, sHL, sH, sSEG, sSEL = "s60", "s61", "s62", "s63", "s64"
sXO, sM0, sOUT, sFL, sU0, sU1, sU2 = "s65", "s66", "s67", "s68", "s69", "s70", "s71"
sG, sPRE, sXK, sPXS = "s72", "s73", "s82", "s74"
MASK0 = 8

vLIN, vXA, vT0, vT1 = 1, 2, 3, 4
vXB, vST, vXW = 5, 6, 7
vXR, vTCH = 10, 11
vDUM = 12
vX = 16
vACC = [80, 144]
vTMP = 208
vPK = 224
vFR = vX
AHEAD = 3
XBUF = 49152
XP = {}


def mf32(e, d, a, b, c):
    e(f"v_mfma_f32_32x32x16_bf16 {vr(d, 16)}, {a}, {b}, {'0' if c is None else vr(c, 16)}")


def probe(e):
    e(f"""s_lshl_b32 {sU0}, {sA}, 4
    s_add_u32 {sU0}, {sU0}, {sHL}
    s_lshl_b32 {sU0}, {sU0}, 7
    v_mov_b32 v{vT0}, {sU0}
    s_mov_b32 s74, -1
    s_mov_b32 s75, -1
    s_mov_b32 s76, 0
    s_mov_b64 exec, 1
    Lp_loop:""")
    for cand in range(2):
        e(f"""s_mov_b32 s77, {PROBE + cand * 8192}
        s_memtime s[78:79]
        s_waitcnt lgkmcnt(0)
        buffer_store_dword v{vT0}, v{vT0}, {R(rWS)}, s77 offen sc1
        s_waitcnt vmcnt(0)
        s_memtime s[80:81]
        s_waitcnt lgkmcnt(0)
        s_sub_u32 s80, s80, s78
        s_min_u32 s{74 + cand}, s{74 + cand}, s80""")
    e(f"""s_add_u32 s76, s76, 1
    s_cmp_lt_u32 s76, 2
    s_cbranch_scc1 Lp_loop
    s_sub_i32 s76, s75, s74
    s_min_i32 s76, s76, 400
    s_max_i32 s76, s76, -400
    s_add_i32 s76, s76, 1024
    s_mov_b64 exec, -1""")
    arrive(e, C_VOTE, B_VOTE, vT0, vT1, "s76")


def near_base(e, dst, base, seg):
    e(f"""s_lshr_b32 {sU0}, {seg}, 3
    s_xor_b32 {sU0}, {sU0}, {sSEL}
    s_and_b32 {sU0}, {sU0}, 1
    s_lshl_b32 {sU0}, {sU0}, 13
    s_lshl_b32 {dst}, {seg}, 18
    s_add_u32 {dst}, {dst}, {sU0}
    s_add_u32 {dst}, {dst}, {base}""")


def store_word(e, val, soff, flag):
    e(f"""v_mov_b32 v{vT0}, {val}
    v_mov_b32 v{vT1}, 0
    s_mov_b64 exec, 1
    buffer_store_dword v{vT0}, v{vT1}, {R(rWS)}, {soff} offen {flag}
    s_mov_b64 exec, -1""")


def wait_words(e, va, soff, lanes, need, vd=None):
    vd = vT1 if vd is None else vd
    top, ok = e.lab("w"), e.lab("wok")
    e(f"""s_mov_b64 exec, {(1 << lanes) - 1}
    {top}:
    buffer_load_dword v{vd}, v{va}, {R(rWS)}, {soff} offen sc1
    s_waitcnt vmcnt(0)
    v_cmp_gt_u32 vcc, {need}, v{vd}
    s_cbranch_vccz {ok}
    s_sleep 2""")
    spin_fail(e, top, ok)
    e(f"{ok}:\ns_mov_b64 exec, -1")


def load_weights(e, hooks, FL):
    NG = FL + 1
    vG, vTR = vTMP, vTMP + 1
    sL, sST = sM0, sOUT
    e(f"""v_lshrrev_b32 v{vT0}, 4, v0
    v_lshlrev_b32 v{vT1}, 2, v{vT0}
    v_xor_b32 v{vT1}, v{vT1}, v0
    v_and_b32 v{vT1}, 15, v{vT1}
    v_lshlrev_b32 v{vG}, {sU2}, v{vT0}
    v_lshl_add_u32 v{vG}, v{vT1}, 4, v{vG}
    s_mul_i32 {sL}, {sWAVE}, 40960
    v_bfe_u32 v{vT1}, v0, 2, 2
    v_lshl_add_u32 v{vT0}, v{vT0}, 3, v{vT1}
    v_lshl_add_u32 v{vT0}, v{vT0}, 8, {sL}
    s_cmp_eq_u32 {sROLE}, 1
    s_cselect_b32 {sST}, 3, 5
    s_cselect_b32 {sU0}, 32, 8
    s_cmp_eq_u32 {sROLE}, 3
    s_cselect_b32 {sST}, 4, {sST}
    s_cselect_b32 {sU0}, 32, {sU0}
    s_cselect_b32 {sG}, 3, 4
    s_cselect_b32 {sPRE}, {sA}, {sWAVE}
    s_cselect_b32 {sXK}, {sWAVE}, 0
    s_and_b32 {sXK}, {sXK}, 1
    s_lshl_b32 {sXK}, {sXK}, 5
    v_xor_b32 v{vT1}, {sPRE}, v{vT1}
    v_add_u32 v{vT0}, {sXK}, v{vT0}
    v_and_b32 v{vPK}, 1, v0
    v_lshl_add_u32 v{vT0}, v{vPK}, {sG}, v{vT0}
    v_bfe_u32 v{vPK}, v0, 1, 1
    v_lshl_add_u32 v{vT0}, v{vPK}, {sST}, v{vT0}""")
    for j in range(4):
        e(f"""v_xor_b32 v{vPK}, {j}, v{vT1}
        v_lshl_add_u32 v{vTR + 2 * j}, v{vPK}, 6, v{vT0}
        v_xor_b32 v{vTR + 2 * j + 1}, {sU0}, v{vTR + 2 * j}""")
    e(f"""s_lshl_b32 {sST}, {sWAVE}, 8
    s_lshl_b32 {sST}, {sST}, {sU2}
    s_add_u32 {sU1}, {sU1}, {sST}
    s_lshl_b32 {sST}, 4, {sU2}""")

    def issue(n):
        for i in range(4):
            e(f"""s_add_u32 m0, {sL}, {(n % (2 * NG)) * 4096 + i * 1024}
            buffer_load_dwordx4 v{vG}, {R(rB1)}, {sU1} offen nt lds
            s_add_u32 {sU1}, {sU1}, {sST}""")

    H = XP.get("wfh", 2)
    for n in range(H):
        issue(n)
    for n in range(16):
        e(f"s_waitcnt vmcnt({(min(16, n + H) - n - 1) * 4})")
        if n + H < 16:
            issue(n + H)
        if n in hooks:
            hooks[n]()
        if n & 1:
            kk = n >> 1
            for t in range(8):
                for q in range(2):
                    e(f"ds_read_b64_tr_b16 {ar((kk * 8 + t) * 4 + 2 * q, 2)}, v{vTR + t} offset:{(kk % NG) * 8192 + q * 1024}")
                if t == 3:
                    e("s_waitcnt lgkmcnt(0)")
            e("s_waitcnt lgkmcnt(0)")


def lane_setup(e):
    e(f"""v_and_b32 v{vT0}, 15, v0
    v_lshrrev_b32 v{vT1}, 4, v0
    v_lshlrev_b32 v{vST}, 4, v{vT0}
    v_lshl_add_u32 v{vST}, v{vT1}, 9, v{vST}
    v_and_b32 v{vXA}, 8, v0
    s_cmp_eq_u32 {sROLE}, 1
    s_cselect_b32 {sU0}, 16, 0
    v_mul_u32_u24 v{vXA}, {sU0}, v{vXA}
    s_lshl_b32 {sU0}, {sWAVE}, 14
    v_add3_u32 v{vXA}, v{vXA}, v{vST}, {sU0}
    s_mul_i32 {sU0}, {sWAVE}, 12288
    v_add_u32 v{vXR}, {sU0}, v{vLIN}""")
    for j in (1, 2, 3):
        e(f"""s_xor_b32 {sU0}, {sWAVE}, {j}
        s_mul_i32 {sU0}, {sU0}, 12288
        s_add_u32 {sU0}, {sU0}, {(j - 1) * 4096}
        v_add_u32 v{vXW + j - 1}, {sU0}, v{vLIN}""")


def x_transform(e, rnd):
    vD, vR = vTMP, vTMP + 1
    srd(e, rB2, pX, 4 * MB)
    e(f"""s_add_u32 {sU1}, {sHL}, {8 * rnd}
    s_lshl_b32 {sU1}, {sU1}, 2
    s_add_u32 {sU1}, {sU1}, {sA}
    s_lshl_b32 {sU1}, {sU1}, 16
    v_lshrrev_b32 v{vT0}, 3, v0
    s_lshl_b32 {sU0}, {sWAVE}, 3
    v_add_u32 v{vT0}, {sU0}, v{vT0}
    v_bfe_u32 v{vT1}, v{vT0}, 1, 3
    v_and_b32 v{vD}, 7, v0
    v_xor_b32 v{vD}, v{vD}, v{vT1}
    v_lshlrev_b32 v{vD}, 4, v{vD}
    v_lshl_add_u32 v{vD}, v{vT0}, 11, v{vD}
    s_lshl_b32 {sU2}, {sWAVE}, 10""")
    for ln in range(16):
        e(f"""s_add_u32 m0, {sU2}, {ln * (4096 - 128)}
        buffer_load_dwordx4 v{vD}, {R(rB2)}, {sU1} offen offset:{ln * 128} nt lds""")
    e(f"""v_and_b32 v{vT0}, 31, v0
    s_lshl_b32 {sU0}, {sWAVE}, 14
    v_lshl_add_u32 v{vPK}, v{vT0}, 7, {sU0}
    v_bfe_u32 v{vT1}, v{vT0}, 1, 3
    v_lshrrev_b32 v{vT0}, 5, v0
    s_add_u32 {sU1}, {sU1}, {sU0}""")
    for j in range(4):
        e(f"""v_add_u32 v{vPK + 1}, {2 * j}, v{vT0}
        v_xor_b32 v{vPK + 1}, v{vPK + 1}, v{vT1}
        v_lshl_add_u32 v{vR + j}, v{vPK + 1}, 4, v{vPK}""")
    e("s_waitcnt vmcnt(0)\ns_barrier")
    for h in range(2):
        for n in range(8 * h, 8 * h + 8):
            e(f"ds_read_b128 {vr(vX + 4 * n)}, v{vR + (n & 3)} offset:{(n >> 2) * 4096}")
        for n in range(8 * h, 8 * h + 8):
            if n % 4 == 0:
                e(f"s_add_u32 {sU2}, {sU1}, {XF + 1024 * n}")
            e(f"""s_waitcnt lgkmcnt({7 - (n & 7)})
            buffer_store_dwordx4 {vr(vX + 4 * n)}, v{vLIN}, {R(rWS)}, {sU2} offen offset:{1024 * (n & 3)} sc1""")


def x_touch(e, mode, ahead):
    e(f"s_add_u32 {sU1}, {sXO}, {ahead * 0x10000}")
    n = 2 if mode == "Q" else 1
    for i in range(n):
        e(f"buffer_load_dwordx4 {vr(vDUM)}, v{vTCH}, {R(rWS)}, {sU1} offen offset:{1024 * i} sc1")
    return n


def in_load(mode, kk, rt):
    d = vr(vX + 4 * (2 * kk + rt))
    pre = f"s_add_u32 {sXK}, {sXO}, {kk * 2048}\n" if rt == 0 and kk % 2 == 0 else ""
    off = (kk & 1) * 2048 + rt * (128 if mode == "V" else 256)
    if mode == "O":
        return pre + f"buffer_load_dwordx4 {d}, v{(vXA, vXB)[rt]}, {R(rWS)}, {sXK} offen offset:{(kk & 1) * 2048} sc1"
    return pre + f"buffer_load_dwordx4 {d}, v{vXA}, {R(rWS)}, {sXK} offen offset:{off} sc1"


def tile(acc, j, t, rt, mode="K"):
    if mode == "O":
        return acc + ((rt * 2 + t) * 4 + j) * 4
    return acc + ((j * 2 + rt) * 2 + t) * 4


def retire_ops(mode, acc, xb, qaddr=None, again=False):
    ops = []
    for j in (1, 2, 3):
        for i in range(4):
            ops.append(("ds", f"ds_write_b128 v{vXW + j - 1}, {vr(acc + 16 * j + 4 * i)} offset:{xb + 1024 * i}"))
    ops.append(("bar", "s_waitcnt lgkmcnt(0)\ns_barrier"))
    for j in (1, 2, 3):
        for i in range(4):
            ops.append(("ds", f"ds_read_b128 {vr(acc + 16 * j + 4 * i)}, v{vXR} offset:{xb + 4096 * (j - 1) + 1024 * i}"))
    for j in (1, 2, 3):
        ops.append(("w", f"s_waitcnt lgkmcnt({4 * (3 - j)})"))
        if j == 3 and again:
            ops.append(("bar", "s_barrier"))
        for i in range(16):
            ops.append(("v", f"v_add_f32 v{acc + i}, v{acc + i}, v{acc + 16 * j + i}"))
    if mode == "O":
        return ops
    for u in range(2):
        src = [tile(acc, 0, u, 0), tile(acc, 0, u, 1)] if mode == "V" else [tile(acc, 0, 0, u), tile(acc, 0, 1, u)]
        for i in range(4):
            r = src[i >> 1] + 2 * (i & 1)
            if mode == "Q":
                ops.append(("v", f"v_mul_f32 v{r}, {hex(f2u(QSCALE))}, v{r}"))
                ops.append(("v", f"v_mul_f32 v{r + 1}, {hex(f2u(QSCALE))}, v{r + 1}"))
            ops.append(("v", f"v_cvt_pk_bf16_f32 v{vPK + 4 * u + i}, v{r}, v{r + 1}"))
        if mode == "Q":
            ops.append(("ds", f"ds_write_b128 v{qaddr[0]}, {vr(vPK + 4 * u)} offset:{qaddr[1] + 256 * u}"))
        else:
            ops.append(("vm", f"buffer_store_dwordx4 {vr(vPK + 4 * u)}, v{vST}, {R(rWS)}, {sOUT} offen offset:{256 * u} sc1"))
    if mode == "K":
        ops += [("v", f"s_add_u32 {sPXS}, {sPXS}, 0x40000"), ("v", f"s_and_b32 {sU0}, {sPXS}, 0x200000"),
                ("v", f"s_lshr_b32 {sU0}, {sU0}, 8"), ("v", f"s_xor_b32 {sU0}, {sU0}, {sPXS}"),
                ("vm", f"buffer_store_dwordx4 {vr(vTMP)}, v{vLIN}, {R(rWS)}, {sU0} offen sc1")]
    return ops


class VM:
    def __init__(self, e, hist):
        self.e, self.q = e, list(hist)

    def add(self, tag, n=1):
        self.q += [tag] * n

    def wait(self, tag):
        if tag in self.q:
            left = self.q[::-1].index(tag)
            self.e(f"s_waitcnt vmcnt({min(left, 63)})")
            self.q = self.q[len(self.q) - left:]

    def aged(self):
        return [t[1] if isinstance(t, tuple) else ("old_" + t if isinstance(t, str) and not t.startswith("old_") else "old_")
                for t in self.q]


PRIMED = [kk for kk in range(8) for _ in range(2)]


def segment(e, mode, b, retire, hist, reload=True, hooks=None, refill=None):
    acc = vACC[b]
    todo = list(retire)
    vm = VM(e, hist)
    cool = 0
    n = 0
    for kk in range(8):
        if XP.get("wpk") == mode and reload:
            wp(e, XP, 2 + kk)
        vm.wait(kk)
        for j in range(4):
            order = ((0, 0), (1, 0), (1, 1), (0, 1))
            for t, rt in order:
                d = vr(tile(acc, j, t, rt, mode))
                w, x = ar((kk * 8 + 2 * j + t) * 4), vr(vX + 4 * (2 * kk + rt))
                a_, b_ = (x, w) if mode == "V" else (w, x)
                e(f"v_mfma_f32_16x16x32_bf16 {d}, {a_}, {b_}, {d if kk else 0}")
                i = n % 16
                if reload and kk and i in (0, 2):
                    assert not (hooks and n in hooks)
                    e(in_load(mode, kk - 1, i >> 1))
                    vm.add(("n", kk - 1))
                elif refill and kk and i in (0, 2) and 2 * (kk - 1) + (i >> 1) in refill:
                    refill[2 * (kk - 1) + (i >> 1)](vm)
                elif hooks and n in hooks:
                    hooks[n](vm)
                elif todo and n >= 2:
                    if cool:
                        cool -= 1
                    else:
                        for _ in range(2):
                            kind, txt = todo.pop(0)
                            if kind == "vw":
                                vm.wait(txt)
                            else:
                                e(txt)
                            if kind == "vm":
                                vm.add("st")
                            if txt.startswith("ds_write"):
                                cool = 2
                            if kind != "v" or not todo or todo[0][0] != "v":
                                break
                n += 1
    assert not todo, len(todo)
    if reload:
        e(in_load(mode, 7, 0))
        e(in_load(mode, 7, 1))
        vm.add(("n", 7), 2)
    return vm


def steady(fn):
    h = fn(Asm(), PRIMED)
    h2 = fn(Asm(), h)
    assert fn(Asm(), h2) == h2
    return h2


def prime(e, mode):
    for kk in range(8):
        for rt in range(2):
            e(in_load(mode, kk, rt))


def flush(e, ops):
    for kind, txt in ops:
        e(txt)


def role_kv(e, mode, opt):
    e(f"""Lw_{mode}:
    s_lshl_b32 {sOUT}, {sH}, 2
    s_add_u32 {sOUT}, {sOUT}, {sWAVE}
    s_lshl_b32 {sOUT}, {sOUT}, 11
    s_add_u32 {sOUT}, {sOUT}, {KX if mode == 'K' else VX}""")
    prime(e, mode)
    e(f"s_add_u32 {sXO}, {sXO}, 0x10000")
    if mode == "K":
        for i in range(4):
            e(f"v_mov_b32 v{vTMP + i}, -1")
        e(f"""s_lshl_b32 {sU0}, {sHL}, 1
        s_lshr_b32 {sU1}, {sWAVE}, 1
        s_add_u32 {sU0}, {sU0}, {sU1}
        s_lshl_b32 {sPXS}, {sU0}, 14
        s_and_b32 {sU0}, {sWAVE}, 1
        s_lshl_b32 {sU0}, {sU0}, 12
        s_add_u32 {sPXS}, {sPXS}, {sU0}
        s_lshl_b32 {sU0}, {sA}, 10
        s_add_u32 {sPXS}, {sPXS}, {sU0}
        s_add_u32 {sPXS}, {sPXS}, {PXF}""")

    def adv(out):
        e(f"s_add_u32 {sSEG}, {sSEG}, 1\ns_add_u32 {sXO}, {sXO}, 0x10000")
        if out:
            e(f"s_add_u32 {sOUT}, {sOUT}, 0x40000")

    FIRST = 2

    def seg(e, b, hist, full):
        def flag(vm):
            vm.wait("old_st")
            e(f"s_sub_u32 {sU0}, {sSEG}, 1\ns_max_u32 {sU0}, {sU0}, {FIRST}")
            store_word(e, sU0, sFL, "sc1")
            vm.add("flag")
        hooks = {117: lambda vm: vm.add("t", x_touch(e, mode, AHEAD - 1))}
        if full:
            hooks[53] = flag
        ops = retire_ops(mode, vACC[1 - b], (1 - b) * XBUF) if full else []
        return segment(e, mode, b, ops, hist, hooks=hooks).aged()

    for i in range(FIRST):
        seg(e, i & 1, PRIMED if i == 0 else [], False)
        if i == 0 and mode == "K":
            wait_news(e, B_VOTE, vT0, vT1, sSEL)
            e(f"s_lshl_b32 {sU0}, {sSEL}, 13\ns_add_u32 {sPXS}, {sPXS}, {sU0}")
        flush(e, retire_ops(mode, vACC[i & 1], (i & 1) * XBUF))
        e("s_waitcnt vmcnt(0)")
        store_word(e, i + 1, sFL, "sc1")
        tl(e, opt, 10 + i)
        adv(True)
    seg(e, 0, [], False)
    adv(False)
    hist = steady(lambda a, h: seg(a, 0, h, True))
    e(f"s_waitcnt vmcnt(0)\nLw_{mode}loop:\ns_cmp_eq_u32 {sSEG}, 27\ns_cbranch_scc0 Lw_{mode}xf")
    wait_news(e, B_XF2, vT0, vT1)
    e(f"Lw_{mode}xf:")
    seg(e, 1, hist, True)
    adv(True)
    e(f"s_cmp_eq_u32 {sSEG}, {NSEG}\ns_cbranch_scc1 Lw_{mode}end")
    seg(e, 0, hist, True)
    adv(True)
    e(f"s_branch Lw_{mode}loop\nLw_{mode}end:")
    flush(e, retire_ops(mode, vACC[1], XBUF))
    e("s_waitcnt vmcnt(0)")
    store_word(e, NSEG, sFL, "sc1")
    e("s_waitcnt vmcnt(0) lgkmcnt(0)\ns_branch L_ssm")


QB, VB, MBUF = XBUF, XBUF + 65536, XBUF + 98304
vKA, vVA, vFA, vQW, vQ3, vQR, vVR, vFC, vMX, vSUM = 232, 233, 234, 235, 236, 237, 238, 239, 240, 242
sAS, sNEED, sKV, sFQ, sKMA, sGOT = "s74", "s75", "s76", "s77", "s78", "s79"
vK, vQ = vX, vX + 32


def att_setup(e):
    ok = e.lab("kvok")
    e(f"""s_add_u32 {sAS}, {sAS}, 4
    s_add_u32 {sNEED}, {sAS}, 1
    s_lshl_b32 {sOUT}, {sAS}, 18
    s_and_b32 {sU0}, {sAS}, 8
    s_lshl_b32 {sU0}, {sU0}, 10
    s_xor_b32 {sKMA}, {sM0}, {sU0}
    s_add_u32 {sKMA}, {sKMA}, {sOUT}
    s_lshl_b32 {sU0}, {sH}, 13
    s_add_u32 {sOUT}, {sOUT}, {sU0}
    s_cmp_ge_u32 {sKV}, {sNEED}
    s_cbranch_scc1 {ok}""")
    wait_words(e, vFA, sFQ, 8, sNEED)
    e(f"v_readlane_b32 {sKV}, v{vT1}, 0")
    for i in range(1, 8):
        e(f"v_readlane_b32 {sU0}, v{vT1}, {i}\ns_min_u32 {sKV}, {sKV}, {sU0}")
    e(f"{ok}:")


def att_fetch_v(e, j):
    e(f"""s_lshl_b32 {sU0}, {sWAVE}, 13
    s_add_u32 m0, {sU0}, {VB + (j >> 2) * 4096}
    s_add_u32 {sU0}, {sOUT}, {VX + (j >> 2) * 4096}
    buffer_load_dwordx4 v{vLIN}, {R(rWS)}, {sU0} offen offset:{1024 * (j & 3)} sc1 lds""")
    return 1


def att_fetch_k(e, j):
    if j % 4 == 0:
        e(f"s_add_u32 {sXK}, {sOUT}, {KX + j * 1024}")
    e(f"buffer_load_dwordx4 {vr(vK + 4 * j)}, v{vLIN}, {R(rWS)}, {sXK} offen offset:{1024 * (j & 3)} sc1")
    return 1


def att_peek(e):
    e(f"""s_add_u32 {sU0}, {sFQ}, {FCO}
    s_mov_b64 exec, 0xf
    buffer_load_dword v{vFC}, v{vLIN}, {R(rWS)}, {sU0} offen sc1
    s_mov_b64 exec, -1""")
    return 1


def att_fetch_m(e):
    e(f"s_lshl_b32 {sU0}, {sWAVE}, 12\ns_add_u32 m0, {sU0}, {MBUF}")
    for g in range(4):
        e(f"buffer_load_dwordx4 v{vLIN}, {R(rWS)}, {sKMA} offen offset:{1024 * g} sc1 lds")


def att_try(e, vm):
    sk = e.lab("notry")
    vm.wait("peek")
    e(f"""s_mov_b64 exec, 0xf
    v_cmp_gt_u32 vcc, {sNEED}, v{vFC}
    s_mov_b64 exec, -1
    s_mov_b32 {sGOT}, 0
    s_cbranch_vccnz {sk}
    s_mov_b32 {sGOT}, 1""")
    att_fetch_m(e)
    e(f"{sk}:")


def attention(e, opt):
    vS, vSM, vKM, vP, vPM = 208, 80, 96, 244, 252
    vVF = [80, 92]
    vO = [104, 120]
    neg = f2u(-999292928.0 * math.log2(math.e))
    got = e.lab("gotm")
    for i in range(8):
        e(f"ds_read_b128 {vr(vQ + 4 * i)}, v{vQR} offset:{1024 * i}")
    e("s_waitcnt vmcnt(0)")
    for i in range(8):
        e(f"s_waitcnt lgkmcnt({7 - i})")
        mf32(e, vS, vr(vK + 4 * i), vr(vQ + 4 * i), vS if i else None)
    e(f"""s_cmp_eq_u32 {sGOT}, 1
    s_cbranch_scc1 {got}
    s_add_u32 {sU2}, {sFQ}, {FCO}""")
    wait_words(e, vLIN, sU2, 4, sNEED)
    att_fetch_m(e)
    e(f"s_waitcnt vmcnt(0)\n{got}:")
    wp(e, opt, 5)
    for i in range(8):
        e(f"ds_read_b128 {vr(vKM + 4 * i)}, v{vKA} offset:{512 * i}")
    side = [f"v_mov_b32 v{vMX}, {hex(neg)}"]
    side += [f"v_cndmask_b32 v{vS + i}, v{vMX}, v{vS + i}, {sr(MASK0 + 2 * i)}" for i in range(16)]
    side += [f"v_max3_f32 v{vMX}, v{vS}, v{vS + 1}, v{vS + 2}"]
    side += [f"v_max3_f32 v{vMX}, v{vMX}, v{vS + i}, v{vS + i + 1}" for i in range(3, 15, 2)]
    side += [f"v_max_f32 v{vMX}, v{vMX}, v{vS + 15}"]
    for i in range(8):
        e(f"s_waitcnt lgkmcnt({7 - i})")
        mf32(e, vSM, vr(vKM + 4 * i), vr(vQ + 4 * i), vSM if i else None)
        e(in_load("Q", i >> 1, i & 1))
        e("\n".join(side[:3]))
        del side[:3]
    e("\n".join(side))
    back = [in_load("Q", i >> 1, i & 1) for i in range(8, 16)]
    e(f"""{back.pop(0)}
    {back.pop(0)}
    v_max3_f32 v{vMX}, v{vMX}, v{vSM}, v{vSM + 1}
    v_max3_f32 v{vMX}, v{vMX}, v{vSM + 2}, v{vSM + 3}
    v_mov_b32 v{vSUM}, v{vMX}
    v_permlane32_swap_b32 v{vMX}, v{vSUM}
    v_max_f32 v{vMX}, v{vMX}, v{vSUM}""")
    vals = [vS + i for i in range(0, 16, 2)] + [vPK, vPK + 2]
    srcs = vals[:8] + [vSM, vSM + 2]
    for r, q in zip(vals, srcs):
        e(f"v_pk_add_f32 {vr(r, 2)}, {vr(q, 2)}, {vr(vMX, 2)} op_sel_hi:[1,0] neg_lo:[0,1] neg_hi:[0,1]")

    def v_reads(g):
        d = vVF[g & 1]
        e(f"""ds_read_b128 {vr(d)}, v{vVR} offset:{2048 * g}
        ds_read_b128 {vr(d + 4)}, v{vVR} offset:{2048 * g + 1024}
        ds_read_b32 v{d + 8}, v{vVA} offset:{1024 * g}
        ds_read_b32 v{d + 9}, v{vVA} offset:{1024 * g + 256}""")

    v_reads(0)
    v_reads(1)
    e(f"""v_mov_b64 {vr(vVF[0] + 10, 2)}, 0
    v_mov_b64 {vr(vVF[1] + 10, 2)}, 0
    v_mov_b64 {vr(vPM + 2, 2)}, 0""")
    for k, r in enumerate(vals):
        e(f"v_exp_f32 v{r}, v{r}\nv_exp_f32 v{r + 1}, v{r + 1}")
        if back and k:
            e(back.pop(0))
        if k == 2:
            e(f"v_pk_add_f32 {vr(vSUM, 2)}, {vr(vals[0], 2)}, {vr(vals[1], 2)}")
        elif k > 2:
            e(f"v_pk_add_f32 {vr(vSUM, 2)}, {vr(vSUM, 2)}, {vr(vals[k - 1], 2)}")
    e(f"""v_pk_add_f32 {vr(vSUM, 2)}, {vr(vSUM, 2)}, {vr(vals[9], 2)}
    v_add_f32 v{vSUM}, v{vSUM}, v{vSUM + 1}
    v_mov_b32 v{vSUM + 1}, v{vSUM}
    v_permlane32_swap_b32 v{vSUM}, v{vSUM + 1}
    v_add_f32 v{vSUM}, v{vSUM}, v{vSUM + 1}
    v_rcp_f32 v{vSUM}, v{vSUM}""")
    for k, r in enumerate(vals):
        e(f"""v_pk_mul_f32 {vr(r, 2)}, {vr(r, 2)}, {vr(vSUM, 2)} op_sel_hi:[1,0]
        v_cvt_pk_bf16_f32 v{vP + k}, v{r}, v{r + 1}""")
    wp(e, opt, 6)

    def out_ops(g):
        ops = [f"s_add_u32 {sU0}, {sOUT}, {OX + g * 2048}"]
        for f in range(2):
            d = vS + 8 * (g & 1) + 4 * f
            ops += [f"v_cvt_pk_bf16_f32 v{d + i}, v{vO[g & 1] + 8 * f + 2 * i}, v{vO[g & 1] + 8 * f + 2 * i + 1}" for i in range(4)]
            ops.append(f"buffer_store_dwordx4 {vr(d)}, v{vLIN}, {R(rWS)}, {sU0} offen offset:{f * 1024}")
        return ops

    for g in range(4):
        d = vVF[g & 1]
        e(f"s_waitcnt lgkmcnt({4 if g < 3 else 0})")
        side = out_ops(g - 1) if g else []
        for k, p in enumerate((vP, vP + 4, vPM)):
            mf32(e, vO[g & 1], vr(d + 4 * k), vr(p), vO[g & 1] if k else None)
            if k:
                e("\n".join(side[:6]))
                del side[:6]
        if g + 2 < 4:
            v_reads(g + 2)
    e("\n".join(out_ops(3)))
    wp(e, opt, 7)


def role_q(e, opt):
    e(f"""Lw_Q:
    s_lshl_b32 {sU0}, {sWAVE}, 11
    s_add_u32 {sU0}, {sU0}, {QB}
    v_add_u32 v{vQW}, {sU0}, v{vST}
    v_add_u32 v{vQ3}, 32768, v{vQW}
    s_lshl_b32 {sU0}, {sWAVE}, 13
    s_add_u32 {sU0}, {sU0}, {QB + 32768}
    v_add_u32 v{vQR}, {sU0}, v{vLIN}
    v_add_u32 v{vVR}, {VB - QB - 32768}, v{vQR}
    v_lshrrev_b32 v{vT0}, 5, v0
    v_and_b32 v{vT1}, 7, v0
    v_lshlrev_b32 v{vT1}, 4, v{vT1}
    v_lshl_add_u32 v{vKA}, v{vT0}, 8, v{vT1}
    s_lshl_b32 {sU0}, {sWAVE}, 12
    s_add_u32 {sU0}, {sU0}, {MBUF}
    v_add_u32 v{vKA}, 128, v{vKA}
    v_add_u32 v{vKA}, {sU0}, v{vKA}
    v_lshl_add_u32 v{vVA}, v{vT0}, 9, v{vT1}
    v_add_u32 v{vVA}, {sU0}, v{vVA}
    v_bfe_u32 v{vT1}, v0, 3, 2
    v_lshl_add_u32 v{vVA}, v{vT1}, 2, v{vVA}
    v_bfe_u32 v{vT1}, v0, 1, 2
    v_and_b32 v{vFA}, 1, v0
    v_lshlrev_b32 v{vFA}, 2, v{vFA}
    v_lshl_add_u32 v{vFA}, v{vT1}, 4, v{vFA}
    v_and_b32 v{vT1}, 31, v0
    v_lshlrev_b32 v{vT0}, 2, v{vT0}
    v_sub_u32 v{vT1}, v{vT1}, v{vT0}""")
    prime(e, "Q")
    for i in range(16):
        e(f"v_cmp_le_i32 {sr(MASK0 + 2 * i)}, {8 * (i >> 2) + (i & 3)}, v{vT1}")
    e(f"""s_add_u32 {sXO}, {sXO}, 0x10000
    s_lshl_b32 {sFQ}, {sH}, 7
    s_add_u32 {sFQ}, {sFQ}, {FLG}
    s_sub_u32 {sAS}, {sWAVE}, 4
    s_mov_b32 {sKV}, 0
    s_mov_b32 {sG}, -1
    s_mov_b32 {sPRE}, 32768
    s_mov_b32 {sNEED}, -1
    s_mov_b32 {sKMA}, 0
    s_mov_b32 {sOUT}, {WS_BYTES}
    s_waitcnt vmcnt(0)
    s_branch Lw_Qproj
    Lw_Qloop:""")
    att_setup(e)
    wp(e, opt, 0)
    last = retire_ops("Q", vACC[1], 0, (vQ3, 3 * 8192), again=True)
    e(f"s_cmp_eq_u32 {sG}, 15\ns_cbranch_scc0 Lw_Qproj\ns_waitcnt vmcnt(0)")
    store_word(e, sG, sFL, "")
    for j in range(8):
        att_fetch_k(e, j)
    for j in range(8):
        att_fetch_v(e, j)
    flush(e, last)
    e(f"s_mov_b32 {sGOT}, 0\ns_waitcnt lgkmcnt(0)\ns_barrier\ns_branch Lw_Qatt\nLw_Qproj:")

    def flag(vm):
        vm.wait("old_st")
        e(f"s_max_i32 {sU0}, {sG}, 0")
        store_word(e, sU0, sFL, "")
        vm.add("flag")

    hist = PRIMED + ["old_st"] * 8
    for i in range(4):
        hooks = {(117 if i < 3 else 5): lambda vm: vm.add("t", x_touch(e, "Q", AHEAD - 1))}
        refill = None
        if i == 0:
            hooks[21] = flag
        if i in (1, 2):
            hooks.update({13 + 24 * j: (lambda vm, j=4 * (i - 1) + j: vm.add("v", att_fetch_v(e, j))) for j in range(4)})
        if i == 3:
            hooks[7] = lambda vm: vm.add("peek", att_peek(e))
            hooks[69] = lambda vm: att_try(e, vm)
            refill = {j: (lambda vm, j=j: vm.add("k", att_fetch_k(e, j))) for j in range(8)}
        ops = retire_ops("Q", vACC[1 - (i & 1)], 0, (vQW, (i - 1) * 8192), again=True) if i else last
        hist = segment(e, "Q", i & 1, ops, hist, reload=i < 3, hooks=hooks, refill=refill).aged()
        if i < 3:
            e(f"s_add_u32 {sXO}, {sXO}, 0x10000")
        wp(e, opt, 1 + i)
    e(f"s_cmp_eq_u32 {sG}, -1\ns_cbranch_scc0 Lw_Qatt")
    wait_news(e, B_CHAIN | B_WORK | B_VOTE | B_XF2, vT0, vT1, sSEL)
    prime(e, "Q")
    e(f"""s_lshr_b32 {sM0}, {sH}, 1
    s_lshl_b32 {sM0}, {sM0}, 1
    s_add_u32 {sM0}, {sM0}, {sSEL}
    s_lshl_b32 {sM0}, {sM0}, 1
    s_and_b32 {sU0}, {sH}, 1
    s_add_u32 {sM0}, {sM0}, {sU0}
    s_lshl_b32 {sM0}, {sM0}, 12
    s_add_u32 {sM0}, {sM0}, {KM}
    s_waitcnt vmcnt(0)
    s_branch Lw_Qnext
    Lw_Qatt:""")
    attention(e, opt)
    e(f"""s_cmp_eq_u32 {sG}, 15
    s_cbranch_scc0 Lw_Qnext
    s_waitcnt vmcnt(0)""")
    store_word(e, 16, sFL, "")
    e(f"""s_branch Lw_end
    Lw_Qnext:
    v_swap_b32 v{vQW}, v{vQ3}
    v_subrev_u32 v{vQR}, {sPRE}, v{vQR}
    s_sub_u32 {sPRE}, 0, {sPRE}
    s_add_u32 {sG}, {sG}, 1
    s_add_u32 {sXO}, {sXO}, 0x10000""")
    wp(e, opt, 8)
    e("s_branch Lw_Qloop")


def role_o(e, opt):
    LAG = opt.get("olag", 7)
    DEP = LAG // 2
    vSV = [[208 + 4 * (2 * i + b) for i in range(DEP)] for b in range(2)]
    vPT, vPS, vPL = 232, 244, 247
    vOA, vFA, vPKO, vF1, vF2 = 250, 11, 14, 12, 13
    sFO, sFP, sOP, sRD, sPA = "s74", "s75", "s76", "s77", "s78"
    srd(e, rB2, pOUT, 8 * MB)
    e(f"""v_lshlrev_b32 v{vFA}, 2, v0
    s_lshr_b32 {sU0}, {sWAVE}, 1
    s_lshl_b32 {sU1}, {sU0}, 8
    v_add_u32 v{vXA}, {sU1}, v{vXA}
    v_xor_b32 v{vXB}, 0x100, v{vXA}
    v_and_b32 v{vT0}, 15, v0
    v_lshrrev_b32 v{vT1}, 4, v0
    v_lshlrev_b32 v{vT1}, 3, v{vT1}
    v_lshl_add_u32 v{vOA}, v{vT0}, 12, v{vT1}
    s_lshl_b32 {sOUT}, {sU0}, 16
    s_lshl_b32 {sU0}, {sHL}, 2
    s_add_u32 {sU1}, {sU0}, {sA}
    s_lshl_b32 {sU1}, {sU1}, 1
    s_and_b32 {sU2}, {sWAVE}, 1
    s_add_u32 {sU1}, {sU1}, {sU2}
    s_lshl_b32 {sU1}, {sU1}, 5
    s_add_u32 {sOUT}, {sOUT}, {sU1}
    s_lshl_b32 {sFO}, {sA}, 9
    s_add_u32 {sFO}, {sFO}, {FO}
    s_add_u32 {sU0}, {sU0}, {sWAVE}
    s_lshl_b32 {sFP}, {sU0}, 7
    s_add_u32 {sFP}, {sFP}, {FP}
    s_lshl_b32 {sOP}, {sU0}, 15
    s_xor_b32 {sU0}, {sSEL}, 1
    s_lshl_b32 {sU0}, {sU0}, 13
    s_add_u32 {sOP}, {sOP}, {sU0}
    s_add_u32 {sOP}, {sOP}, {OP}
    s_lshl_b32 {sXO}, {sA}, 16
    s_add_u32 {sXO}, {sXO}, {OX}""")
    for k in (1, 2, 3):
        for dst, dest, src in ((vPS, sU2, sA), (vPL, sA, sU2)):
            e(f"""s_xor_b32 {sU2}, {sA}, {k}
            s_and_b32 {sU0}, {dest}, 2
            s_add_u32 {sU0}, {sU0}, {dest}
            s_lshl_b32 {sU0}, {sU0}, 2
            s_add_u32 {sU0}, {sU0}, {src}
            s_lshl_b32 {sU0}, {sU0}, 10
            v_add_u32 v{dst + k - 1}, {sU0}, v{vLIN}""")

    def flag_addr(e, seg):
        e(f"""s_and_b32 {sU0}, {seg}, 3
        s_lshl_b32 {sU0}, {sU0}, 7
        s_add_u32 {sU2}, {sU0}, {sFO}
        s_lshr_b32 {sU1}, {seg}, 2
        s_add_u32 {sU1}, {sU1}, 1""")

    def slot(back):
        return [f"s_sub_u32 {sRD}, {sSEG}, {back}", f"s_and_b32 {sU0}, {sRD}, 2", f"s_lshl_b32 {sU0}, {sU0}, 12",
                f"s_xor_b32 {sU0}, {sU0}, {sOP}", f"s_and_b32 {sPA}, {sRD}, 15", f"s_lshl_b32 {sPA}, {sPA}, 20",
                f"s_add_u32 {sPA}, {sPA}, {sU0}"]

    def send_ops(acc):
        return [("v", l) for l in slot(1)] + \
            [("vm", f"buffer_store_dwordx4 {vr(acc + 4 * k)}, v{vPS + k - 1}, {R(rWS)}, {sPA} offen sc1") for k in (1, 2, 3)]

    def fin_load(e, back, seen, vPT=vPT, check=True):
        ok = e.lab("finok")
        e(f"s_sub_u32 {sU1}, {sSEG}, {back - 1}")
        if seen:
            e(f"""s_mov_b64 exec, 0xf
            v_cmp_gt_i32 vcc, {sU1}, v{vF2}
            s_mov_b64 exec, -1
            s_cbranch_vccz {ok}""")
        if check:
            wait_words(e, vFA, sFP, 4, sU1)
        e(f"{ok}:")
        e("\n".join(slot(back)))
        for k in range(3):
            e(f"buffer_load_dwordx4 {vr(vPT + 4 * k)}, v{vPL + k}, {R(rWS)}, {sPA} offen sc1")
        return 3

    def fin_ops(sv, back, vPT=vPT, vPKO=vPKO):
        ops = [("v", f"v_add_f32 v{sv + i}, v{sv + i}, v{vPT + 4 * k + i}") for k in range(3) for i in range(4)]
        ops += [("v", l) for l in (f"s_sub_u32 {sRD}, {sSEG}, {back}\ns_cselect_b32 {sRD}, 64, {sRD}",
                                   f"s_lshl_b32 {sU0}, {sRD}, 17", f"s_add_u32 {sU0}, {sU0}, {sOUT}")]
        ops += [("v", f"v_cvt_pk_bf16_f32 v{vPKO + i}, v{sv + 2 * i}, v{sv + 2 * i + 1}") for i in range(2)]
        ops.append(("vm", f"buffer_store_dwordx2 {vr(vPKO, 2)}, v{vOA}, {R(rB2)}, {sU0} offen"))
        return ops

    def peek(e, ahead):
        e(f"s_add_u32 {sRD}, {sSEG}, {ahead}")
        flag_addr(e, sRD)
        e(f"""s_mov_b32 {sG}, {sU1}
        s_mov_b64 exec, 0xff
        buffer_load_dword v{vF1}, v{vFA}, {R(rWS)}, {sU2} offen sc1
        buffer_load_dword v{vF2}, v{vFA}, {R(rWS)}, {sFP} offen sc1
        s_mov_b64 exec, -1""")
        return 2

    def seg(e, b, hist, reload):
        old = vACC[1 - b]

        def flag(vm):
            vm.wait("old_st")
            e(f"s_sub_u32 {sU0}, {sSEG}, 1\ns_max_i32 {sU0}, {sU0}, 0")
            store_word(e, sU0, sFL, "sc1")
            vm.add("flag")
        ops = retire_ops("O", old, (1 - b) * XBUF) + send_ops(old)
        ops += [("vw", "part")] + fin_ops(vSV[b][-1], LAG)
        chain = [old] + vSV[b]
        for d in range(DEP, 0, -1):
            ops += [("v", f"v_mov_b64 {vr(chain[d] + i, 2)}, {vr(chain[d - 1] + i, 2)}") for i in (0, 2)]
        hooks = {4: lambda vm: vm.add("part", fin_load(e, LAG, True)), 45: lambda vm: vm.add("peek", peek(e, 2)), 69: flag}
        vm = segment(e, "O", b, ops, hist, reload=reload, hooks=hooks)
        vm.wait("peek")
        return vm.aged()

    hist = steady(lambda a, h: seg(a, 0, h, True))
    assert seg(Asm(), 0, PRIMED, True) == hist

    def body(b):
        have, nxt = e.lab("have"), e.lab("nxt")
        e(f"s_cmp_eq_u32 {sPRE}, 1\ns_cbranch_scc1 {have}")
        flag_addr(e, sSEG)
        wait_words(e, vFA, sU2, 8, sU1)
        wp(e, opt, 0)
        peek(e, 1)
        prime(e, "O")
        e(f"s_add_u32 {sXO}, {sXO}, 0x40000\ns_waitcnt vmcnt(16)")
        for h in (PRIMED, hist):
            dry = e.lab("dry")
            e(f"""s_mov_b64 exec, 0xff
            v_cmp_gt_u32 vcc, {sG}, v{vF1}
            s_mov_b64 exec, -1
            s_cbranch_vccnz {dry}""")
            seg(e, b, h, True)
            wp(e, opt, 10)
            if opt.get("wp"):
                e("s_add_u32 s95, s95, 64")
            e(f"s_mov_b32 {sPRE}, 1\ns_add_u32 {sXO}, {sXO}, 0x40000\ns_branch {nxt}\n{dry}:")
            seg(e, b, h, False)
            e(f"s_mov_b32 {sPRE}, 0")
            if h is PRIMED:
                e(f"s_branch {nxt}\n{have}:")
        e(f"{nxt}:")
        wp(e, opt, 1)
        e(f"s_add_u32 {sSEG}, {sSEG}, 1")

    e(f"s_mov_b32 {sPRE}, 0\nLw_Oloop:")
    body(0)
    body(1)
    e(f"s_cmp_lt_u32 {sSEG}, {NSEG}\ns_cbranch_scc1 Lw_Oloop")
    tl(e, opt, 4)
    flush(e, retire_ops("O", vACC[1], XBUF) + send_ops(vACC[1]))
    e("s_waitcnt vmcnt(0)")
    store_word(e, NSEG, sFL, "sc1")
    tail = [(1, vACC[1])] + [(back, vSV[1 - back % 2][(back - 2) // 2]) for back in range(2, LAG + 1)]
    for back, sv in tail:
        fin_load(e, back, False, vX + 12 * back, back == 1)
    for back, sv in tail:
        e("s_waitcnt vmcnt(%d)" % (3 * (LAG - back) + back - 1))
        flush(e, fin_ops(sv, back, vX + 12 * back, vPT + 2 * (back % 4)))
    e("s_branch Lw_end")


def worker(e, opt):
    skip = opt.get("skip", "")
    XP.clear()
    XP.update(opt)

    e(f"""L_worker:
    s_lshr_b32 {sROLE}, {sRANK}, 3
    s_and_b32 {sHL}, {sRANK}, 7
    s_lshl_b32 {sH}, {sA}, 3
    s_add_u32 {sH}, {sH}, {sHL}
    v_lshlrev_b32 v{vLIN}, 4, v0
    s_mov_b32 {sSEG}, 0
    s_mov_b32 {sSEL}, 0
    s_mov_b32 {sXO}, {XF}""")
    e(f"""s_lshl_b32 {sFL}, {sH}, 7
    s_lshl_b32 {sU0}, {sWAVE}, 4
    s_add_u32 {sFL}, {sFL}, {sU0}
    s_lshl_b32 {sU0}, {sROLE}, 2
    s_add_u32 {sFL}, {sFL}, {sU0}
    s_add_u32 {sFL}, {sFL}, {FLG}
    s_lshl_b32 {sU0}, {sA}, 2
    s_add_u32 {sU0}, {sU0}, {sWAVE}
    s_lshl_b32 {sU0}, {sU0}, 7
    s_lshl_b32 {sU1}, {sHL}, 2
    s_add_u32 {sU0}, {sU0}, {sU1}
    s_add_u32 {sU0}, {sU0}, {FO}
    s_cmp_eq_u32 {sROLE}, 2
    s_cselect_b32 {sFL}, {sU0}, {sFL}
    s_add_u32 {sU0}, {sU1}, {sWAVE}
    s_lshl_b32 {sU0}, {sU0}, 7
    s_lshl_b32 {sU1}, {sA}, 2
    s_add_u32 {sU0}, {sU0}, {sU1}
    s_add_u32 {sU0}, {sU0}, {FP}
    s_cmp_eq_u32 {sROLE}, 3
    s_cselect_b32 {sFL}, {sU0}, {sFL}
    s_mov_b32 {sU1}, 0""")
    for r, ch in enumerate("KVQO"):
        if ch in skip:
            e(f"s_cmp_eq_u32 {sROLE}, {r}\ns_cbranch_scc1 Lw_noclr")
    store_word(e, sU1, sFL, "sc1")
    e(f"""Lw_noclr:
    s_cmp_eq_u32 {sROLE}, 3
    s_cbranch_scc0 Lw_nopoi""")
    for rnd in range(2):
        sk = e.lab("chore")
        x_transform(e, rnd)
        e(f"s_waitcnt vmcnt(0)\ns_barrier\ns_cmp_eq_u32 {sWAVE}, 0\ns_cbranch_scc0 {sk}")
        tl(e, opt, 8 + 2 * rnd)
        arrive(e, (C_XF1, C_XF2)[rnd], (B_XF1, B_XF2)[rnd], vT0, vT1)
        if rnd == 0:
            arrive(e, C_WORK, B_WORK, vT0, vT1)
            e("s_waitcnt vmcnt(0)")
            probe(e)
            tl(e, opt, 9)
        e(f"{sk}:\ns_barrier")
    e("Lw_nopoi:")
    tl(e, opt, 6)
    lane_setup(e)
    e(f"""s_lshl_b32 {sU0}, {sRANK}, 2
    s_add_u32 {sU0}, {sU0}, {sWAVE}
    s_lshl_b32 {sU0}, {sU0}, 10
    s_lshl_b32 {sU1}, {sU0}, 1
    s_and_b32 {sU1}, {sU1}, 0xffff
    s_cmp_lt_u32 {sROLE}, 2
    s_cselect_b32 {sU0}, {sU0}, {sU1}
    v_add_u32 v{vTCH}, {sU0}, v{vLIN}
    s_cmp_eq_u32 {sROLE}, 0
    s_cselect_b64 s[74:75], {sr(pWK)}, {sr(pWV)}
    s_cmp_eq_u32 {sROLE}, 2
    s_cselect_b64 s[74:75], {sr(pWQ)}, s[74:75]
    s_lshl_b32 {sU1}, {sH}, 8
    s_lshl_b32 {sU0}, {sA}, 21
    s_lshl_b32 {sU2}, {sHL}, 8
    s_add_u32 {sU0}, {sU0}, {sU2}
    s_cmp_eq_u32 {sROLE}, 3
    s_cselect_b64 s[74:75], {sr(pWO)}, s[74:75]
    s_cselect_b32 {sU1}, {sU0}, {sU1}
    s_cselect_b32 {sU2}, 11, 13""")
    srd(e, rB1, 74, 8 * MB)

    def first():
        e(f"""s_cmp_eq_u32 {sROLE}, 3
        s_cbranch_scc1 Lw_nordy
        s_barrier
        s_cmp_eq_u32 {sWAVE}, 0
        s_cbranch_scc0 Lw_nordy""")
        arrive(e, C_WORK, B_WORK, vT0, vT1)
        e("Lw_nordy:")

    def xzero():
        e(f"s_cmp_eq_u32 {sROLE}, 3\ns_cbranch_scc1 Lw_onews")
        tl(e, opt, 8)
        wait_news(e, B_XF1, vT0, vT1)
        tl(e, opt, 9)
        e(f"s_cmp_lt_u32 {sROLE}, 2\ns_cbranch_scc0 Lw_nox")
        for i in range(AHEAD):
            x_touch(e, "K", i)
        e("s_branch Lw_nox\nLw_onews:")
        wait_news(e, B_WORK | B_VOTE, vT0, vT1, sSEL)
        e("Lw_nox:")

    load_weights(e, {0: first, 14: xzero}, 3)
    tl(e, opt, 2)
    e("s_waitcnt vmcnt(0)")
    e("Lw_go:\ns_barrier")
    tl(e, opt, 3)
    wp(e, opt, -1)
    for r, ch in enumerate("KVQO"):
        if ch in skip:
            e(f"s_cmp_eq_u32 {sROLE}, {r}\ns_cbranch_scc1 {'L_ssm' if ch in 'KV' else 'Lw_end'}")
    e(f"""s_cmp_eq_u32 {sROLE}, 0
    s_cbranch_scc1 Lw_K
    s_cmp_eq_u32 {sROLE}, 1
    s_cbranch_scc1 Lw_V
    s_cmp_eq_u32 {sROLE}, 2
    s_cbranch_scc1 {'Lw_K' if opt.get('allk') else 'Lw_Q'}""")
    if opt.get("allk"):
        e("s_branch Lw_K")
    if not opt.get("allk"):
        role_o(e, opt)
        role_q(e, opt)
    e("Lw_end:")
    span(e, opt, 3)
    wp_out(e, opt)
    tl(e, opt, 5)
    e("s_endpgm")
    role_kv(e, "K", opt)
    role_kv(e, "V", opt)
    e("L_ssm:")
    wp(e, opt, 0)
    wp_out(e, opt)
    tl(e, opt, 4)
    if "S" not in skip:
        gen_ssm.ssm(e, opt)
    span(e, opt, 4)
    tl(e, opt, 5)
    e("s_endpgm")
```

```python
import re

TRANS = ("v_exp_f32", "v_log_f32", "v_rcp_f32", "v_rsq_f32", "v_sqrt_f32", "v_sin_f32", "v_cos_f32")
_REG = re.compile(r"^(-|abs\()?([vas])(?:(\d+)|\[(\d+):(\d+)\])\)?$")


def regs(tok):
    tok = tok.strip()
    if tok == "vcc":
        return {("s", 106), ("s", 107)}
    if tok == "m0":
        return {("s", 124)}
    if tok == "exec":
        return {("s", 126), ("s", 127)}
    m = _REG.match(tok)
    if not m:
        return set()
    k = m.group(2)
    if m.group(3) is not None:
        return {(k, int(m.group(3)))}
    return {(k, i) for i in range(int(m.group(4)), int(m.group(5)) + 1)}


class Ins:
    def __init__(self, text):
        self.text = text
        body = text.split(";")[0].strip()
        self.label = body[:-1] if body.endswith(":") else None
        self.op = None
        self.defs, self.uses = set(), set()
        self.srcc = set()
        self.store_data = set()
        if self.label or not body or body.startswith("."):
            return
        parts = body.split(None, 1)
        self.op = op = parts[0]
        rest = parts[1] if len(parts) > 1 else ""
        brk = re.findall(r"\s[a-z_]+:\[[^\]]*\]", rest)
        rest = re.sub(r"\s[a-z_]+:\[[^\]]*\]", "", rest)
        ops = [o.strip() for o in rest.split(",")] if rest else []
        mods = " ".join(brk)
        if ops:
            last = ops[-1].split(None, 1)
            ops[-1] = last[0] if last else ""
            mods += " " + (last[1] if len(last) > 1 else "")
        self.ops, self.mods = ops, mods
        R = [regs(o) for o in ops]
        self.mfma = op.startswith("v_mfma") or op.startswith("v_smfmac")
        self.valu = op.startswith("v_") and not self.mfma
        self.vmem = op.startswith(("buffer_", "global_"))
        self.ds = op.startswith("ds_")
        self.salu = op.startswith("s_")
        self.dpp = "_dpp" in op or "row_ror" in mods or "row_shr" in mods or "quad_perm" in mods
        self.trans = op.replace("_e32", "").replace("_e64", "") in TRANS
        self.passes = 0
        self.lds_dma = self.vmem and (re.search(r"\blds\b", mods) is not None or "load_lds" in op)
        if self.mfma:
            self.passes = 8 if "32x32" in op else 4
            if op.endswith("_f32") and "x2_f32" in op:
                self.passes = 16
            if op.endswith("x4_f32"):
                self.passes = 8
            self.defs = set(R[0])
            if op.startswith("v_smfmac"):
                self.srcc = set(R[0])
                self.uses = R[1] | R[2] | R[3]
            else:
                self.srcc = set(R[3])
                self.uses = R[1] | R[2]
        elif self.valu:
            if op.startswith(("v_permlane", "v_swap")):
                self.defs = R[0] | R[1]
                self.uses = R[0] | R[1]
            elif op.startswith(("v_add_co", "v_sub_co", "v_addc_co", "v_subb_co")):
                self.defs = R[0] | R[1]
                self.uses = set().union(*R[2:])
            elif op == "v_nop":
                pass
            else:
                self.defs = set(R[0])
                self.uses = set().union(*R[1:]) if len(R) > 1 else set()
                if op.startswith(("v_fmac", "v_pk_fmac", "v_writelane")) or self.dpp:
                    self.uses |= R[0]
        elif self.vmem:
            if op in ("buffer_inv", "buffer_wbl2"):
                pass
            elif self.lds_dma:
                self.uses = set().union(*R) | regs("m0")
            elif "_load" in op:
                self.defs = set(R[0])
                self.uses = set().union(*R[1:])
            elif "_store" in op:
                self.uses = set().union(*R)
                self.store_data = R[0] if op.startswith("buffer_") else R[1]
                if not op.endswith(("x3", "x4")):
                    self.store_data = set()
            elif "_atomic" in op:
                ret = re.search(r"\bsc0\b", mods) is not None
                if op.startswith("buffer_"):
                    self.uses = set().union(*R)
                    if ret:
                        self.defs = set(R[0])
                elif ret:
                    self.defs = set(R[0])
                    self.uses = set().union(*R[1:])
                else:
                    self.uses = set().union(*R)
        elif self.ds:
            if op.startswith(("ds_read", "ds_bpermute", "ds_permute", "ds_swizzle")) or "_rtn" in op:
                self.defs = set(R[0])
                self.uses = set().union(*R[1:])
            else:
                self.uses = set().union(*R)
        elif self.salu:
            if op.startswith(("s_cmp", "s_cbranch", "s_branch", "s_waitcnt", "s_nop", "s_barrier", "s_endpgm",
                              "s_setprio", "s_sleep", "s_bitcmp")):
                self.uses = set().union(*R) if R else set()
            else:
                self.defs = set(R[0]) if R else set()
                self.uses = set().union(*R[1:]) if len(R) > 1 else set()
                if "saveexec" in op:
                    self.defs |= regs("exec")

    def slots(self):
        if self.op == "s_nop":
            return int(self.ops[0], 0) + 1
        if self.trans or self.op.startswith("v_permlane"):
            return 2
        return 1


def vec(rs):
    return {r for r in rs if r[0] in "va"}


def sca(rs):
    return {r for r in rs if r[0] == "s"}


def required(p, c):
    n = 0
    if p.mfma:
        big = {4: 8, 8: 12, 16: 20}[p.passes]
        if c.mfma:
            if p.defs & c.uses:
                n = max(n, big)
            if p.defs & c.srcc:
                same = p.defs == c.srcc and p.passes == c.passes
                if not same:
                    n = max(n, big - 2)
            elif p.defs & c.defs:
                n = max(n, big - 2)
        elif c.valu or c.vmem or c.ds:
            if p.defs & (c.uses | c.defs):
                n = max(n, big)
            if c.valu and (p.srcc & c.defs):
                n = max(n, p.passes - 1)
    if p.valu:
        vd = vec(p.defs)
        sd = sca(p.defs)
        if c.mfma and vd & (c.uses | c.srcc):
            n = max(n, 2)
        if c.valu:
            if c.op.startswith("v_permlane") and vd & c.uses:
                n = max(n, 2)
            if c.dpp and vd & c.uses:
                n = max(n, 2)
            if c.op.startswith(("v_readlane", "v_readfirstlane")) and vd & c.uses:
                n = max(n, 1)
            if p.trans and not c.trans and vd & c.uses:
                n = max(n, 1)
            if sd & c.uses:
                n = max(n, 4 if c.op.startswith(("v_readlane", "v_writelane")) else 2)
            if ("op_sel" in p.mods and not p.op.startswith("v_pk_") or "_sdwa" in p.op) and vd & (c.uses | c.defs):
                n = max(n, 1)
        if c.vmem and sd & c.uses:
            n = max(n, 5)
        if c.salu and sd & c.uses and not c.op.startswith("s_cbranch"):
            n = max(n, 1)
    if p.vmem and p.store_data:
        if p.store_data & c.defs:
            n = max(n, 2 if (c.valu or c.mfma) else 1)
    if p.salu and regs("m0") & p.defs and c.lds_dma:
        n = max(n, 1)
    return n


HORIZON = 22


def _elapsed(path):
    t = 0
    last_m = None
    times = []
    for ins in path:
        if ins.mfma and last_m is not None:
            t = max(t, last_m[0] + last_m[1])
        elif last_m is not None and (ins.valu or ins.vmem or ins.ds):
            t = max(t, last_m[0] + 2)
        times.append(t)
        if ins.mfma:
            last_m = (t, ins.passes)
        t += ins.slots()
    return times[-1] - times[0] - path[0].slots()


def fix_hazards(lines, verbose=False):
    ins = [Ins(l) for l in lines]
    total = 0
    i = 0

    def build():
        labels = {x.label: k for k, x in enumerate(ins) if x.label}
        jumps = {}
        for k, x in enumerate(ins):
            if x.op and (x.op.startswith("s_cbranch") or x.op == "s_branch"):
                jumps.setdefault(labels[x.ops[0]], []).append(k)
        return jumps

    jumps = build()

    def preds(k):
        out = []
        if k > 0:
            p = ins[k - 1]
            if not (p.op in ("s_branch", "s_endpgm")):
                out.append(k - 1)
        if ins[k].label:
            out += jumps.get(k, [])
        return out

    while i < len(ins):
        c = ins[i]
        if c.op is None or c.op in ("s_nop", "s_waitcnt", "s_barrier", "s_branch", "s_endpgm"):
            i += 1
            continue
        need = 0
        why = None
        stack = [(k, [c], 0) for k in preds(i)]
        seen = set()
        while stack:
            k, path, dist = stack.pop()
            p = ins[k]
            if p.op is not None:
                r = required(p, c)
                full = [p] + path
                if r:
                    short = r - _elapsed(full)
                    if short > 0:
                        pad = short
                        while r - _elapsed(full[:-1] + [Ins(f"s_nop {pad - 1}"), c]) > 0:
                            pad += 1
                        if pad > need:
                            need, why = pad, p.text
                path = full
                dist += p.slots()
            if dist >= HORIZON:
                continue
            key = (k, dist)
            if key in seen:
                continue
            seen.add(key)
            for q in preds(k):
                stack.append((q, path, dist))
        if need:
            if verbose:
                print(f"pad {need} before '{c.text}' (after '{why}')")
            new = []
            left = need
            while left > 0:
                n = min(left, 16)
                new.append(Ins(f"s_nop {n - 1}"))
                left -= n
            ins[i:i] = new
            jumps = build()
            i += len(new)
            total += 1
        i += 1
    return [x.text for x in ins], total


class Asm:
    def __init__(self):
        self.L = []
        self.n = 0

    def __call__(self, x):
        for l in x.split("\n"):
            l = l.strip()
            if l:
                self.L.append(l)

    def lab(self, p="L"):
        self.n += 1
        return f"{p}_{self.n}"

    def lines(self, fix=True, verbose=False):
        if not fix:
            return list(self.L)
        out, n = fix_hazards(self.L, verbose)
        self.pads = n
        return out


def vr(b, n=4, k="v"):
    return f"{k}{b}" if n == 1 else f"{k}[{b}:{b + n - 1}]"


def ar(b, n=4):
    return vr(b, n, "a")


def sr(b, n=2):
    return vr(b, n, "s")
```

```python
from gen_common import *

aQ, aK, aV, aO = 0, 64, 128, 192
wt = lambda bank, c, t: ar(bank + (c * 2 + t) * 8, 8)

vIDX, vLIN, vOST, vMST, vKX, vMM, vVM, vVAL = 1, 2, 3, 4, 5, 6, 7, 8
vLDSW, vT0, vT1 = 9, 10, 11
vLIN8 = 233
vCV = 12
vFL = 14
vA = 16
vQ0, vK0, vQ1, vK1 = 32, 36, 40, 44
vV0, vV1, vW0, vW1 = 48, 52, 56, 60
vP0, vP1 = 64, 68
vZ0, vZ1 = 72, 76
vSELT, vSELV, vONE, vPOI = 80, 84, 88, 92
vR = 96
vZF = 120
vKX0, vKX1, vVX0, vVX1 = 124, 128, 132, 136
vS0, vS1, vSM = 140, 144, 148
vP = [152, 168, 16, 96, 108]
vVA = 204
vVA0, vVA1 = 188, 192
vBX, vBM = 196, 200
vL, vO0, vO1 = 204, 208, 212
vE = 216
vD2 = 224
vX = 228
vM = 236
vH = [240, 248]
vSELI = 184

sJ = sRANK
sSTEP, sPROG, sSEL = "s60", "s61", "s62"
sMEMR, sMEMW, sOR, sOW = "s63", "s64", "s65", "s66"
sSC = [f"s{67 + k}" for k in range(4)]
sPXB = "s71"
sPX = [f"s{72 + k}" for k in range(4)]
sKX, sKMO, sFLG, sU0, sU1 = "s76", "s77", "s78", "s79", "s80"
sLO, sHI = "s[82:83]", "s[84:85]"
sH = "s81"
sKMB = "s87"
ZB, VB, WB, KVB = 0, 8192, 12288, 16384


def smf(e, acc, a, bank, c, t):
    e(f"v_smfmac_f32_16x16x64_bf16 {vr(acc)}, {vr(a)}, {wt(bank, c, t)}, v{vIDX}")


def mf(e, d, a, b, c=None):
    e(f"v_mfma_f32_16x16x32_bf16 {vr(d)}, {vr(a)}, {vr(b)}, {'0' if c is None else vr(c)}")


def cvt2(e, d, s):
    e(f"v_cvt_pk_bf16_f32 v{d}, v{s}, v{s + 1}\nv_cvt_pk_bf16_f32 v{d + 1}, v{s + 2}, v{s + 3}")


def zero(e, b, n):
    for i in range(0, n, 2):
        e(f"v_mov_b64 {vr(b + i, 2)}, 0")


def zero1(e, b, n):
    for i in range(n):
        e(f"v_mov_b32 v{b + i}, 0")


class Stamps:
    def __init__(self, e, on):
        self.e, self.on, self.names = e, on, []

    def __call__(self, name):
        if not self.on:
            return
        i = len(self.names)
        self.names.append(name)
        self.e(f"s_memtime s[{8 + 2 * i}:{9 + 2 * i}]")

    def collect(self, total):
        if not self.on:
            return
        e, n = self.e, len(self.names)
        e("s_waitcnt lgkmcnt(0)")
        order = list(range(n, total)) + list(range(n))
        for i in order:
            e(f"s_sub_u32 s89, s{8 + 2 * i}, s88\ns_mov_b32 s88, s{8 + 2 * i}\nv_add_u32 v{240 + i}, s89, v{240 + i}")


TRACE = DIAG + 65536


def tr(e, opt, i):
    if opt.get("trace"):
        e(f"s_memtime s[{8 + 2 * i}:{9 + 2 * i}]")


def tr_dump(e, opt):
    if not opt.get("trace"):
        return
    sk = e.lab("notr")
    e(f"""s_sub_u32 s89, {sSTEP}, 30
    s_cmp_lt_u32 s89, 8
    s_cbranch_scc0 {sk}
    s_waitcnt lgkmcnt(0)
    s_mov_b32 m0, s89""")
    for i in range(12):
        e(f"v_writelane_b32 v{7 if i < 8 else 238}, s{8 + 2 * i}, m0\ns_add_u32 m0, m0, {8 if i != 7 else -56}")
    e(f"{sk}:")


def tr_out(e, opt):
    if not (opt.get("trace") or opt.get("steps")):
        return
    e(f"""s_lshl_b32 {sU0}, {sH}, 2
    s_add_u32 {sU0}, {sU0}, {sWAVE}
    s_lshl_b32 {sU0}, {sU0}, 9
    s_add_u32 {sU0}, {sU0}, {TRACE}
    v_lshlrev_b32 v{vT1}, 2, v0
    buffer_store_dword v7, v{vT1}, {R(rWS)}, {sU0} offen
    buffer_store_dword v238, v{vT1}, {R(rWS)}, {sU0} offen offset:256""")


def load_weights(e, opt):
    NS, FL = 10, opt.get("cfl", 2)
    mats = [(aK, pWK, 8192), (aQ, pWQ, 8192), (aV, pWV, 8192), (aO, pWO, 2048)]
    vG8, vG2, vTR = 16, 17, 18
    sB8, sB2, sL = "s63", "s64", "s65"
    e(f"""v_bfe_u32 v19, v0, 2, 3
    v_and_b32 v20, 32, v0
    v_add_u32 v19, v19, v20
    v_and_b32 v20, 3, v0
    v_lshlrev_b32 v20, 4, v20
    v_lshl_add_u32 v{vG8}, v19, 13, v20
    v_lshl_add_u32 v{vG2}, v19, 11, v20
    v_lshrrev_b32 v21, 5, v0
    v_lshlrev_b32 v21, 4, v21
    v_bfe_u32 v22, v0, 4, 1
    v_lshl_add_u32 v21, v22, 2, v21
    v_bfe_u32 v22, v0, 2, 1
    v_add_u32 v21, v21, v22
    v_bfe_u32 v22, v0, 3, 1
    v_lshl_add_u32 v21, v22, 3, v21
    v_lshl_add_u32 v{vTR}, v21, 6, v20
    s_mul_i32 {sL}, {sWAVE}, {NS * 4096}
    v_add_u32 v{vTR}, {sL}, v{vTR}
    s_lshl_b32 {sB8}, {sWAVE}, 21
    s_lshl_b32 {sT}, {sA}, 5
    s_add_u32 {sT}, {sT}, {sJ}
    s_lshl_b32 {sT}, {sT}, 6
    s_add_u32 {sB8}, {sB8}, {sT}
    s_lshl_b32 {sB2}, {sA}, 2
    s_add_u32 {sB2}, {sB2}, {sWAVE}
    s_lshl_b32 {sB2}, {sB2}, 19
    s_lshl_b32 {sT}, {sJ}, 6
    s_add_u32 {sB2}, {sB2}, {sT}""")
    if opt.get("ctouch", 1):
        e(f"""s_cmp_eq_u32 {sWAVE}, 0
        s_cselect_b64 s[72:73], {sr(pWK)}, {sr(pWQ)}
        s_cmp_eq_u32 {sWAVE}, 2
        s_cselect_b64 s[72:73], {sr(pWV)}, s[72:73]
        s_cmp_eq_u32 {sWAVE}, 3
        s_cselect_b64 s[72:73], {sr(pWO)}, s[72:73]
        s_cselect_b32 s74, 11, 13
        s_cselect_b32 s75, 21, 11
        s_lshl_b32 s75, {sA}, s75
        s_lshl_b32 {sT}, {sJ}, 5
        s_lshl_b32 {sT}, {sT}, s74
        s_add_u32 s75, s75, {sT}
        v_and_b32 v19, 31, v0
        v_lshlrev_b32 v19, s74, v19
        v_lshrrev_b32 v20, 5, v0
        v_lshl_add_u32 v20, v20, 10, v19""")
        srd(e, rB1, 72, 8 * MB)
        e(f"""buffer_load_dword v21, v20, {R(rB1)}, s75 offen offset:384
        s_mov_b64 exec, 0xffffffff
        buffer_load_dword v21, v19, {R(rB1)}, s75 offen offset:1920
        s_mov_b64 exec, -1""")
    state = {"srd": {}}

    def issue(n):
        m, c = divmod(n, 4)
        bank, p, pitch = mats[m]
        r = rB1 if m % 2 == 0 else rB2
        if state["srd"].get(r) != m:
            srd(e, r, p, 8 * MB)
            state["srd"][r] = m
        for i in range(4):
            row0 = i * 64 + c * 8
            e(f"""s_add_u32 m0, {sL}, {(n % NS) * 4096 + i * 1024}
            s_add_u32 {sT}, {sB8 if pitch == 8192 else sB2}, {row0 * pitch}
            buffer_load_dwordx4 v{vG8 if pitch == 8192 else vG2}, {R(r)}, {sT} offen nt lds""")

    for n in range(FL):
        issue(n)
    yield "issued"
    for n in range(16):
        m, c = divmod(n, 4)
        e(f"s_waitcnt vmcnt({(min(16, n + FL) - n - 1) * 4}) lgkmcnt(0)")
        if n + FL < 16:
            issue(n + FL)
        if n == 0:
            e(f"s_cmp_eq_u32 {sWAVE}, 0\ns_cbranch_scc0 Lc_nosig")
            arrive(e, C_CHAIN, B_CHAIN, vT0, vT1)
            e("Lc_nosig:")
        for t in range(2):
            for H in range(2):
                for q in range(2):
                    d = mats[m][0] + (c * 2 + t) * 8 + 4 * H + 2 * q
                    off = (n % NS) * 4096 + (32 * H + 2 * q) * 64 + 8 * t
                    e(f"ds_read_b64_tr_b16 {ar(d, 2)}, v{vTR} offset:{off}")
    e("s_waitcnt lgkmcnt(0)")
    yield "done"


def gather_load(e, soff, c):
    e(f"buffer_load_dwordx4 {vr(vA + 4 * c)}, v{vLIN}, {R(rWS)}, {soff} offen offset:{1024 * c} sc1")


def gather(e, opt, name, soff, halves, work, tail, accs, ci, gaps, used=(4, 4, 4)):
    diag = opt.get("stamps") or opt.get("total")
    for c in range(4):
        gather_load(e, soff, c)
        if c < 3:
            gaps[c]()
            filler(e, max(0, opt.get("gap", 13) + 4 - used[c]))
    def test(c):
        a = vA + 4 * c
        if halves:
            e(f"v_max_u32 v{vVAL}, v{a}, v{a + 2}\nv_cmp_eq_u32 vcc, -1, v{vVAL}")
        else:
            e(f"v_cmp_eq_u32 vcc, -1, v{a}")

    def variant(c0, spec):
        tag = "s" if spec else c0
        tr(e, opt, 1 + 5 * ci)
        for k in range(4):
            c = (c0 + k) % 4
            a = vA + 4 * c
            if k:
                e(f"s_waitcnt vmcnt({3 - k})")

            def check(i, k=k, a=a):
                if k == 0 and spec:
                    if i == 0:
                        test(0)
                    else:
                        e(f"s_cbranch_vccnz {name}_miss")
                if k and i == 0:
                    if halves:
                        e(f"v_max3_u32 v{vVAL}, v{vVAL}, v{a}, v{a + 2}")
                    elif k == 1:
                        e(f"v_mov_b32 v{vVAL}, v{a}")
                    else:
                        e(f"v_max_u32 v{vVAL}, v{vVAL}, v{a}")
                    if k == 3:
                        e(f"v_cmp_eq_u32 vcc, -1, v{vVAL}")
                if k == 3 and i == 1:
                    e(f"s_cbranch_vccnz {name}_bad{tag}\n{name}_ok{tag}:")
            work(c, k == 3, check, k == 0 and spec)
        tr(e, opt, 2 + 5 * ci)
        tail()
        e(f"s_branch {name}_join")
        e(f"{name}_bad{tag}:")
        if diag:
            e(f"s_add_u32 s{90 + ci}, s{90 + ci}, 0x10000")
        spin_fail(e, f"{name}_redo", f"{name}_ok{tag}")

    e(f"{name}_first:")
    for c0 in range(4):
        e("s_waitcnt vmcnt(3)")
        test(c0)
        e(f"s_cbranch_vccnz {name}_miss{c0}\n{name}_got{c0}:")
        variant(c0, False)
        e(f"{name}_miss{c0}:")
        gather_load(e, soff, c0)
        if diag:
            e(f"s_add_u32 s{90 + ci}, s{90 + ci}, 1")
    spin_fail(e, f"{name}_first", f"{name}_late")
    e(f"{name}_late:\ns_waitcnt vmcnt(3)\ns_branch {name}_got0\n{name}_redo:")
    for c in range(4):
        gather_load(e, soff, c)
    zero(e, *accs)
    e(f"s_branch {name}_first\n{name}_join:")


def work_a(e):
    def work(c, last, check, spec):
        a = vA + 4 * c
        smf(e, vQ0, a, aQ, c, 0)
        check(0)
        smf(e, vK0, a, aK, c, 0)
        if spec:
            check(1)
        smf(e, vQ1, a, aQ, c, 1)
        if last:
            cvt2(e, vP0, vQ0)
        smf(e, vK1, a, aK, c, 1)
        if last:
            cvt2(e, vP0 + 2, vK0)
            check(1)
    return work


def fold_a(e):
    mf(e, vZ0, vP0, vSELT)
    cvt2(e, vP1, vQ1)
    cvt2(e, vP1 + 2, vK1)
    mf(e, vZ1, vP1, vSELT)


def work_f(e):
    def work(c, last, check, spec):
        a = vA + 4 * c
        smf(e, vW0, a, aO, c, 0)
        check(0)
        smf(e, vW1, a, aO, c, 1)
        check(1)
    return work


def gaps_a(e):
    return [lambda: zero(e, vQ0, 8), lambda: zero(e, vQ1, 8), lambda: zero(e, vV0, 8)]


def gaps_f(e):
    return [lambda: zero1(e, vW0, 4), lambda: zero1(e, vW1, 4), lambda: zero1(e, vP1, 4)]


def v_tiles():
    return [(acc, c, t) for c in range(4) for acc, t in ((vV0, 0), (vV1, 1))]


def helper(e, opt):
    vt = v_tiles()
    sv = lambda k: smf(e, vt[k][0], vA + 4 * vt[k][1], aV, vt[k][1], vt[k][2])

    def tail_a():
        fold_a(e)
        e(f"ds_write_b128 v{vLDSW}, {vr(vZ0)} offset:{ZB}")
        sv(0)
        sv(1)
        e(f"ds_write_b128 v{vLDSW}, {vr(vZ1)} offset:{ZB + 4096}")
        sv(2)

    def tail_f():
        cvt2(e, vP0, vW0)
        cvt2(e, vP0 + 2, vW1)
        e(f"ds_write_b128 v{vLDSW}, {vr(vP0)} offset:{WB}")

    e("Lh_step:\ns_barrier")
    gather(e, opt, "LhA", sMEMR, True, work_a(e), tail_a, (vQ0, 16), 0, gaps_a(e))
    sv(3)
    e("s_waitcnt lgkmcnt(0)\ns_barrier")
    for k in range(4, 8):
        sv(k)
    cvt2(e, vP0, vV0)
    cvt2(e, vP0 + 2, vV1)
    e(f"ds_write_b128 v{vLDSW}, {vr(vP0)} offset:{VB}")
    e(f"""s_xor_b32 {sMEMR}, {sMEMR}, 0x8000
    s_waitcnt lgkmcnt(0)
    s_barrier
    s_cmp_eq_u32 {sSTEP}, {NSEG - 1}
    s_cbranch_scc1 L_chain_done
    s_add_u32 {sU1}, {sSTEP}, 2
    s_add_u32 {sKX}, {sKX}, 0x40000
    s_barrier""")
    gather(e, opt, "LhF", sOR, False, work_f(e), tail_f, (vW0, 8), 1, gaps_f(e))
    hd = opt.get("hd", "kw")
    done = "s_waitcnt lgkmcnt(0)\ns_barrier"
    e(f"""s_cmp_ge_u32 {sWAVE}, 2
    s_cbranch_scc1 Lh_w23
    s_cmp_ge_u32 {sPROG}, {sU1}
    s_cbranch_scc0 Lh_kvwait
    {done}
    Lh_kvok:""")
    if "k" in hd:
        load_kv(e)
    e(f"""s_add_u32 {sU1}, {sU1}, 2
    s_min_u32 {sU1}, {sU1}, {NSEG}
    s_cmp_ge_u32 {sPROG}, {sU1}
    s_cbranch_scc1 Lh_next
    s_mov_b32 {sU1}, 0""")
    wait_kv(e, sU1)
    e(f"s_branch Lh_next\nLh_kvwait:\n{done}")
    wait_kv(e, sU1)
    e(f"""s_branch Lh_kvok
    Lh_w23:
    s_xor_b32 {sOW}, {sOW}, 0x8000
    s_cmp_eq_u32 {sWAVE}, 2
    {done}""")
    if opt.get("lpos", "pre") == "help":
        e("s_cbranch_scc0 Lh_next")
        rearm(e)
        e(f"s_xor_b32 {sMEMW}, {sMEMW}, 0x8000\ns_waitcnt vmcnt(0)")
    e("Lh_next:")
    if opt.get("lpos", "pre") == "help":
        e("s_barrier")
    tr_dump(e, opt)
    e("s_waitcnt vmcnt(0)")
    e(f"""s_xor_b32 {sOR}, {sOR}, 0x8000
    s_add_u32 {sSTEP}, {sSTEP}, 1""")
    e("s_branch Lh_step")


def z_reduce(e):
    for t, z in ((0, vZ0), (1, vZ1)):
        for w in range(3):
            r = vR + (t * 3 + w) * 4
            n = t * 3 + w
            if n in (0, 1, 3):
                e(f"s_waitcnt lgkmcnt({ {0: 5, 1: 3, 3: 0}[n] })")
            for i in (0, 2):
                e(f"v_pk_fma_f32 {vr(z + i, 2)}, {vr(r + i, 2)}, {vr(vCV, 2)}, {vr(z + i, 2)}")
        cvt2(e, vZF + 2 * t, z)


def v_reduce_issue(e):
    cvt2(e, vP0, vV0)
    cvt2(e, vP0 + 2, vV1)
    e("s_barrier")
    for w in range(3):
        e(f"ds_read_b128 {vr(vR + 4 * w)}, v{vLIN} offset:{VB + 1024 * (w + 1)}")
    mf(e, vVA, vSELV, vP0)


def v_reduce_finish(e, between=None):
    for w in range(3):
        e(f"s_waitcnt lgkmcnt({2 - w})")
        mf(e, vVA, vSELV, vR + 4 * w, vVA)
    if between:
        between()
    e(f"v_cvt_pk_bf16_f32 v{vVA0}, v{vVA}, v{vVA + 1}\nv_cvt_pk_bf16_f32 v{vVA1}, v{vVA + 2}, v{vVA + 3}")


def pack_kv(e):
    e(f"""v_mov_b32_dpp v{vZF}, v{vVA0} quad_perm:[0,1,2,3] row_mask:0xf bank_mask:0x3
    v_mov_b32_dpp v{vZF + 1}, v{vVA1} quad_perm:[0,1,2,3] row_mask:0xf bank_mask:0x3
    v_mov_b32_dpp v{vZF + 2}, v{vVA0} row_ror:8 row_mask:0xf bank_mask:0x3
    v_mov_b32_dpp v{vZF + 3}, v{vVA1} row_ror:8 row_mask:0xf bank_mask:0x3""")


def publish_kv(e):
    e(f"buffer_store_dwordx4 {vr(vZF)}, v{vLIN}, {R(rWS)}, {sKMO} offen sc1")


def load_kv(e):
    e(f"""s_add_u32 {sU0}, {sKX}, {VX - KX}
    s_mov_b32 m0, {KVB}
    buffer_load_dwordx4 v{vKX}, {R(rWS)}, {sKX} offen sc1 lds
    s_mov_b32 m0, {KVB + 1024 - 128}
    buffer_load_dwordx4 v{vKX}, {R(rWS)}, {sKX} offen offset:128 sc1 lds
    s_mov_b32 m0, {KVB + 2048}
    buffer_load_dwordx4 v{vKX}, {R(rWS)}, {sU0} offen sc1 lds
    s_mov_b32 m0, {KVB + 3072 - 128}
    buffer_load_dwordx4 v{vKX}, {R(rWS)}, {sU0} offen offset:128 sc1 lds""")


def read_kv(e, i):
    e(f"ds_read_b128 {vr(vKX0 + 4 * i)}, v{vLIN} offset:{KVB + 1024 * i}")


def wait_kv(e, need):
    top, ok = e.lab("kv"), e.lab("kvok")
    e(f"""{top}:
    v_mov_b32 v{vT1}, 0
    buffer_load_dwordx2 {vr(vFL, 2)}, v{vT1}, {R(rWS)}, {sFLG} offen sc1
    s_waitcnt vmcnt(0)
    v_min_u32 v{vT0}, v{vFL}, v{vFL + 1}
    v_readfirstlane_b32 {sPROG}, v{vT0}
    s_cmp_ge_u32 {sPROG}, {need}
    s_cbranch_scc1 {ok}""")
    spin_fail(e, top, ok)
    e(f"{ok}:")


def poll_d(e, s):
    for k in (1, 2, 3):
        e(f"buffer_load_dwordx4 {vr(s + 4 * (k - 1))}, v{vLIN}, {R(rWS)}, {sSC[k]} offen sc1")
    for k in range(4):
        e(f"buffer_load_dword v{s + 12 + k}, v{vMM}, {R(rWS)}, {sSC[k]} offen sc1")


def sum_d(e, s, left):
    e(f"s_waitcnt vmcnt({left + 6})")
    for i in (0, 2):
        e(f"v_pk_add_f32 {vr(vX + i, 2)}, {vr(vS0 + i, 2)}, {vr(s + i, 2)}")
    e(f"s_waitcnt vmcnt({left + 4})")
    for i in (0, 2):
        e(f"v_pk_add_f32 {vr(vE + i, 2)}, {vr(s + 4 + i, 2)}, {vr(s + 8 + i, 2)}")
    e(f"v_max3_u32 v{vVAL}, v{s}, v{s + 4}, v{s + 8}")
    for i in (0, 2):
        e(f"v_pk_add_f32 {vr(vX + i, 2)}, {vr(vX + i, 2)}, {vr(vE + i, 2)}")
    e(f"""s_waitcnt vmcnt({left})
    v_max3_u32 v{vVAL}, v{vVAL}, v{s + 12}, v{s + 13}
    v_max3_u32 v{vVAL}, v{vVAL}, v{s + 14}, v{s + 15}
    v_cmp_eq_u32 vcc, -1, v{vVAL}
    v_add_f32 v{vE}, v{s + 12}, v{s + 13}
    v_add_f32 v{vE + 1}, v{s + 14}, v{s + 15}
    v_max3_f32 v{vM}, v{vX}, v{vX + 1}, v{vX + 2}
    v_add_f32 v{vX + 4}, v{vE}, v{vE + 1}
    v_max3_f32 v{vM}, v{vM}, v{vX + 3}, v{vX + 4}""")


def poll_h(e, s, rep):
    for k in (1, 2, 3):
        e(f"buffer_load_dwordx2 {vr(s + 2 * (k - 1), 2)}, v{vLIN8}, {R(rWS)}, {sPX[k]} offen offset:{512 * rep} sc1")


def valid_h(e, s):
    e(f"v_max3_u32 v{vVAL}, v{s}, v{s + 2}, v{s + 4}\nv_cmp_eq_u32 vcc, -1, v{vVAL}")


def sum_h(e, s, left, stamp=None):
    if left is not None:
        e(f"s_waitcnt vmcnt({left + 1})")
    mf(e, vX, vSELI, s, vD2)
    if left is not None:
        e(f"s_waitcnt vmcnt({left})")
    mf(e, vX, vSELI, s + 4, vX)
    if left is not None:
        if stamp:
            stamp()
        valid_h(e, s)
        e("s_cbranch_vccnz Ll_redoH")


def step_pages(e):
    e(f"""s_lshl_b32 {sU0}, {sSTEP}, 18
    s_and_b32 {sU1}, {sSTEP}, 8
    s_lshl_b32 {sU1}, {sU1}, 10
    s_add_u32 {sPX[0]}, {sPXB}, {sU0}
    s_xor_b32 {sPX[0]}, {sPX[0]}, {sU1}
    s_add_u32 {sKMO}, {sKMB}, {sU0}
    s_xor_b32 {sKMO}, {sKMO}, {sU1}""")
    for k in (1, 2, 3):
        e(f"s_xor_b32 {sPX[k]}, {sPX[0]}, {k << 10}")


FILL = ["nop"]


def filler(e, n):
    if FILL[0] == "mov":
        for _ in range(n):
            e(f"v_mov_b32 v{vT0}, v{vT0}")
        return
    if FILL[0] == "sleep" and n >= 17:
        e(f"s_sleep {(n - 1) // 16}")
        n = (n - 1) % 16
    while n > 0:
        e(f"s_nop {min(n, 16) - 1}")
        n -= 16


def rearm(e):
    e(f"""s_xor_b32 {sU0}, {sMEMW}, 0x8000
    buffer_store_dwordx2 {vr(vPOI, 2)}, v{vMST}, {R(rWS)}, {sOW} offen
    buffer_store_dwordx2 {vr(vPOI, 2)}, v{vMST}, {R(rWS)}, {sU0} offen
    buffer_store_dwordx4 {vr(vPOI)}, v{vLIN}, {R(rWS)}, {sSC[0]} offen
    buffer_store_dwordx2 {vr(vPOI, 2)}, v{vLIN8}, {R(rWS)}, {sSC[0]} offen offset:1536""")


def leader(e, opt):
    st = Stamps(e, opt.get("stamps"))
    cnt = (lambda i: e(f"s_add_u32 s{90 + i}, s{90 + i}, 1")) if opt.get("stamps") or opt.get("total") else (lambda i: None)
    vt = v_tiles()
    ror8 = "row_ror:8 row_mask:0xf"
    sv = lambda k: smf(e, vt[k][0], vA + 4 * vt[k][1], aV, vt[k][1], vt[k][2])

    def tail_a():
        fold_a(e)
        sv(0)
        for i in range(2):
            e(f"v_mul_f32 v{vZ0 + i}, v{vCV}, v{vZ0 + i}")
        sv(1)
        for i in range(2, 4):
            e(f"v_mul_f32 v{vZ0 + i}, v{vCV}, v{vZ0 + i}")

    def tail_f():
        cvt2(e, vP0, vW0)
        cvt2(e, vP0 + 2, vW1)

    e("Ll_step:")
    sum_h(e, vH[0], 3, lambda: tr(e, opt, 5))
    e("Ll_okH:")
    cvt2(e, vE + 4, vX)
    e(f"buffer_store_dwordx2 {vr(vE + 4, 2)}, v{vMST}, {R(rWS)}, {sMEMW} offen")
    tr(e, opt, 10)
    e(f"s_xor_b32 {sMEMW}, {sMEMW}, 0x8000")
    filler(e, opt.get("dA", 20))
    e("s_barrier")
    ga = gaps_a(e)
    gl = [lambda: (ga[0](), read_kv(e, 0), read_kv(e, 1)), lambda: (ga[1](), read_kv(e, 2), read_kv(e, 3)), ga[2]]
    gather(e, opt, "LlA", sMEMR, True, work_a(e), tail_a, (vQ0, 16), 0, gl, [6, 6, 4])
    sv(2)
    for i in range(2):
        e(f"v_mul_f32 v{vZ1 + i}, v{vCV}, v{vZ1 + i}")
    sv(3)
    for i in range(2, 4):
        e(f"v_mul_f32 v{vZ1 + i}, v{vCV}, v{vZ1 + i}")
    e(f"s_cmp_eq_u32 {sSTEP}, {NSEG - 1}")
    sv(4)
    e("s_cbranch_scc1 Ll_last")
    sv(5)

    def z_reads():
        e("s_barrier")
        for t in range(2):
            for w in range(3):
                e(f"ds_read_b128 {vr(vR + (t * 3 + w) * 4)}, v{vLIN} offset:{ZB + 4096 * t + 1024 * (w + 1)}")
    z_reads()
    z_reduce(e)
    mf(e, vS0, vKX0, vZF)
    mf(e, vS1, vKX1, vZF)
    mf(e, vSM, vZF, vZF)
    e(f"""s_mov_b64 exec, {sLO}
    buffer_store_dwordx4 {vr(vS0)}, v{vLIN}, {R(rWS)}, {sSC[0]} offen
    buffer_store_dwordx4 {vr(vS1)}, v{vLIN}, {R(rWS)}, {sSC[0]} offen offset:128
    buffer_store_dwordx4 {vr(vSM)}, v{vLIN}, {R(rWS)}, {sSC[0]} offen offset:1024
    s_mov_b64 exec, -1""")
    tr(e, opt, 3)
    sv(6)
    sv(7)
    for i in range(4):
        e(f"v_mov_b32_dpp v{vS0 + i}, v{vS1 + i} {ror8} bank_mask:0xc")
    filler(e, opt.get("dD", 10))
    nD = opt.get("nD", 3)
    poll_d(e, vP[0])
    v_reduce_issue(e)
    if nD == 2 and opt.get("d2late", 0):
        v_reduce_finish(e, lambda: poll_d(e, vP[1]))
    else:
        poll_d(e, vP[1])
        v_reduce_finish(e, lambda: [poll_d(e, vP[i]) for i in range(2, nD)])
    sum_d(e, vP[0], 7 * (nD - 1))
    e("s_cbranch_vccnz Ll_redoD")
    e("Ll_okD:")
    tr(e, opt, 4)
    e(f"""v_max_f32_dpp v{vM}, v{vM}, v{vM} {ror8} bank_mask:0xf
    v_mov_b32 v{vE}, v{vM}
    v_permlane16_swap_b32 v{vM}, v{vE}
    v_max_f32 v{vM}, v{vM}, v{vE}
    v_mov_b32 v{vE}, v{vM}
    v_permlane32_swap_b32 v{vM}, v{vE}
    v_max_f32 v{vM}, v{vM}, v{vE}
    v_sub_f32 v{vX + 4}, v{vX + 4}, v{vM}
    v_pk_add_f32 {vr(vX, 2)}, {vr(vX, 2)}, {vr(vM, 2)} op_sel_hi:[1,0] neg_lo:[0,1] neg_hi:[0,1]
    v_exp_f32 v{vX + 4}, v{vX + 4}
    v_pk_add_f32 {vr(vX + 2, 2)}, {vr(vX + 2, 2)}, {vr(vM, 2)} op_sel_hi:[1,0] neg_lo:[0,1] neg_hi:[0,1]
    v_exp_f32 v{vX}, v{vX}
    v_mov_b32_dpp v{vE}, v{vX + 4} {ror8} bank_mask:0xf
    v_exp_f32 v{vX + 1}, v{vX + 1}
    v_cvt_pk_bf16_f32 v{vBM}, v{vX + 4}, v{vE}
    v_exp_f32 v{vX + 2}, v{vX + 2}
    v_exp_f32 v{vX + 3}, v{vX + 3}""")
    mf(e, vL, vONE, vBM)
    e(f"v_cvt_pk_bf16_f32 v{vBX}, v{vX}, v{vX + 1}\nv_cvt_pk_bf16_f32 v{vBX + 1}, v{vX + 2}, v{vX + 3}")
    mf(e, vO0, vVA0, vBM)
    e(f"""v_mov_b32_dpp v{vBX + 2}, v{vBX} {ror8} bank_mask:0xf
    v_mov_b32_dpp v{vBX + 3}, v{vBX + 1} {ror8} bank_mask:0xf""")
    mf(e, vO1, vVA1, vBM)
    mf(e, vL, vONE, vBX, vL)
    mf(e, vO0, vVX0, vBX, vO0)
    mf(e, vO1, vVX1, vBX, vO1)
    e(f"v_rcp_f32 v{vM}, v{vL}\ns_mov_b64 exec, {sLO}")
    for o, d in ((vO0, vE), (vO1, vE + 2)):
        if o == vO0:
            for i in range(4):
                e(f"v_mul_f32 v{o + i}, v{vM}, v{o + i}")
        else:
            for i in (0, 2):
                e(f"v_pk_mul_f32 {vr(o + i, 2)}, {vr(o + i, 2)}, {vr(vM, 2)} op_sel_hi:[1,0]")
        cvt2(e, d, o)
    e(f"""buffer_store_dwordx4 {vr(vE)}, v{vOST}, {R(rWS)}, {sOW} offen
    s_mov_b64 exec, -1""")
    tr(e, opt, 8)
    filler(e, opt.get("dF", 20))
    e("s_barrier")
    gather(e, opt, "LlF", sOR, False, work_f(e), tail_f, (vW0, 8), 1,
           [lambda: (zero1(e, vW0, 8), pack_kv(e)), lambda: step_pages(e), lambda: None], [12, 10, 0])
    mf(e, vD2, vP0, vSELT)

    e("s_barrier")
    for w in range(3):
        e(f"ds_read_b128 {vr(vR + 4 * w)}, v{vLIN} offset:{WB + 1024 * (w + 1)}")
    if opt.get("pub", 1):
        publish_kv(e)
    for w in range(3):
        e(f"s_waitcnt lgkmcnt({2 - w})")
        mf(e, vD2, vR + 4 * w, vSELT, vD2)
    cvt2(e, vE, vD2)
    for r in range(2):
        e(f"buffer_store_dwordx2 {vr(vE, 2)}, v{vLIN8}, {R(rWS)}, {sPX[0]} offen offset:{512 * r} sc1")
    tr(e, opt, 9)
    if opt.get("trace"):
        e("s_memrealtime s[30:31]")
    e(f"s_xor_b32 {sOW}, {sOW}, 0x8000")
    if opt.get("lpos", "pre") == "pre":
        rearm(e)
    tr_dump(e, opt)
    filler(e, opt.get("dH", 75))
    tr(e, opt, 0)
    poll_h(e, vH[0], 0)
    if opt.get("steps"):
        e(f"s_memtime s[8:9]\ns_mov_b32 m0, {sSTEP}\ns_waitcnt lgkmcnt(0)\nv_writelane_b32 v7, s8, m0")
    if opt.get("tl"):
        for k, stp in enumerate((0, 1, 3, 7)):
            sk = e.lab("tl")
            e(f"s_cmp_eq_u32 {sSTEP}, {stp}\ns_cbranch_scc0 {sk}\ns_memrealtime s[{10 + 2 * k}:{11 + 2 * k}]\n{sk}:")
    if opt.get("total"):
        e(f"""s_cmp_eq_u32 {sSTEP}, 3
        s_cbranch_scc0 Ll_not0
        s_memtime s[96:97]
        s_memrealtime s[100:101]""")
        for i in range(90, 96):
            e(f"s_mov_b32 s{i}, 0")
        e("Ll_not0:")
    filler(e, opt.get("gH", 55) - (7 if opt.get("total") else 0) - (28 if opt.get("tl") else 0) - (12 if opt.get("steps") else 0))
    poll_h(e, vH[1], 1)
    e(f"""s_add_u32 {sSTEP}, {sSTEP}, 1
    s_xor_b32 {sMEMR}, {sMEMR}, 0x8000
    s_xor_b32 {sOR}, {sOR}, 0x8000""")
    if opt.get("lpos", "pre") == "help":
        e("s_barrier")
    e("s_branch Ll_step")

    top = e.lab("top")
    e("Ll_redoD:")
    cnt(2)
    for i in range(1, nD):
        sum_d(e, vP[i], 7 * (nD - 1 - i))
        e("s_cbranch_vccz Ll_okD")
        cnt(3)
    poll_d(e, vP[0])
    e(f"{top}:")
    for i in range(2):
        poll_d(e, vP[1 - i])
        sum_d(e, vP[i], 7)
        e("s_cbranch_vccz Ll_okD")
        cnt(3)
    spin_fail(e, top, "Ll_okD")

    top = e.lab("top")
    e("Ll_redoH:")
    cnt(4)
    e(f"{top}:")
    for i in (1, 0):
        poll_h(e, vH[1 - i], 1 - i)
        e("s_waitcnt vmcnt(3)")
        valid_h(e, vH[i])
        e(f"s_cbranch_vccz Ll_sumH{i}")
        cnt(5)
    spin_fail(e, top, "Ll_okH")
    for i in range(2):
        e(f"Ll_sumH{i}:")
        sum_h(e, vH[i], None)
        e("s_branch Ll_okH")

    e("Ll_last:")
    for k in (5, 6, 7):
        sv(k)
    z_reads()
    z_reduce(e)
    v_reduce_issue(e)
    v_reduce_finish(e, lambda: step_pages(e))
    pack_kv(e)
    publish_kv(e)
    if opt.get("stamps") or opt.get("total"):
        e("s_memtime s[8:9]\ns_memrealtime s[98:99]\ns_waitcnt lgkmcnt(0)\ns_sub_u32 s8, s8, s96\nv_mov_b32 v247, s8")
        e(f"s_sub_u32 {sSEL}, s98, s100")
        e(f"""s_lshl_b32 {sU0}, {sA}, 5
        s_add_u32 {sU0}, {sU0}, {sJ}
        s_lshl_b32 {sU0}, {sU0}, 6
        s_add_u32 {sU0}, {sU0}, {DIAG}
        v_mov_b32 v{vT1}, 0""")
        for i in range(6):
            e(f"v_mov_b32 v{248 + i}, s{90 + i}")
        e(f"v_mov_b32 v254, {sTO}\nv_mov_b32 v255, {sSEL}\ns_mov_b64 exec, 1")
        for q in range(4):
            e(f"buffer_store_dwordx4 {vr(240 + 4 * q)}, v{vT1}, {R(rWS)}, {sU0} offen offset:{16 * q}")
    span(e, opt, 0)
    span(e, opt, 2)
    e("s_branch L_chain_done")
    opt["stamp_names"] = st.names


def chain(e, opt):
    e("L_chain:")
    FILL[0] = opt.get("fill", "nop")
    if "C" in opt.get("skip", ""):
        e(f"s_cmp_eq_u32 {sWAVE}, 0\ns_cbranch_scc0 L_exit")
        arrive(e, C_CHAIN, B_CHAIN, 1, 2)
        e("s_endpgm")
        return
    e(f"v_lshlrev_b32 v{vLIN8}, 3, v0")
    lw = load_weights(e, opt)
    e(f"""v_lshlrev_b32 v{vLIN}, 4, v0
    v_lshrrev_b32 v30, 4, v0
    v_and_b32 v31, 7, v0
    v_bfe_u32 v29, v0, 3, 1
    v_lshlrev_b32 v{vOST}, 4, v31
    v_lshl_add_u32 v{vOST}, v30, 10, v{vOST}
    v_lshl_add_u32 v{vMST}, v29, 3, v{vOST}
    s_lshl_b32 {sH}, {sA}, 5
    s_add_u32 {sH}, {sH}, {sJ}
    s_lshl_b32 {sU0}, {sH}, 11
    s_add_u32 {sSC[0]}, {sU0}, {SC}
    s_add_u32 {sKX}, {sU0}, {KX}
    s_lshr_b32 {sU0}, {sH}, 2
    s_lshl_b32 {sU0}, {sU0}, 7
    s_and_b32 {sU1}, {sH}, 3
    s_lshl_b32 {sU1}, {sU1}, 4
    s_add_u32 {sFLG}, {sU0}, {sU1}
    s_add_u32 {sFLG}, {sFLG}, {FLG}
    s_lshr_b32 {sU0}, {sJ}, 1
    s_lshl_b32 {sU0}, {sU0}, 14
    s_and_b32 {sU1}, {sJ}, 1
    s_lshl_b32 {sU1}, {sU1}, 12
    s_add_u32 {sPXB}, {sU0}, {sU1}
    s_lshl_b32 {sU0}, {sA}, 10
    s_add_u32 {sPXB}, {sPXB}, {sU0}
    s_lshl_b32 {sU0}, {sA}, 16
    s_lshr_b32 {sU1}, {sJ}, 3
    s_mul_i32 {sU1}, {sU1}, {opt.get('wst', 4096)}
    s_add_u32 {sOW}, {sU0}, {sU1}
    s_and_b32 {sU1}, {sJ}, 7
    s_lshl_b32 {sU1}, {sU1}, 7
    s_add_u32 {sOW}, {sOW}, {sU1}""")
    for i in range(4):
        e(f"v_mov_b32 v{vPOI + i}, -1")
    e(f"""s_cmp_eq_u32 {sWAVE}, 0
    s_cbranch_scc0 Lc_noinit""")
    for base in (MEMB, MEMB + 0x8000, OB, OB + 0x8000):
        e(f"""s_add_u32 {sU0}, {sOW}, {base}
        buffer_store_dwordx2 {vr(vPOI, 2)}, v{vMST}, {R(rWS)}, {sU0} offen""")
    e(f"""buffer_store_dwordx4 {vr(vPOI)}, v{vLIN}, {R(rWS)}, {sSC[0]} offen
    buffer_store_dwordx4 {vr(vPOI)}, v{vLIN}, {R(rWS)}, {sSC[0]} offen offset:1024""")
    for sel in range(2):
        e(f"""s_add_u32 {sU0}, {sPXB}, {PXF + (sel << 13)}
        buffer_store_dwordx4 {vr(vPOI)}, v{vLIN}, {R(rWS)}, {sU0} offen sc1""")
    e("Lc_noinit:")
    next(lw)
    one, onehi = 0x3F80, 0x3F800000
    e(f"""v_and_b32 v28, 15, v0
    v_mov_b32 v{vIDX}, 0x4444
    v_mov_b32 v27, 0xeeee
    v_cmp_eq_u32 vcc, 1, v29
    v_cndmask_b32 v{vIDX}, v{vIDX}, v27, vcc
    v_mov_b32 v{vCV}, {hex(f2u(QSCALE))}
    v_cndmask_b32 v{vCV}, v{vCV}, 1.0, vcc
    v_mov_b32 v{vCV + 1}, v{vCV}
    v_lshlrev_b32 v27, 4, v29
    v_add_u32 v27, v27, v31
    v_lshlrev_b32 v{vKX}, 9, v30
    v_lshl_add_u32 v{vKX}, v27, 4, v{vKX}
    v_lshrrev_b32 v26, 1, v30
    v_and_b32 v25, 1, v30
    v_lshlrev_b32 v{vMM}, 8, v26
    v_lshl_add_u32 v{vMM}, v31, 4, v{vMM}
    v_lshl_add_u32 v{vMM}, v25, 3, v{vMM}
    v_lshl_add_u32 v{vMM}, v29, 2, v{vMM}
    v_add_u32 v{vMM}, {1024 + 512}, v{vMM}
    s_lshl_b32 {sU0}, {sWAVE}, 10
    v_add_u32 v{vLDSW}, {sU0}, v{vLIN}
    s_mov_b32 {sU0}, {one}
    s_mov_b32 {sU1}, {onehi}
    v_lshlrev_b32 v24, 2, v25""")
    for d in range(4):
        t, p = d >> 1, d & 1
        e(f"""v_add_u32 v23, {2 * p + 8 * t}, v24
        v_cmp_eq_u32 vcc, v23, v28
        v_mov_b32 v22, {sU0}
        v_cndmask_b32 v{vSELT + d}, 0, v22, vcc
        v_add_u32 v23, 1, v23
        v_cmp_eq_u32 vcc, v23, v28
        v_mov_b32 v22, {sU1}
        v_cndmask_b32 v{vSELT + d}, v{vSELT + d}, v22, vcc""")
        e(f"""v_lshlrev_b32 v23, 1, v24
        v_add_u32 v23, {4 * p + 2 * t}, v23
        v_cmp_eq_u32 vcc, v23, v28
        v_mov_b32 v22, {sU0}
        v_cndmask_b32 v{vSELV + d}, 0, v22, vcc
        v_add_u32 v23, 1, v23
        v_cmp_eq_u32 vcc, v23, v28
        v_mov_b32 v22, {sU1}
        v_cndmask_b32 v{vSELV + d}, v{vSELV + d}, v22, vcc
        v_mov_b32 v{vONE + d}, 0x3f803f80""")
        e(f"""v_lshl_add_u32 v23, v30, 2, {2 * p}
        v_cmp_eq_u32 vcc, v23, v28
        v_mov_b32 v22, {sU0}
        v_cndmask_b32 v{vSELI + d}, 0, v22, vcc
        v_add_u32 v23, 1, v23
        v_cmp_eq_u32 vcc, v23, v28
        v_mov_b32 v22, {sU1}
        v_cndmask_b32 v{vSELI + d}, v{vSELI + d}, v22, vcc""")
    zero(e, vQ0, 32)
    zero(e, vVA0, 16)
    zero(e, vH[0], 16)
    if opt.get("stamps") or opt.get("total"):
        for i in range(88, 96):
            e(f"s_mov_b32 s{i}, 0")
    e(f"""s_mov_b32 s82, 0x00ff00ff
    s_mov_b32 s83, 0x00ff00ff
    s_mov_b32 s84, 0xff00ff00
    s_mov_b32 s85, 0xff00ff00
    s_lshr_b32 {sKMB}, {sH}, 3
    s_lshl_b32 {sKMB}, {sKMB}, 14
    s_and_b32 {sU0}, {sH}, 7
    s_lshl_b32 {sU0}, {sU0}, 10
    s_add_u32 {sKMB}, {sKMB}, {sU0}""")
    for k in (1, 2, 3):
        e(f"s_xor_b32 {sSC[k]}, {sSC[0]}, {k << 11}")
    next(lw)
    tl(e, opt, 2)
    e(f"""s_lshl_b32 {sU0}, {sA}, 16
    s_mul_i32 {sU1}, {sWAVE}, {opt.get('wst', 4096)}
    s_add_u32 {sU0}, {sU0}, {sU1}
    s_add_u32 {sMEMR}, {sU0}, {MEMB}
    s_add_u32 {sOR}, {sU0}, {OB}
    s_add_u32 {sMEMW}, {sOW}, {MEMB + 0x8000}
    s_add_u32 {sOW}, {sOW}, {OB}
    s_mov_b32 {sSTEP}, 0
    s_mov_b32 {sSEL}, 0
    s_mov_b32 {sPROG}, 0
    s_barrier""")
    wait_news(e, B_CHAIN | B_WORK | B_VOTE, vT0, vT1, sSEL)
    e(f"""s_and_b32 {sU0}, {sSEL}, 1
    s_lshl_b32 {sU0}, {sU0}, 13
    s_add_u32 {sPXB}, {sPXB}, {sU0}
    s_add_u32 {sPXB}, {sPXB}, {PXF}
    s_add_u32 {sKMB}, {sKMB}, {sU0}
    s_add_u32 {sKMB}, {sKMB}, {KM}""")
    step_pages(e)
    tl(e, opt, 3)
    e(f"""s_cmp_eq_u32 {sWAVE}, 1
    s_cbranch_scc0 Lc_first
    s_mov_b32 {sU1}, 1""")
    wait_kv(e, sU1)
    load_kv(e)
    span(e, opt, 1)
    e("s_waitcnt vmcnt(0)\nLc_first:\ns_barrier")
    for i in range(4):
        read_kv(e, i)
    tl(e, opt, 4)
    zero(e, 254, 2)
    srd(e, rB1, pMEM0, 16384)
    e(f"""v_lshrrev_b32 v{vT0}, 3, v0
    v_and_b32 v{vT1}, 7, v0
    v_lshlrev_b32 v{vT1}, 11, v{vT1}
    v_lshl_add_u32 v{vT0}, v{vT0}, 6, v{vT1}
    s_lshl_b32 {sU0}, {sWAVE}, 9""")
    for c in range(4):
        e(f"buffer_load_dwordx4 {vr(vA + 4 * c)}, v{vT0}, {R(rB1)}, {sU0} offen offset:{16 * c}")
    if opt.get("stamps") or opt.get("total"):
        e("s_memtime s[96:97]\ns_memrealtime s[100:101]\ns_waitcnt lgkmcnt(0)\ns_mov_b32 s88, s96\ns_mov_b32 s20, s96")
    e(f"""s_cmp_eq_u32 {sWAVE}, 0
    s_cbranch_scc1 LlA_first
    s_branch LhA_first""")
    helper(e, opt)
    leader(e, opt)
    e("L_chain_done:")
    tl(e, opt, 5)
    if opt.get("tl"):
        for k in range(4):
            e(f"v_mov_b32 v254, s{10 + 2 * k}\ns_mov_b64 exec, 1\nbuffer_store_dword v254, v255, {R(rWS)}, s99 offen offset:{12 + 4 * k}\ns_mov_b64 exec, -1")
    tr_out(e, opt)
    e("s_endpgm")
```

```python
import math
import os
import struct
from asmlib import Asm, vr, ar, sr

KNAME = "concat_heads__memory_aug_recurrent_mem_tr__ssm_conv_s4__prompt_kernel"
MB = 1 << 20
WS_BYTES = 256 * MB
LDS_BYTES = 163840

LOC = 2 * MB
MEMB = LOC
OB = LOC + 256 * 1024
SC = LOC + 512 * 1024
FLG = LOC + MB
FO = FLG + 8192
FP = FLG + 16384
DIAG = LOC + MB + 65536
XF = 8 * MB
KX = 16 * MB
VX = 32 * MB
OX = VX
OP = 96 * MB
PXF = 128 * MB
KM = 148 * MB
PROBE = 164 * MB

NSEG = 64
QSCALE = (128 ** -0.5) * math.log2(math.e)
SPIN_BUDGET = 400000


def f2u(x):
    return struct.unpack("<I", struct.pack("<f", x))[0]


sWAVE, sXCC, sRANK, sT = "s4", "s5", "s6", "s7"
pX, pMEM0, pWQ, pWK, pWV, pWO, pU = 8, 10, 12, 14, 16, 18, 22
pARE, pAIM, pBRE, pBIM, pCRE, pCIM, pLDT, pDSK = 24, 26, 28, 30, 32, 34, 36, 38
pOUT, pDBG, pWS = 40, 42, 44
rWS, rB1, rB2 = 48, 52, 56
sTO = "s46"
sA = "s47"


def srd(e, r, p, nbytes):
    e(f"""s_mov_b32 s{r}, s{p}
    s_and_b32 s{r + 1}, s{p + 1}, 0xffff
    s_mov_b32 s{r + 2}, {nbytes}
    s_mov_b32 s{r + 3}, 0x20000""")


def R(r):
    return f"s[{r}:{r + 3}]"


def spin_fail(e, again, giveup):
    e(f"""s_sub_u32 {sTO}, {sTO}, 1
    s_cbranch_scc0 {again}
    s_mov_b32 {sTO}, 0
    s_branch {giveup}""")


TL = DIAG + 0x80000


def tl(e, opt, i):
    if not opt.get("tl"):
        return
    e(f"""s_memrealtime s[100:101]
    s_lshl_b32 s99, {sXCC}, 5
    s_add_u32 s99, s99, {sRANK}
    s_lshl_b32 s99, s99, 2
    s_add_u32 s99, s99, {sWAVE}
    s_lshl_b32 s99, s99, 6
    s_add_u32 s99, s99, {TL + 4 * i}
    s_waitcnt lgkmcnt(0)
    v_mov_b32 v254, {'s98' if i == 0 else 's100'}
    v_mov_b32 v255, 0
    s_mov_b64 exec, 1
    buffer_store_dword v254, v255, {R(rWS)}, s99 offen
    s_mov_b64 exec, -1""")


WP = DIAG + 0xa0000


def wp(e, opt, i):
    if not opt.get("wp"):
        return
    e("s_memtime s[96:97]\ns_waitcnt lgkmcnt(0)")
    if i < 0:
        for k in range(84, 96):
            e(f"s_mov_b32 s{k}, 0")
    else:
        e(f"s_sub_u32 s97, s96, s83\ns_add_u32 s{84 + i}, s{84 + i}, s97")
    e("s_mov_b32 s83, s96")


def wp_out(e, opt):
    if not opt.get("wp"):
        return
    e(f"""s_lshl_b32 s99, {sXCC}, 5
    s_add_u32 s99, s99, {sRANK}
    s_lshl_b32 s99, s99, 2
    s_add_u32 s99, s99, {sWAVE}
    s_lshl_b32 s99, s99, 6
    s_add_u32 s99, s99, {WP}
    v_mov_b32 v255, 0""")
    for k in range(12):
        e(f"v_mov_b32 v254, s{84 + k}\nbuffer_store_dword v254, v255, {R(rWS)}, s99 offen offset:{4 * k}")


def span(e, opt, i):
    if not opt.get("span"):
        return
    e("s_memrealtime s[100:101]\ns_waitcnt lgkmcnt(0)")
    if i == 0:
        e("s_not_b32 s100, s98")
    e(f"""v_mov_b32 v254, s100
    v_mov_b32 v255, 0
    s_mov_b64 exec, 1
    global_atomic_umax v255, v254, {sr(pDBG)} offset:{12 + 4 * i} sc1
    s_mov_b64 exec, -1""")


def entry(e, opt):
    if opt.get("tl") or opt.get("span"):
        e("s_memrealtime s[98:99]")
    e(f"""s_cmp_ge_u32 s2, 256
    s_cbranch_scc1 L_exit
    s_load_dwordx4 s[40:43], s[0:1], 128
    s_load_dwordx2 s[44:45], s[0:1], 144
    s_load_dwordx16 s[8:23], s[0:1], 0
    s_load_dwordx16 s[24:39], s[0:1], 64
    s_getreg_b32 {sXCC}, hwreg(HW_REG_XCC_ID, 0, 3)
    v_lshrrev_b32 v1, 6, v0
    v_readfirstlane_b32 {sWAVE}, v1
    v_and_b32 v0, 63, v0
    s_mov_b32 {sTO}, {SPIN_BUDGET}
    s_lshl_b32 {sT}, {sXCC}, 5
    v_mov_b32 v1, {sT}
    v_mov_b32 v2, 1
    v_mov_b32 v3, 0
    v_mov_b32 v4, 0
    s_waitcnt lgkmcnt(0)
    s_cmp_eq_u32 {sWAVE}, 0
    s_cbranch_scc0 L_no_ticket
    s_mov_b64 exec, 1
    global_atomic_add v3, v1, v2, {sr(pDBG)} sc0 sc1""")
    if opt.get("ipf", 1):
        e("""s_mov_b64 exec, 0xffffffff
        s_getpc_b64 s[60:61]
        L_pc:
        s_lshr_b32 s62, s2, 3
        s_lshl_b32 s62, s62, 12
        v_lshl_add_u32 v5, v0, 7, s62
        v_min_u32 v5, L_code_end-L_pc, v5
        global_load_dword v100, v5, s[60:61]
        s_mov_b64 exec, 1""")
    e(f"""s_waitcnt vmcnt({1 if opt.get("ipf", 1) else 0})
    ds_write_b32 v4, v3
    s_waitcnt lgkmcnt(0)
    s_mov_b64 exec, -1
    L_no_ticket:
    s_barrier
    ds_read_b32 v3, v4
    s_waitcnt lgkmcnt(0)
    v_readfirstlane_b32 {sRANK}, v3
    s_barrier""")
    srd(e, rWS, pWS, WS_BYTES)
    e(f"""s_cmp_ge_u32 {sRANK}, 32
    s_cbranch_scc1 L_exit""")
    tl(e, opt, 0)
    tl(e, opt, 1)
    e(f"""s_and_b32 {sA}, {sXCC}, 3
    s_cmp_lt_u32 {sXCC}, 4
    s_cbranch_scc1 L_chain
    s_branch L_worker
    L_exit:
    s_endpgm""")


C_CHAIN, C_WORK, C_XF1, C_XF2, C_VOTE = (4, 128), (68, 128), (36, 32), (40, 32), (100, 32)
D_NEWS = 132
B_CHAIN, B_WORK, B_XF1, B_XF2, B_VOTE, B_SEL = 1, 2, 4, 8, 16, 32


def arrive(e, ctr, bit, va, vd, vote=None):
    off, total = ctr
    sk = e.lab("arr")
    e(f"v_mov_b32 v{va}, 0")
    if vote:
        e(f"s_add_u32 {vote}, {vote}, {1 << 24}\nv_mov_b32 v{vd}, {vote}")
    else:
        e(f"v_mov_b32 v{vd}, 1")
    e(f"""s_mov_b64 exec, 1
    global_atomic_add v{vd}, v{va}, v{vd}, {sr(pDBG)} offset:{off} sc0 sc1
    s_waitcnt vmcnt(0)
    v_readfirstlane_b32 {sT}, v{vd}""")
    if vote:
        e(f"""s_add_u32 {sT}, {sT}, {vote}
        s_lshr_b32 {vote}, {sT}, 24
        s_cmp_eq_u32 {vote}, {total}
        s_cbranch_scc0 {sk}
        s_and_b32 {sT}, {sT}, 0xffffff
        s_cmp_gt_u32 {sT}, {total * 1024}
        s_cselect_b32 {sT}, {bit | B_SEL}, {bit}
        v_mov_b32 v{vd}, {sT}""")
    else:
        e(f"""s_cmp_eq_u32 {sT}, {total - 1}
        s_cbranch_scc0 {sk}
        v_mov_b32 v{vd}, {bit}""")
    e(f"""global_atomic_or v{va}, v{vd}, {sr(pDBG)} offset:{D_NEWS} sc1
    {sk}:
    s_mov_b64 exec, -1""")


def wait_news(e, bits, va, vd, sel=None):
    top, ok = e.lab("news"), e.lab("newsok")
    e(f"""v_mov_b32 v{va}, 0
    {top}:
    global_load_dword v{vd}, v{va}, {sr(pDBG)} offset:{D_NEWS} sc1
    s_waitcnt vmcnt(0)
    v_readfirstlane_b32 {sT}, v{vd}""")
    if sel:
        e(f"s_bfe_u32 {sel}, {sT}, 0x10005")
    e(f"""s_and_b32 {sT}, {sT}, {bits}
    s_cmp_eq_u32 {sT}, {bits}
    s_cbranch_scc1 {ok}
    s_sleep 2""")
    spin_fail(e, top, ok)
    e(f"{ok}:")


def wrap(lines):
    here = os.path.dirname(os.path.dirname(os.path.abspath(__file__)))
    hdr = open(here + "/concat_heads__memory_aug_recurrent_mem_tr__ssm_conv_s4__prompt.s.ref").read().split("\n")
    head = []
    for l in hdr:
        if l.startswith("; @launch"):
            break
        head.append(l)
    body = "\n".join(l if l.endswith(":") else " " + l for l in lines)
    return "\n".join(head) + f"""
; @launch grid=(256,1,1) block=(256,1,1) lds={LDS_BYTES}
.amdgcn_target "amdgcn-amd-amdhsa--gfx950"
.text
.globl {KNAME}
.p2align 8
.type {KNAME},@function
{KNAME}:
{body}
.section .rodata,"a"
.p2align 6
.amdhsa_kernel {KNAME}
  .amdhsa_next_free_vgpr 512
  .amdhsa_next_free_sgpr 102
  .amdhsa_accum_offset 256
  .amdhsa_group_segment_fixed_size 0
  .amdhsa_kernarg_size 152
  .amdhsa_user_sgpr_count 2
  .amdhsa_user_sgpr_kernarg_segment_ptr 1
  .amdhsa_system_sgpr_workgroup_id_x 1
  .amdhsa_float_denorm_mode_32 3
.end_amdhsa_kernel
"""
```

```python
from gen_common import *
import gen_ssm

sROLE, sHL, sH, sSEG, sSEL = "s60", "s61", "s62", "s63", "s64"
sXO, sM0, sOUT, sFL, sU0, sU1, sU2 = "s65", "s66", "s67", "s68", "s69", "s70", "s71"
sG, sPRE, sXK, sPXS = "s72", "s73", "s82", "s74"
MASK0 = 8

vLIN, vXA, vT0, vT1 = 1, 2, 3, 4
vXB, vST, vXW = 5, 6, 7
vXR, vTCH = 10, 11
vDUM = 12
vX = 16
vACC = [80, 144]
vTMP = 208
vPK = 224
vFR = vX
AHEAD = 3
XBUF = 49152
XP = {}


def mf32(e, d, a, b, c):
    e(f"v_mfma_f32_32x32x16_bf16 {vr(d, 16)}, {a}, {b}, {'0' if c is None else vr(c, 16)}")


def probe(e):
    e(f"""s_lshl_b32 {sU0}, {sA}, 4
    s_add_u32 {sU0}, {sU0}, {sHL}
    s_lshl_b32 {sU0}, {sU0}, 7
    v_mov_b32 v{vT0}, {sU0}
    s_mov_b32 s74, -1
    s_mov_b32 s75, -1
    s_mov_b32 s76, 0
    s_mov_b64 exec, 1
    Lp_loop:""")
    for cand in range(2):
        e(f"""s_mov_b32 s77, {PROBE + cand * 8192}
        s_memtime s[78:79]
        s_waitcnt lgkmcnt(0)
        buffer_store_dword v{vT0}, v{vT0}, {R(rWS)}, s77 offen sc1
        s_waitcnt vmcnt(0)
        s_memtime s[80:81]
        s_waitcnt lgkmcnt(0)
        s_sub_u32 s80, s80, s78
        s_min_u32 s{74 + cand}, s{74 + cand}, s80""")
    e(f"""s_add_u32 s76, s76, 1
    s_cmp_lt_u32 s76, 2
    s_cbranch_scc1 Lp_loop
    s_sub_i32 s76, s75, s74
    s_min_i32 s76, s76, 400
    s_max_i32 s76, s76, -400
    s_add_i32 s76, s76, 1024
    s_mov_b64 exec, -1""")
    arrive(e, C_VOTE, B_VOTE, vT0, vT1, "s76")


def near_base(e, dst, base, seg):
    e(f"""s_lshr_b32 {sU0}, {seg}, 3
    s_xor_b32 {sU0}, {sU0}, {sSEL}
    s_and_b32 {sU0}, {sU0}, 1
    s_lshl_b32 {sU0}, {sU0}, 13
    s_lshl_b32 {dst}, {seg}, 18
    s_add_u32 {dst}, {dst}, {sU0}
    s_add_u32 {dst}, {dst}, {base}""")


def store_word(e, val, soff, flag):
    e(f"""v_mov_b32 v{vT0}, {val}
    v_mov_b32 v{vT1}, 0
    s_mov_b64 exec, 1
    buffer_store_dword v{vT0}, v{vT1}, {R(rWS)}, {soff} offen {flag}
    s_mov_b64 exec, -1""")


def wait_words(e, va, soff, lanes, need, vd=None):
    vd = vT1 if vd is None else vd
    top, ok = e.lab("w"), e.lab("wok")
    e(f"""s_mov_b64 exec, {(1 << lanes) - 1}
    {top}:
    buffer_load_dword v{vd}, v{va}, {R(rWS)}, {soff} offen sc1
    s_waitcnt vmcnt(0)
    v_cmp_gt_u32 vcc, {need}, v{vd}
    s_cbranch_vccz {ok}
    s_sleep 2""")
    spin_fail(e, top, ok)
    e(f"{ok}:\ns_mov_b64 exec, -1")


def load_weights(e, hooks, FL):
    NG = FL + 1
    vG, vTR = vTMP, vTMP + 1
    sL, sST = sM0, sOUT
    e(f"""v_lshrrev_b32 v{vT0}, 4, v0
    v_lshlrev_b32 v{vT1}, 2, v{vT0}
    v_xor_b32 v{vT1}, v{vT1}, v0
    v_and_b32 v{vT1}, 15, v{vT1}
    v_lshlrev_b32 v{vG}, {sU2}, v{vT0}
    v_lshl_add_u32 v{vG}, v{vT1}, 4, v{vG}
    s_mul_i32 {sL}, {sWAVE}, 40960
    v_bfe_u32 v{vT1}, v0, 2, 2
    v_lshl_add_u32 v{vT0}, v{vT0}, 3, v{vT1}
    v_lshl_add_u32 v{vT0}, v{vT0}, 8, {sL}
    s_cmp_eq_u32 {sROLE}, 1
    s_cselect_b32 {sST}, 3, 5
    s_cselect_b32 {sU0}, 32, 8
    s_cmp_eq_u32 {sROLE}, 3
    s_cselect_b32 {sST}, 4, {sST}
    s_cselect_b32 {sU0}, 32, {sU0}
    s_cselect_b32 {sG}, 3, 4
    s_cselect_b32 {sPRE}, {sA}, {sWAVE}
    s_cselect_b32 {sXK}, {sWAVE}, 0
    s_and_b32 {sXK}, {sXK}, 1
    s_lshl_b32 {sXK}, {sXK}, 5
    v_xor_b32 v{vT1}, {sPRE}, v{vT1}
    v_add_u32 v{vT0}, {sXK}, v{vT0}
    v_and_b32 v{vPK}, 1, v0
    v_lshl_add_u32 v{vT0}, v{vPK}, {sG}, v{vT0}
    v_bfe_u32 v{vPK}, v0, 1, 1
    v_lshl_add_u32 v{vT0}, v{vPK}, {sST}, v{vT0}""")
    for j in range(4):
        e(f"""v_xor_b32 v{vPK}, {j}, v{vT1}
        v_lshl_add_u32 v{vTR + 2 * j}, v{vPK}, 6, v{vT0}
        v_xor_b32 v{vTR + 2 * j + 1}, {sU0}, v{vTR + 2 * j}""")
    e(f"""s_lshl_b32 {sST}, {sWAVE}, 8
    s_lshl_b32 {sST}, {sST}, {sU2}
    s_add_u32 {sU1}, {sU1}, {sST}
    s_lshl_b32 {sST}, 4, {sU2}""")

    def issue(n):
        for i in range(4):
            e(f"""s_add_u32 m0, {sL}, {(n % (2 * NG)) * 4096 + i * 1024}
            buffer_load_dwordx4 v{vG}, {R(rB1)}, {sU1} offen nt lds
            s_add_u32 {sU1}, {sU1}, {sST}""")

    H = XP.get("wfh", 2)
    for n in range(H):
        issue(n)
    for n in range(16):
        e(f"s_waitcnt vmcnt({(min(16, n + H) - n - 1) * 4})")
        if n + H < 16:
            issue(n + H)
        if n in hooks:
            hooks[n]()
        if n & 1:
            kk = n >> 1
            for t in range(8):
                for q in range(2):
                    e(f"ds_read_b64_tr_b16 {ar((kk * 8 + t) * 4 + 2 * q, 2)}, v{vTR + t} offset:{(kk % NG) * 8192 + q * 1024}")
                if t == 3:
                    e("s_waitcnt lgkmcnt(0)")
            e("s_waitcnt lgkmcnt(0)")


def lane_setup(e):
    e(f"""v_and_b32 v{vT0}, 15, v0
    v_lshrrev_b32 v{vT1}, 4, v0
    v_lshlrev_b32 v{vST}, 4, v{vT0}
    v_lshl_add_u32 v{vST}, v{vT1}, 9, v{vST}
    v_and_b32 v{vXA}, 8, v0
    s_cmp_eq_u32 {sROLE}, 1
    s_cselect_b32 {sU0}, 16, 0
    v_mul_u32_u24 v{vXA}, {sU0}, v{vXA}
    s_lshl_b32 {sU0}, {sWAVE}, 14
    v_add3_u32 v{vXA}, v{vXA}, v{vST}, {sU0}
    s_mul_i32 {sU0}, {sWAVE}, 12288
    v_add_u32 v{vXR}, {sU0}, v{vLIN}""")
    for j in (1, 2, 3):
        e(f"""s_xor_b32 {sU0}, {sWAVE}, {j}
        s_mul_i32 {sU0}, {sU0}, 12288
        s_add_u32 {sU0}, {sU0}, {(j - 1) * 4096}
        v_add_u32 v{vXW + j - 1}, {sU0}, v{vLIN}""")


def x_transform(e, rnd):
    vD, vR = vTMP, vTMP + 1
    srd(e, rB2, pX, 4 * MB)
    e(f"""s_add_u32 {sU1}, {sHL}, {8 * rnd}
    s_lshl_b32 {sU1}, {sU1}, 2
    s_add_u32 {sU1}, {sU1}, {sA}
    s_lshl_b32 {sU1}, {sU1}, 16
    v_lshrrev_b32 v{vT0}, 3, v0
    s_lshl_b32 {sU0}, {sWAVE}, 3
    v_add_u32 v{vT0}, {sU0}, v{vT0}
    v_bfe_u32 v{vT1}, v{vT0}, 1, 3
    v_and_b32 v{vD}, 7, v0
    v_xor_b32 v{vD}, v{vD}, v{vT1}
    v_lshlrev_b32 v{vD}, 4, v{vD}
    v_lshl_add_u32 v{vD}, v{vT0}, 11, v{vD}
    s_lshl_b32 {sU2}, {sWAVE}, 10""")
    for ln in range(16):
        e(f"""s_add_u32 m0, {sU2}, {ln * (4096 - 128)}
        buffer_load_dwordx4 v{vD}, {R(rB2)}, {sU1} offen offset:{ln * 128} nt lds""")
    e(f"""v_and_b32 v{vT0}, 31, v0
    s_lshl_b32 {sU0}, {sWAVE}, 14
    v_lshl_add_u32 v{vPK}, v{vT0}, 7, {sU0}
    v_bfe_u32 v{vT1}, v{vT0}, 1, 3
    v_lshrrev_b32 v{vT0}, 5, v0
    s_add_u32 {sU1}, {sU1}, {sU0}""")
    for j in range(4):
        e(f"""v_add_u32 v{vPK + 1}, {2 * j}, v{vT0}
        v_xor_b32 v{vPK + 1}, v{vPK + 1}, v{vT1}
        v_lshl_add_u32 v{vR + j}, v{vPK + 1}, 4, v{vPK}""")
    e("s_waitcnt vmcnt(0)\ns_barrier")
    for h in range(2):
        for n in range(8 * h, 8 * h + 8):
            e(f"ds_read_b128 {vr(vX + 4 * n)}, v{vR + (n & 3)} offset:{(n >> 2) * 4096}")
        for n in range(8 * h, 8 * h + 8):
            if n % 4 == 0:
                e(f"s_add_u32 {sU2}, {sU1}, {XF + 1024 * n}")
            e(f"""s_waitcnt lgkmcnt({7 - (n & 7)})
            buffer_store_dwordx4 {vr(vX + 4 * n)}, v{vLIN}, {R(rWS)}, {sU2} offen offset:{1024 * (n & 3)} sc1""")


def x_touch(e, mode, ahead):
    e(f"s_add_u32 {sU1}, {sXO}, {ahead * 0x10000}")
    n = 2 if mode == "Q" else 1
    for i in range(n):
        e(f"buffer_load_dwordx4 {vr(vDUM)}, v{vTCH}, {R(rWS)}, {sU1} offen offset:{1024 * i} sc1")
    return n


def in_load(mode, kk, rt):
    d = vr(vX + 4 * (2 * kk + rt))
    pre = f"s_add_u32 {sXK}, {sXO}, {kk * 2048}\n" if rt == 0 and kk % 2 == 0 else ""
    off = (kk & 1) * 2048 + rt * (128 if mode == "V" else 256)
    if mode == "O":
        return pre + f"buffer_load_dwordx4 {d}, v{(vXA, vXB)[rt]}, {R(rWS)}, {sXK} offen offset:{(kk & 1) * 2048} sc1"
    return pre + f"buffer_load_dwordx4 {d}, v{vXA}, {R(rWS)}, {sXK} offen offset:{off} sc1"


def tile(acc, j, t, rt, mode="K"):
    if mode == "O":
        return acc + ((rt * 2 + t) * 4 + j) * 4
    return acc + ((j * 2 + rt) * 2 + t) * 4


def retire_ops(mode, acc, xb, qaddr=None, again=False):
    ops = []
    for j in (1, 2, 3):
        for i in range(4):
            ops.append(("ds", f"ds_write_b128 v{vXW + j - 1}, {vr(acc + 16 * j + 4 * i)} offset:{xb + 1024 * i}"))
    ops.append(("bar", "s_waitcnt lgkmcnt(0)\ns_barrier"))
    for j in (1, 2, 3):
        for i in range(4):
            ops.append(("ds", f"ds_read_b128 {vr(acc + 16 * j + 4 * i)}, v{vXR} offset:{xb + 4096 * (j - 1) + 1024 * i}"))
    for j in (1, 2, 3):
        ops.append(("w", f"s_waitcnt lgkmcnt({4 * (3 - j)})"))
        if j == 3 and again:
            ops.append(("bar", "s_barrier"))
        for i in range(16):
            ops.append(("v", f"v_add_f32 v{acc + i}, v{acc + i}, v{acc + 16 * j + i}"))
    if mode == "O":
        return ops
    for u in range(2):
        src = [tile(acc, 0, u, 0), tile(acc, 0, u, 1)] if mode == "V" else [tile(acc, 0, 0, u), tile(acc, 0, 1, u)]
        for i in range(4):
            r = src[i >> 1] + 2 * (i & 1)
            if mode == "Q":
                ops.append(("v", f"v_mul_f32 v{r}, {hex(f2u(QSCALE))}, v{r}"))
                ops.append(("v", f"v_mul_f32 v{r + 1}, {hex(f2u(QSCALE))}, v{r + 1}"))
            ops.append(("v", f"v_cvt_pk_bf16_f32 v{vPK + 4 * u + i}, v{r}, v{r + 1}"))
        if mode == "Q":
            ops.append(("ds", f"ds_write_b128 v{qaddr[0]}, {vr(vPK + 4 * u)} offset:{qaddr[1] + 256 * u}"))
        else:
            ops.append(("vm", f"buffer_store_dwordx4 {vr(vPK + 4 * u)}, v{vST}, {R(rWS)}, {sOUT} offen offset:{256 * u} sc1"))
    if mode in "KV":
        ops += [("v", f"s_add_u32 {sPXS}, {sPXS}, 0x40000"), ("v", f"s_and_b32 {sU0}, {sPXS}, 0x200000"),
                ("v", f"s_lshr_b32 {sU0}, {sU0}, 8"), ("v", f"s_xor_b32 {sU0}, {sU0}, {sPXS}"),
                ("vm", f"buffer_store_dwordx4 {vr(vTMP)}, v{vLIN}, {R(rWS)}, {sU0} offen sc1")]
    return ops


class VM:
    def __init__(self, e, hist):
        self.e, self.q = e, list(hist)

    def add(self, tag, n=1):
        self.q += [tag] * n

    def wait(self, tag):
        if tag in self.q:
            left = self.q[::-1].index(tag)
            self.e(f"s_waitcnt vmcnt({min(left, 63)})")
            self.q = self.q[len(self.q) - left:]

    def aged(self):
        return [t[1] if isinstance(t, tuple) else ("old_" + t if isinstance(t, str) and not t.startswith("old_") else "old_")
                for t in self.q]


PRIMED = [kk for kk in range(8) for _ in range(2)]


def segment(e, mode, b, retire, hist, reload=True, hooks=None, refill=None):
    acc = vACC[b]
    todo = list(retire)
    vm = VM(e, hist)
    cool = 0
    n = 0
    for kk in range(8):
        if XP.get("wpk") == mode and reload:
            wp(e, XP, 2 + kk)
        vm.wait(kk)
        for j in range(4):
            order = ((0, 0), (1, 0), (1, 1), (0, 1))
            for t, rt in order:
                d = vr(tile(acc, j, t, rt, mode))
                w, x = ar((kk * 8 + 2 * j + t) * 4), vr(vX + 4 * (2 * kk + rt))
                a_, b_ = (x, w) if mode == "V" else (w, x)
                e(f"v_mfma_f32_16x16x32_bf16 {d}, {a_}, {b_}, {d if kk else 0}")
                i = n % 16
                if reload and kk and i in (0, 2):
                    assert not (hooks and n in hooks)
                    e(in_load(mode, kk - 1, i >> 1))
                    vm.add(("n", kk - 1))
                elif refill and kk and i in (0, 2) and 2 * (kk - 1) + (i >> 1) in refill:
                    refill[2 * (kk - 1) + (i >> 1)](vm)
                elif hooks and n in hooks:
                    hooks[n](vm)
                elif todo and n >= 2:
                    if cool:
                        cool -= 1
                    else:
                        for _ in range(2):
                            kind, txt = todo.pop(0)
                            if kind == "vw":
                                vm.wait(txt)
                            else:
                                e(txt)
                            if kind == "vm":
                                vm.add("st")
                            if txt.startswith("ds_write"):
                                cool = 2
                            if kind != "v" or not todo or todo[0][0] != "v":
                                break
                n += 1
    assert not todo, len(todo)
    if reload:
        e(in_load(mode, 7, 0))
        e(in_load(mode, 7, 1))
        vm.add(("n", 7), 2)
    return vm


def steady(fn):
    h = fn(Asm(), PRIMED)
    h2 = fn(Asm(), h)
    assert fn(Asm(), h2) == h2
    return h2


def prime(e, mode):
    for kk in range(8):
        for rt in range(2):
            e(in_load(mode, kk, rt))


def flush(e, ops):
    for kind, txt in ops:
        e(txt)


def role_kv(e, mode, opt):
    e(f"""Lw_{mode}:
    s_lshl_b32 {sOUT}, {sH}, 2
    s_add_u32 {sOUT}, {sOUT}, {sWAVE}
    s_lshl_b32 {sOUT}, {sOUT}, 11
    s_add_u32 {sOUT}, {sOUT}, {KX if mode == 'K' else VX}""")
    prime(e, mode)
    e(f"s_add_u32 {sXO}, {sXO}, 0x10000")
    for i in range(4):
        e(f"v_mov_b32 v{vTMP + i}, -1")
    if mode == "K":
        e(f"""s_lshl_b32 {sU0}, {sHL}, 1
        s_lshr_b32 {sU1}, {sWAVE}, 1
        s_add_u32 {sU0}, {sU0}, {sU1}
        s_lshl_b32 {sPXS}, {sU0}, 14
        s_and_b32 {sU0}, {sWAVE}, 1
        s_lshl_b32 {sU0}, {sU0}, 12
        s_add_u32 {sPXS}, {sPXS}, {sU0}
        s_lshl_b32 {sU0}, {sA}, 10
        s_add_u32 {sPXS}, {sPXS}, {sU0}
        s_add_u32 {sPXS}, {sPXS}, {PXF}""")
    else:
        e(f"""s_lshr_b32 {sPXS}, {sH}, 1
        s_lshl_b32 {sPXS}, {sPXS}, 14
        s_and_b32 {sU0}, {sH}, 1
        s_lshl_b32 {sU0}, {sU0}, 2
        s_add_u32 {sU0}, {sU0}, {sWAVE}
        s_lshl_b32 {sU0}, {sU0}, 10
        s_add_u32 {sPXS}, {sPXS}, {sU0}
        s_add_u32 {sPXS}, {sPXS}, {(WS_BYTES if "C" in opt.get("skip", "") else KM) - 0x40000}""")

    def adv(out):
        e(f"s_add_u32 {sSEG}, {sSEG}, 1\ns_add_u32 {sXO}, {sXO}, 0x10000")
        if out:
            e(f"s_add_u32 {sOUT}, {sOUT}, 0x40000")

    FIRST = 2

    def seg(e, b, hist, full):
        def flag(vm):
            vm.wait("old_st")
            e(f"s_sub_u32 {sU0}, {sSEG}, 1\ns_max_u32 {sU0}, {sU0}, {FIRST}")
            store_word(e, sU0, sFL, "sc1")
            vm.add("flag")
        hooks = {117: lambda vm: vm.add("t", x_touch(e, mode, AHEAD - 1))}
        if full:
            hooks[53] = flag
        ops = retire_ops(mode, vACC[1 - b], (1 - b) * XBUF) if full else []
        return segment(e, mode, b, ops, hist, hooks=hooks).aged()

    for i in range(FIRST):
        seg(e, i & 1, PRIMED if i == 0 else [], False)
        if i == 0:
            wait_news(e, B_VOTE, vT0, vT1, sSEL)
            e(f"s_lshl_b32 {sU0}, {sSEL}, 13\ns_add_u32 {sPXS}, {sPXS}, {sU0}")
        flush(e, retire_ops(mode, vACC[i & 1], (i & 1) * XBUF))
        e("s_waitcnt vmcnt(0)")
        store_word(e, i + 1, sFL, "sc1")
        tl(e, opt, 10 + i)
        adv(True)
    seg(e, 0, [], False)
    adv(False)
    hist = steady(lambda a, h: seg(a, 0, h, True))
    e(f"s_waitcnt vmcnt(0)\nLw_{mode}loop:\ns_cmp_eq_u32 {sSEG}, 27\ns_cbranch_scc0 Lw_{mode}xf")
    wait_news(e, B_XF2, vT0, vT1)
    e(f"Lw_{mode}xf:")
    seg(e, 1, hist, True)
    adv(True)
    e(f"s_cmp_eq_u32 {sSEG}, {NSEG}\ns_cbranch_scc1 Lw_{mode}end")
    seg(e, 0, hist, True)
    adv(True)
    e(f"s_branch Lw_{mode}loop\nLw_{mode}end:")
    flush(e, retire_ops(mode, vACC[1], XBUF))
    e("s_waitcnt vmcnt(0)")
    store_word(e, NSEG, sFL, "sc1")
    e("s_waitcnt vmcnt(0) lgkmcnt(0)\ns_branch L_ssm")


QB, VB, MBUF = XBUF, XBUF + 65536, XBUF + 98304
vKA, vVA, vFA, vQW, vQ3, vQR, vVR, vFC, vMX, vSUM = 232, 233, 234, 235, 236, 237, 238, 239, 240, 242
sAS, sNEED, sKV, sFQ, sKMA, sGOT = "s74", "s75", "s76", "s77", "s78", "s79"
vMR = 5
vK, vQ = vX, vX + 32


def att_setup(e):
    ok = e.lab("kvok")
    e(f"""s_add_u32 {sAS}, {sAS}, 4
    s_add_u32 {sNEED}, {sAS}, 1
    s_lshl_b32 {sOUT}, {sAS}, 18
    s_and_b32 {sU0}, {sAS}, 8
    s_lshl_b32 {sU0}, {sU0}, 10
    s_xor_b32 {sKMA}, {sM0}, {sU0}
    s_add_u32 {sKMA}, {sKMA}, {sOUT}
    s_lshl_b32 {sU0}, {sH}, 13
    s_add_u32 {sOUT}, {sOUT}, {sU0}
    s_cmp_ge_u32 {sKV}, {sNEED}
    s_cbranch_scc1 {ok}""")
    wait_words(e, vFA, sFQ, 8, sNEED)
    e(f"v_readlane_b32 {sKV}, v{vT1}, 0")
    for i in range(1, 8):
        e(f"v_readlane_b32 {sU0}, v{vT1}, {i}\ns_min_u32 {sKV}, {sKV}, {sU0}")
    e(f"{ok}:")


def att_fetch_v(e, j):
    e(f"""s_lshl_b32 {sU0}, {sWAVE}, 13
    s_add_u32 m0, {sU0}, {VB + (j >> 2) * 4096}
    s_add_u32 {sU0}, {sOUT}, {VX + (j >> 2) * 4096}
    buffer_load_dwordx4 v{vLIN}, {R(rWS)}, {sU0} offen offset:{1024 * (j & 3)} sc1 lds""")
    return 1


def att_fetch_k(e, j):
    if j % 4 == 0:
        e(f"s_add_u32 {sXK}, {sOUT}, {KX + j * 1024}")
    e(f"buffer_load_dwordx4 {vr(vK + 4 * j)}, v{vLIN}, {R(rWS)}, {sXK} offen offset:{1024 * (j & 3)} sc1")
    return 1


def att_peek(e):
    e(f"""v_mov_b32 v{vT0}, 0
    buffer_load_dword v{vFC}, v{vT0}, {R(rWS)}, {sKMA} offen offset:4080 sc1""")
    return 1


def att_fetch_m(e):
    e(f"s_lshl_b32 {sU0}, {sWAVE}, 12\ns_add_u32 m0, {sU0}, {MBUF}")
    for g in range(4):
        e(f"buffer_load_dwordx4 v{vLIN}, {R(rWS)}, {sKMA} offen offset:{1024 * g} sc1 lds")


def att_try(e, vm):
    sk = e.lab("notry")
    vm.wait("peek")
    e(f"""v_cmp_eq_u32 vcc, -1, v{vFC}
    s_mov_b32 {sGOT}, 0
    s_cbranch_vccnz {sk}
    s_mov_b32 {sGOT}, 1""")
    att_fetch_m(e)
    e(f"{sk}:")


def attention(e, opt):
    vS, vSM, vKM, vP, vPM = 208, 80, 96, 244, 252
    vVF = [80, 92]
    vO = [104, 120]
    neg = f2u(-999292928.0 * math.log2(math.e))
    got = e.lab("gotm")
    for i in range(8):
        e(f"ds_read_b128 {vr(vQ + 4 * i)}, v{vQR} offset:{1024 * i}")
    e("s_waitcnt vmcnt(0)")
    for i in range(8):
        e(f"s_waitcnt lgkmcnt({7 - i})")
        mf32(e, vS, vr(vK + 4 * i), vr(vQ + 4 * i), vS if i else None)
    poll, fetch, ok = e.lab("pollm"), e.lab("fetchm"), e.lab("okm")
    e(f"s_cmp_eq_u32 {sGOT}, 1\ns_cbranch_scc1 {got}\n{poll}:")
    att_peek(e)
    e(f"""s_waitcnt vmcnt(0)
    v_cmp_eq_u32 vcc, -1, v{vFC}
    s_cbranch_vccz {fetch}
    s_sleep 1""")
    spin_fail(e, poll, fetch)
    e(f"{fetch}:")
    att_fetch_m(e)
    e(f"s_waitcnt vmcnt(0)\n{got}:")
    for g in range(4):
        e(f"ds_read_b32 v{vSM + g}, v{vMR} offset:{1024 * g}")
    e(f"""s_waitcnt lgkmcnt(0)
    v_max3_u32 v{vSM}, v{vSM}, v{vSM + 1}, v{vSM + 2}
    v_max_u32 v{vSM}, v{vSM}, v{vSM + 3}
    v_cmp_eq_u32 vcc, -1, v{vSM}
    s_cbranch_vccz {ok}""")
    spin_fail(e, fetch, ok)
    e(f"{ok}:")
    wp(e, opt, 5)
    for i in range(8):
        e(f"ds_read_b128 {vr(vKM + 4 * i)}, v{vKA} offset:{512 * i}")
    side = [f"v_mov_b32 v{vMX}, {hex(neg)}"]
    side += [f"v_cndmask_b32 v{vS + i}, v{vMX}, v{vS + i}, {sr(MASK0 + 2 * i)}" for i in range(16)]
    side += [f"v_max3_f32 v{vMX}, v{vS}, v{vS + 1}, v{vS + 2}"]
    side += [f"v_max3_f32 v{vMX}, v{vMX}, v{vS + i}, v{vS + i + 1}" for i in range(3, 15, 2)]
    side += [f"v_max_f32 v{vMX}, v{vMX}, v{vS + 15}"]
    for i in range(8):
        e(f"s_waitcnt lgkmcnt({7 - i})")
        mf32(e, vSM, vr(vKM + 4 * i), vr(vQ + 4 * i), vSM if i else None)
        e(in_load("Q", i >> 1, i & 1))
        e("\n".join(side[:3]))
        del side[:3]
    e("\n".join(side))
    back = [in_load("Q", i >> 1, i & 1) for i in range(8, 16)]
    e(f"""{back.pop(0)}
    {back.pop(0)}
    v_max3_f32 v{vMX}, v{vMX}, v{vSM}, v{vSM + 1}
    v_max3_f32 v{vMX}, v{vMX}, v{vSM + 2}, v{vSM + 3}
    v_mov_b32 v{vSUM}, v{vMX}
    v_permlane32_swap_b32 v{vMX}, v{vSUM}
    v_max_f32 v{vMX}, v{vMX}, v{vSUM}""")
    vals = [vS + i for i in range(0, 16, 2)] + [vPK, vPK + 2]
    srcs = vals[:8] + [vSM, vSM + 2]
    for r, q in zip(vals, srcs):
        e(f"v_pk_add_f32 {vr(r, 2)}, {vr(q, 2)}, {vr(vMX, 2)} op_sel_hi:[1,0] neg_lo:[0,1] neg_hi:[0,1]")

    def v_reads(g):
        d = vVF[g & 1]
        e(f"""ds_read_b128 {vr(d)}, v{vVR} offset:{2048 * g}
        ds_read_b128 {vr(d + 4)}, v{vVR} offset:{2048 * g + 1024}
        ds_read_b32 v{d + 8}, v{vVA} offset:{1024 * g}
        ds_read_b32 v{d + 9}, v{vVA} offset:{1024 * g + 256}""")

    v_reads(0)
    v_reads(1)
    e(f"""v_mov_b64 {vr(vVF[0] + 10, 2)}, 0
    v_mov_b64 {vr(vVF[1] + 10, 2)}, 0
    v_mov_b64 {vr(vPM + 2, 2)}, 0""")
    for k, r in enumerate(vals):
        e(f"v_exp_f32 v{r}, v{r}\nv_exp_f32 v{r + 1}, v{r + 1}")
        if back and k:
            e(back.pop(0))
        if k == 2:
            e(f"v_pk_add_f32 {vr(vSUM, 2)}, {vr(vals[0], 2)}, {vr(vals[1], 2)}")
        elif k > 2:
            e(f"v_pk_add_f32 {vr(vSUM, 2)}, {vr(vSUM, 2)}, {vr(vals[k - 1], 2)}")
    e(f"""v_pk_add_f32 {vr(vSUM, 2)}, {vr(vSUM, 2)}, {vr(vals[9], 2)}
    v_add_f32 v{vSUM}, v{vSUM}, v{vSUM + 1}
    v_mov_b32 v{vSUM + 1}, v{vSUM}
    v_permlane32_swap_b32 v{vSUM}, v{vSUM + 1}
    v_add_f32 v{vSUM}, v{vSUM}, v{vSUM + 1}
    v_rcp_f32 v{vSUM}, v{vSUM}""")
    for k, r in enumerate(vals):
        e(f"""v_pk_mul_f32 {vr(r, 2)}, {vr(r, 2)}, {vr(vSUM, 2)} op_sel_hi:[1,0]
        v_cvt_pk_bf16_f32 v{vP + k}, v{r}, v{r + 1}""")
    wp(e, opt, 6)

    def out_ops(g):
        ops = [f"s_add_u32 {sU0}, {sOUT}, {OX + g * 2048}"]
        for f in range(2):
            d = vS + 8 * (g & 1) + 4 * f
            ops += [f"v_cvt_pk_bf16_f32 v{d + i}, v{vO[g & 1] + 8 * f + 2 * i}, v{vO[g & 1] + 8 * f + 2 * i + 1}" for i in range(4)]
            ops.append(f"buffer_store_dwordx4 {vr(d)}, v{vLIN}, {R(rWS)}, {sU0} offen offset:{f * 1024}")
        return ops

    for g in range(4):
        d = vVF[g & 1]
        e(f"s_waitcnt lgkmcnt({4 if g < 3 else 0})")
        side = out_ops(g - 1) if g else []
        for k, p in enumerate((vP, vP + 4, vPM)):
            mf32(e, vO[g & 1], vr(d + 4 * k), vr(p), vO[g & 1] if k else None)
            if k:
                e("\n".join(side[:6]))
                del side[:6]
        if g + 2 < 4:
            v_reads(g + 2)
    e("\n".join(out_ops(3)))
    wp(e, opt, 7)


def role_q(e, opt):
    e(f"""Lw_Q:
    s_lshl_b32 {sU0}, {sWAVE}, 11
    s_add_u32 {sU0}, {sU0}, {QB}
    v_add_u32 v{vQW}, {sU0}, v{vST}
    v_add_u32 v{vQ3}, 32768, v{vQW}
    s_lshl_b32 {sU0}, {sWAVE}, 13
    s_add_u32 {sU0}, {sU0}, {QB + 32768}
    v_add_u32 v{vQR}, {sU0}, v{vLIN}
    v_add_u32 v{vVR}, {VB - QB - 32768}, v{vQR}
    v_lshrrev_b32 v{vT0}, 5, v0
    v_and_b32 v{vT1}, 7, v0
    v_lshlrev_b32 v{vT1}, 4, v{vT1}
    v_lshl_add_u32 v{vKA}, v{vT0}, 8, v{vT1}
    s_lshl_b32 {sU0}, {sWAVE}, 12
    s_add_u32 {sU0}, {sU0}, {MBUF}
    v_add_u32 v{vMR}, {sU0}, v{vLIN}
    v_add_u32 v{vKA}, 128, v{vKA}
    v_add_u32 v{vKA}, {sU0}, v{vKA}
    v_lshl_add_u32 v{vVA}, v{vT0}, 9, v{vT1}
    v_add_u32 v{vVA}, {sU0}, v{vVA}
    v_bfe_u32 v{vT1}, v0, 3, 2
    v_lshl_add_u32 v{vVA}, v{vT1}, 2, v{vVA}
    v_bfe_u32 v{vT1}, v0, 1, 2
    v_and_b32 v{vFA}, 1, v0
    v_lshlrev_b32 v{vFA}, 2, v{vFA}
    v_lshl_add_u32 v{vFA}, v{vT1}, 4, v{vFA}
    v_and_b32 v{vT1}, 31, v0
    v_lshlrev_b32 v{vT0}, 2, v{vT0}
    v_sub_u32 v{vT1}, v{vT1}, v{vT0}""")
    prime(e, "Q")
    for i in range(16):
        e(f"v_cmp_le_i32 {sr(MASK0 + 2 * i)}, {8 * (i >> 2) + (i & 3)}, v{vT1}")
    e(f"""s_add_u32 {sXO}, {sXO}, 0x10000
    s_lshl_b32 {sFQ}, {sH}, 7
    s_add_u32 {sFQ}, {sFQ}, {FLG}
    s_sub_u32 {sAS}, {sWAVE}, 4
    s_mov_b32 {sKV}, 0
    s_mov_b32 {sG}, -1
    s_mov_b32 {sPRE}, 32768
    s_mov_b32 {sNEED}, -1
    s_mov_b32 {sKMA}, {WS_BYTES}
    s_mov_b32 {sOUT}, {WS_BYTES}
    s_waitcnt vmcnt(0)
    s_branch Lw_Qproj
    Lw_Qloop:""")
    att_setup(e)
    wp(e, opt, 0)
    last = retire_ops("Q", vACC[1], 0, (vQ3, 3 * 8192), again=True)
    e(f"s_cmp_eq_u32 {sG}, 15\ns_cbranch_scc0 Lw_Qproj\ns_waitcnt vmcnt(0)")
    store_word(e, sG, sFL, "")
    for j in range(8):
        att_fetch_k(e, j)
    for j in range(8):
        att_fetch_v(e, j)
    flush(e, last)
    e(f"s_mov_b32 {sGOT}, 0\ns_waitcnt lgkmcnt(0)\ns_barrier\ns_branch Lw_Qatt\nLw_Qproj:")

    def flag(vm):
        vm.wait("old_st")
        e(f"s_max_i32 {sU0}, {sG}, 0")
        store_word(e, sU0, sFL, "")
        vm.add("flag")

    hist = PRIMED + ["old_st"] * 8
    for i in range(4):
        hooks = {(117 if i < 3 else 5): lambda vm: vm.add("t", x_touch(e, "Q", AHEAD - 1))}
        refill = None
        if i == 0:
            hooks[21] = flag
        if i in (1, 2):
            hooks.update({13 + 24 * j: (lambda vm, j=4 * (i - 1) + j: vm.add("v", att_fetch_v(e, j))) for j in range(4)})
        if i == 3:
            hooks[7] = lambda vm: vm.add("peek", att_peek(e))
            hooks[69] = lambda vm: att_try(e, vm)
            refill = {j: (lambda vm, j=j: vm.add("k", att_fetch_k(e, j))) for j in range(8)}
        ops = retire_ops("Q", vACC[1 - (i & 1)], 0, (vQW, (i - 1) * 8192), again=True) if i else last
        hist = segment(e, "Q", i & 1, ops, hist, reload=i < 3, hooks=hooks, refill=refill).aged()
        if i < 3:
            e(f"s_add_u32 {sXO}, {sXO}, 0x10000")
        wp(e, opt, 1 + i)
    e(f"s_cmp_eq_u32 {sG}, -1\ns_cbranch_scc0 Lw_Qatt")
    wait_news(e, B_CHAIN | B_WORK | B_VOTE | B_XF2, vT0, vT1, sSEL)
    prime(e, "Q")
    e(f"""s_lshr_b32 {sM0}, {sH}, 1
    s_lshl_b32 {sM0}, {sM0}, 1
    s_add_u32 {sM0}, {sM0}, {sSEL}
    s_lshl_b32 {sM0}, {sM0}, 1
    s_and_b32 {sU0}, {sH}, 1
    s_add_u32 {sM0}, {sM0}, {sU0}
    s_lshl_b32 {sM0}, {sM0}, 12
    s_add_u32 {sM0}, {sM0}, {KM}
    s_waitcnt vmcnt(0)
    s_branch Lw_Qnext
    Lw_Qatt:""")
    attention(e, opt)
    e(f"""s_cmp_eq_u32 {sG}, 15
    s_cbranch_scc0 Lw_Qnext
    s_waitcnt vmcnt(0)""")
    store_word(e, 16, sFL, "")
    e(f"""s_branch Lw_end
    Lw_Qnext:
    v_swap_b32 v{vQW}, v{vQ3}
    v_subrev_u32 v{vQR}, {sPRE}, v{vQR}
    s_sub_u32 {sPRE}, 0, {sPRE}
    s_add_u32 {sG}, {sG}, 1
    s_add_u32 {sXO}, {sXO}, 0x10000""")
    wp(e, opt, 8)
    e("s_branch Lw_Qloop")


def role_o(e, opt):
    LAG = opt.get("olag", 7)
    DEP = LAG // 2
    vSV = [[208 + 4 * (2 * i + b) for i in range(DEP)] for b in range(2)]
    vPT, vPS, vPL = 232, 244, 247
    vOA, vFA, vPKO, vF1, vF2 = 250, 11, 14, 12, 13
    sFO, sFP, sOP, sRD, sPA = "s74", "s75", "s76", "s77", "s78"
    srd(e, rB2, pOUT, 8 * MB)
    e(f"""v_lshlrev_b32 v{vFA}, 2, v0
    s_lshr_b32 {sU0}, {sWAVE}, 1
    s_lshl_b32 {sU1}, {sU0}, 8
    v_add_u32 v{vXA}, {sU1}, v{vXA}
    v_xor_b32 v{vXB}, 0x100, v{vXA}
    v_and_b32 v{vT0}, 15, v0
    v_lshrrev_b32 v{vT1}, 4, v0
    v_lshlrev_b32 v{vT1}, 3, v{vT1}
    v_lshl_add_u32 v{vOA}, v{vT0}, 12, v{vT1}
    s_lshl_b32 {sOUT}, {sU0}, 16
    s_lshl_b32 {sU0}, {sHL}, 2
    s_add_u32 {sU1}, {sU0}, {sA}
    s_lshl_b32 {sU1}, {sU1}, 1
    s_and_b32 {sU2}, {sWAVE}, 1
    s_add_u32 {sU1}, {sU1}, {sU2}
    s_lshl_b32 {sU1}, {sU1}, 5
    s_add_u32 {sOUT}, {sOUT}, {sU1}
    s_lshl_b32 {sFO}, {sA}, 9
    s_add_u32 {sFO}, {sFO}, {FO}
    s_add_u32 {sU0}, {sU0}, {sWAVE}
    s_lshl_b32 {sFP}, {sU0}, 7
    s_add_u32 {sFP}, {sFP}, {FP}
    s_lshl_b32 {sOP}, {sU0}, 15
    s_xor_b32 {sU0}, {sSEL}, 1
    s_lshl_b32 {sU0}, {sU0}, 13
    s_add_u32 {sOP}, {sOP}, {sU0}
    s_add_u32 {sOP}, {sOP}, {OP}
    s_lshl_b32 {sXO}, {sA}, 16
    s_add_u32 {sXO}, {sXO}, {OX}""")
    for k in (1, 2, 3):
        for dst, dest, src in ((vPS, sU2, sA), (vPL, sA, sU2)):
            e(f"""s_xor_b32 {sU2}, {sA}, {k}
            s_and_b32 {sU0}, {dest}, 2
            s_add_u32 {sU0}, {sU0}, {dest}
            s_lshl_b32 {sU0}, {sU0}, 2
            s_add_u32 {sU0}, {sU0}, {src}
            s_lshl_b32 {sU0}, {sU0}, 10
            v_add_u32 v{dst + k - 1}, {sU0}, v{vLIN}""")

    def flag_addr(e, seg):
        e(f"""s_and_b32 {sU0}, {seg}, 3
        s_lshl_b32 {sU0}, {sU0}, 7
        s_add_u32 {sU2}, {sU0}, {sFO}
        s_lshr_b32 {sU1}, {seg}, 2
        s_add_u32 {sU1}, {sU1}, 1""")

    def slot(back):
        return [f"s_sub_u32 {sRD}, {sSEG}, {back}", f"s_and_b32 {sU0}, {sRD}, 2", f"s_lshl_b32 {sU0}, {sU0}, 12",
                f"s_xor_b32 {sU0}, {sU0}, {sOP}", f"s_and_b32 {sPA}, {sRD}, 15", f"s_lshl_b32 {sPA}, {sPA}, 20",
                f"s_add_u32 {sPA}, {sPA}, {sU0}"]

    def send_ops(acc):
        return [("v", l) for l in slot(1)] + \
            [("vm", f"buffer_store_dwordx4 {vr(acc + 4 * k)}, v{vPS + k - 1}, {R(rWS)}, {sPA} offen sc1") for k in (1, 2, 3)]

    def fin_load(e, back, seen, vPT=vPT, check=True):
        ok = e.lab("finok")
        e(f"s_sub_u32 {sU1}, {sSEG}, {back - 1}")
        if seen:
            e(f"""s_mov_b64 exec, 0xf
            v_cmp_gt_i32 vcc, {sU1}, v{vF2}
            s_mov_b64 exec, -1
            s_cbranch_vccz {ok}""")
        if check:
            wait_words(e, vFA, sFP, 4, sU1)
        e(f"{ok}:")
        e("\n".join(slot(back)))
        for k in range(3):
            e(f"buffer_load_dwordx4 {vr(vPT + 4 * k)}, v{vPL + k}, {R(rWS)}, {sPA} offen sc1")
        return 3

    def fin_ops(sv, back, vPT=vPT, vPKO=vPKO):
        ops = [("v", f"v_add_f32 v{sv + i}, v{sv + i}, v{vPT + 4 * k + i}") for k in range(3) for i in range(4)]
        ops += [("v", l) for l in (f"s_sub_u32 {sRD}, {sSEG}, {back}\ns_cselect_b32 {sRD}, 64, {sRD}",
                                   f"s_lshl_b32 {sU0}, {sRD}, 17", f"s_add_u32 {sU0}, {sU0}, {sOUT}")]
        ops += [("v", f"v_cvt_pk_bf16_f32 v{vPKO + i}, v{sv + 2 * i}, v{sv + 2 * i + 1}") for i in range(2)]
        ops.append(("vm", f"buffer_store_dwordx2 {vr(vPKO, 2)}, v{vOA}, {R(rB2)}, {sU0} offen"))
        return ops

    def peek(e, ahead):
        e(f"s_add_u32 {sRD}, {sSEG}, {ahead}")
        flag_addr(e, sRD)
        e(f"""s_mov_b32 {sG}, {sU1}
        s_mov_b64 exec, 0xff
        buffer_load_dword v{vF1}, v{vFA}, {R(rWS)}, {sU2} offen sc1
        buffer_load_dword v{vF2}, v{vFA}, {R(rWS)}, {sFP} offen sc1
        s_mov_b64 exec, -1""")
        return 2

    def seg(e, b, hist, reload):
        old = vACC[1 - b]

        def flag(vm):
            vm.wait("old_st")
            e(f"s_sub_u32 {sU0}, {sSEG}, 1\ns_max_i32 {sU0}, {sU0}, 0")
            store_word(e, sU0, sFL, "sc1")
            vm.add("flag")
        ops = retire_ops("O", old, (1 - b) * XBUF) + send_ops(old)
        ops += [("vw", "part")] + fin_ops(vSV[b][-1], LAG)
        chain = [old] + vSV[b]
        for d in range(DEP, 0, -1):
            ops += [("v", f"v_mov_b64 {vr(chain[d] + i, 2)}, {vr(chain[d - 1] + i, 2)}") for i in (0, 2)]
        hooks = {4: lambda vm: vm.add("part", fin_load(e, LAG, True)), 45: lambda vm: vm.add("peek", peek(e, 2)), 69: flag}
        vm = segment(e, "O", b, ops, hist, reload=reload, hooks=hooks)
        vm.wait("peek")
        return vm.aged()

    hist = steady(lambda a, h: seg(a, 0, h, True))
    assert seg(Asm(), 0, PRIMED, True) == hist

    def body(b):
        have, nxt = e.lab("have"), e.lab("nxt")
        e(f"s_cmp_eq_u32 {sPRE}, 1\ns_cbranch_scc1 {have}")
        flag_addr(e, sSEG)
        wait_words(e, vFA, sU2, 8, sU1)
        wp(e, opt, 0)
        peek(e, 1)
        prime(e, "O")
        e(f"s_add_u32 {sXO}, {sXO}, 0x40000\ns_waitcnt vmcnt(16)")
        for h in (PRIMED, hist):
            dry = e.lab("dry")
            e(f"""s_mov_b64 exec, 0xff
            v_cmp_gt_u32 vcc, {sG}, v{vF1}
            s_mov_b64 exec, -1
            s_cbranch_vccnz {dry}""")
            seg(e, b, h, True)
            wp(e, opt, 10)
            if opt.get("wp"):
                e("s_add_u32 s95, s95, 64")
            e(f"s_mov_b32 {sPRE}, 1\ns_add_u32 {sXO}, {sXO}, 0x40000\ns_branch {nxt}\n{dry}:")
            seg(e, b, h, False)
            e(f"s_mov_b32 {sPRE}, 0")
            if h is PRIMED:
                e(f"s_branch {nxt}\n{have}:")
        e(f"{nxt}:")
        wp(e, opt, 1)
        e(f"s_add_u32 {sSEG}, {sSEG}, 1")

    e(f"s_mov_b32 {sPRE}, 0\nLw_Oloop:")
    body(0)
    body(1)
    e(f"s_cmp_lt_u32 {sSEG}, {NSEG}\ns_cbranch_scc1 Lw_Oloop")
    tl(e, opt, 4)
    flush(e, retire_ops("O", vACC[1], XBUF) + send_ops(vACC[1]))
    e("s_waitcnt vmcnt(0)")
    store_word(e, NSEG, sFL, "sc1")
    tail = [(1, vACC[1])] + [(back, vSV[1 - back % 2][(back - 2) // 2]) for back in range(2, LAG + 1)]
    for back, sv in tail:
        fin_load(e, back, False, vX + 12 * back, back == 1)
    for back, sv in tail:
        e("s_waitcnt vmcnt(%d)" % (3 * (LAG - back) + back - 1))
        flush(e, fin_ops(sv, back, vX + 12 * back, vPT + 2 * (back % 4)))
    e("s_branch Lw_end")


def worker(e, opt):
    skip = opt.get("skip", "")
    XP.clear()
    XP.update(opt)

    e(f"""L_worker:
    s_lshr_b32 {sROLE}, {sRANK}, 3
    s_and_b32 {sHL}, {sRANK}, 7
    s_lshl_b32 {sH}, {sA}, 3
    s_add_u32 {sH}, {sH}, {sHL}
    v_lshlrev_b32 v{vLIN}, 4, v0
    s_mov_b32 {sSEG}, 0
    s_mov_b32 {sSEL}, 0
    s_mov_b32 {sXO}, {XF}""")
    e(f"""s_lshl_b32 {sFL}, {sH}, 7
    s_lshl_b32 {sU0}, {sWAVE}, 4
    s_add_u32 {sFL}, {sFL}, {sU0}
    s_lshl_b32 {sU0}, {sROLE}, 2
    s_add_u32 {sFL}, {sFL}, {sU0}
    s_add_u32 {sFL}, {sFL}, {FLG}
    s_lshl_b32 {sU0}, {sA}, 2
    s_add_u32 {sU0}, {sU0}, {sWAVE}
    s_lshl_b32 {sU0}, {sU0}, 7
    s_lshl_b32 {sU1}, {sHL}, 2
    s_add_u32 {sU0}, {sU0}, {sU1}
    s_add_u32 {sU0}, {sU0}, {FO}
    s_cmp_eq_u32 {sROLE}, 2
    s_cselect_b32 {sFL}, {sU0}, {sFL}
    s_add_u32 {sU0}, {sU1}, {sWAVE}
    s_lshl_b32 {sU0}, {sU0}, 7
    s_lshl_b32 {sU1}, {sA}, 2
    s_add_u32 {sU0}, {sU0}, {sU1}
    s_add_u32 {sU0}, {sU0}, {FP}
    s_cmp_eq_u32 {sROLE}, 3
    s_cselect_b32 {sFL}, {sU0}, {sFL}
    s_mov_b32 {sU1}, 0""")
    for r, ch in enumerate("KVQO"):
        if ch in skip:
            e(f"s_cmp_eq_u32 {sROLE}, {r}\ns_cbranch_scc1 Lw_noclr")
    store_word(e, sU1, sFL, "sc1")
    e(f"""Lw_noclr:
    s_cmp_eq_u32 {sROLE}, 3
    s_cbranch_scc0 Lw_nopoi""")
    for rnd in range(2):
        sk = e.lab("chore")
        x_transform(e, rnd)
        e(f"s_waitcnt vmcnt(0)\ns_barrier\ns_cmp_eq_u32 {sWAVE}, 0\ns_cbranch_scc0 {sk}")
        tl(e, opt, 8 + 2 * rnd)
        arrive(e, (C_XF1, C_XF2)[rnd], (B_XF1, B_XF2)[rnd], vT0, vT1)
        if rnd == 0:
            arrive(e, C_WORK, B_WORK, vT0, vT1)
            e("s_waitcnt vmcnt(0)")
            probe(e)
            tl(e, opt, 9)
        e(f"{sk}:\ns_barrier")
    e("Lw_nopoi:")
    tl(e, opt, 6)
    lane_setup(e)
    e(f"""s_lshl_b32 {sU0}, {sRANK}, 2
    s_add_u32 {sU0}, {sU0}, {sWAVE}
    s_lshl_b32 {sU0}, {sU0}, 10
    s_lshl_b32 {sU1}, {sU0}, 1
    s_and_b32 {sU1}, {sU1}, 0xffff
    s_cmp_lt_u32 {sROLE}, 2
    s_cselect_b32 {sU0}, {sU0}, {sU1}
    v_add_u32 v{vTCH}, {sU0}, v{vLIN}
    s_cmp_eq_u32 {sROLE}, 0
    s_cselect_b64 s[74:75], {sr(pWK)}, {sr(pWV)}
    s_cmp_eq_u32 {sROLE}, 2
    s_cselect_b64 s[74:75], {sr(pWQ)}, s[74:75]
    s_lshl_b32 {sU1}, {sH}, 8
    s_lshl_b32 {sU0}, {sA}, 21
    s_lshl_b32 {sU2}, {sHL}, 8
    s_add_u32 {sU0}, {sU0}, {sU2}
    s_cmp_eq_u32 {sROLE}, 3
    s_cselect_b64 s[74:75], {sr(pWO)}, s[74:75]
    s_cselect_b32 {sU1}, {sU0}, {sU1}
    s_cselect_b32 {sU2}, 11, 13""")
    srd(e, rB1, 74, 8 * MB)

    def first():
        e(f"""s_cmp_eq_u32 {sROLE}, 3
        s_cbranch_scc1 Lw_nordy
        s_barrier
        s_cmp_eq_u32 {sWAVE}, 0
        s_cbranch_scc0 Lw_nordy""")
        arrive(e, C_WORK, B_WORK, vT0, vT1)
        e("Lw_nordy:")

    def xzero():
        e(f"s_cmp_eq_u32 {sROLE}, 3\ns_cbranch_scc1 Lw_onews")
        tl(e, opt, 8)
        wait_news(e, B_XF1, vT0, vT1)
        tl(e, opt, 9)
        e(f"s_cmp_lt_u32 {sROLE}, 2\ns_cbranch_scc0 Lw_nox")
        for i in range(AHEAD):
            x_touch(e, "K", i)
        e("s_branch Lw_nox\nLw_onews:")
        wait_news(e, B_WORK | B_VOTE, vT0, vT1, sSEL)
        e("Lw_nox:")

    load_weights(e, {0: first, 14: xzero}, 3)
    tl(e, opt, 2)
    e("s_waitcnt vmcnt(0)")
    e("Lw_go:\ns_barrier")
    tl(e, opt, 3)
    wp(e, opt, -1)
    for r, ch in enumerate("KVQO"):
        if ch in skip:
            e(f"s_cmp_eq_u32 {sROLE}, {r}\ns_cbranch_scc1 {'L_ssm' if ch in 'KV' else 'Lw_end'}")
    e(f"""s_cmp_eq_u32 {sROLE}, 0
    s_cbranch_scc1 Lw_K
    s_cmp_eq_u32 {sROLE}, 1
    s_cbranch_scc1 Lw_V
    s_cmp_eq_u32 {sROLE}, 2
    s_cbranch_scc1 {'Lw_K' if opt.get('allk') else 'Lw_Q'}""")
    if opt.get("allk"):
        e("s_branch Lw_K")
    if not opt.get("allk"):
        role_o(e, opt)
        role_q(e, opt)
    e("Lw_end:")
    span(e, opt, 3)
    wp_out(e, opt)
    tl(e, opt, 5)
    e("s_endpgm")
    role_kv(e, "K", opt)
    role_kv(e, "V", opt)
    e("L_ssm:")
    wp(e, opt, 0)
    wp_out(e, opt)
    tl(e, opt, 4)
    if "S" not in skip:
        gen_ssm.ssm(e, opt)
    span(e, opt, 4)
    tl(e, opt, 5)
    e("L_code_end:\ns_endpgm")
```

```python
from gen_common import *

aQ, aK, aV, aO = 0, 64, 128, 192
wt = lambda bank, c, t: ar(bank + (c * 2 + t) * 8, 8)

vIDX, vLIN, vOST, vMST, vKX, vMM, vVM, vVAL = 1, 2, 3, 4, 5, 6, 7, 8
vLDSW, vT0, vT1 = 9, 10, 11
vLIN8 = 233
vCV = 12
vFL = 14
vA = 16
vQ0, vK0, vQ1, vK1 = 32, 36, 40, 44
vV0, vV1, vW0, vW1 = 48, 52, 56, 60
vP0, vP1 = 64, 68
vZ0, vZ1 = 72, 76
vSELT, vSELV, vONE, vPOI = 80, 84, 88, 92
vR = 96
vZF = 120
vKX0, vKX1, vVX0, vVX1 = 124, 128, 132, 136
vS0, vS1, vSM = 140, 144, 148
vP = [152, 168, 16, 96, 108]
vVA = 204
vVA0, vVA1 = 188, 192
vBX, vBM = 196, 200
vL, vO0, vO1 = 204, 208, 212
vE = 216
vD2 = 224
vX = 228
vM = 236
vH = [240, 248]
vSELI = 184

sJ = sRANK
sSTEP, sPROG, sSEL = "s60", "s61", "s62"
sMEMR, sMEMW, sOR, sOW = "s63", "s64", "s65", "s66"
sSC = [f"s{67 + k}" for k in range(4)]
sPXB = "s71"
sPX = [f"s{72 + k}" for k in range(4)]
sKX, sKMO, sFLG, sU0, sU1 = "s76", "s77", "s78", "s79", "s80"
sLO, sHI = "s[82:83]", "s[84:85]"
sH = "s81"
sKMB = "s87"
ZB, VB, WB, KVB = 0, 8192, 12288, 16384


def smf(e, acc, a, bank, c, t):
    e(f"v_smfmac_f32_16x16x64_bf16 {vr(acc)}, {vr(a)}, {wt(bank, c, t)}, v{vIDX}")


def mf(e, d, a, b, c=None):
    e(f"v_mfma_f32_16x16x32_bf16 {vr(d)}, {vr(a)}, {vr(b)}, {'0' if c is None else vr(c)}")


def cvt2(e, d, s):
    e(f"v_cvt_pk_bf16_f32 v{d}, v{s}, v{s + 1}\nv_cvt_pk_bf16_f32 v{d + 1}, v{s + 2}, v{s + 3}")


def zero(e, b, n):
    for i in range(0, n, 2):
        e(f"v_mov_b64 {vr(b + i, 2)}, 0")


def zero1(e, b, n):
    for i in range(n):
        e(f"v_mov_b32 v{b + i}, 0")


class Stamps:
    def __init__(self, e, on):
        self.e, self.on, self.names = e, on, []

    def __call__(self, name):
        if not self.on:
            return
        i = len(self.names)
        self.names.append(name)
        self.e(f"s_memtime s[{8 + 2 * i}:{9 + 2 * i}]")

    def collect(self, total):
        if not self.on:
            return
        e, n = self.e, len(self.names)
        e("s_waitcnt lgkmcnt(0)")
        order = list(range(n, total)) + list(range(n))
        for i in order:
            e(f"s_sub_u32 s89, s{8 + 2 * i}, s88\ns_mov_b32 s88, s{8 + 2 * i}\nv_add_u32 v{240 + i}, s89, v{240 + i}")


TRACE = DIAG + 65536


def tr(e, opt, i):
    if opt.get("trace"):
        e(f"s_memtime s[{8 + 2 * i}:{9 + 2 * i}]")


def tr_dump(e, opt):
    if not opt.get("trace"):
        return
    sk = e.lab("notr")
    e(f"""s_sub_u32 s89, {sSTEP}, 30
    s_cmp_lt_u32 s89, 8
    s_cbranch_scc0 {sk}
    s_waitcnt lgkmcnt(0)
    s_mov_b32 m0, s89""")
    for i in range(12):
        e(f"v_writelane_b32 v{7 if i < 8 else 238}, s{8 + 2 * i}, m0\ns_add_u32 m0, m0, {8 if i != 7 else -56}")
    e(f"{sk}:")


def tr_out(e, opt):
    if not (opt.get("trace") or opt.get("steps")):
        return
    e(f"""s_lshl_b32 {sU0}, {sH}, 2
    s_add_u32 {sU0}, {sU0}, {sWAVE}
    s_lshl_b32 {sU0}, {sU0}, 9
    s_add_u32 {sU0}, {sU0}, {TRACE}
    v_lshlrev_b32 v{vT1}, 2, v0
    buffer_store_dword v7, v{vT1}, {R(rWS)}, {sU0} offen
    buffer_store_dword v238, v{vT1}, {R(rWS)}, {sU0} offen offset:256""")


def load_weights(e, opt):
    NS, FL = 10, opt.get("cfl", 2)
    mats = [(aK, pWK, 8192), (aQ, pWQ, 8192), (aV, pWV, 8192), (aO, pWO, 2048)]
    vG8, vG2, vTR = 16, 17, 18
    sB8, sB2, sL = "s63", "s64", "s65"
    e(f"""v_bfe_u32 v19, v0, 2, 3
    v_and_b32 v20, 32, v0
    v_add_u32 v19, v19, v20
    v_and_b32 v20, 3, v0
    v_lshlrev_b32 v20, 4, v20
    v_lshl_add_u32 v{vG8}, v19, 13, v20
    v_lshl_add_u32 v{vG2}, v19, 11, v20
    v_lshrrev_b32 v21, 5, v0
    v_lshlrev_b32 v21, 4, v21
    v_bfe_u32 v22, v0, 4, 1
    v_lshl_add_u32 v21, v22, 2, v21
    v_bfe_u32 v22, v0, 2, 1
    v_add_u32 v21, v21, v22
    v_bfe_u32 v22, v0, 3, 1
    v_lshl_add_u32 v21, v22, 3, v21
    v_lshl_add_u32 v{vTR}, v21, 6, v20
    s_mul_i32 {sL}, {sWAVE}, {NS * 4096}
    v_add_u32 v{vTR}, {sL}, v{vTR}
    s_lshl_b32 {sB8}, {sWAVE}, 21
    s_lshl_b32 {sT}, {sA}, 5
    s_add_u32 {sT}, {sT}, {sJ}
    s_lshl_b32 {sT}, {sT}, 6
    s_add_u32 {sB8}, {sB8}, {sT}
    s_lshl_b32 {sB2}, {sA}, 2
    s_add_u32 {sB2}, {sB2}, {sWAVE}
    s_lshl_b32 {sB2}, {sB2}, 19
    s_lshl_b32 {sT}, {sJ}, 6
    s_add_u32 {sB2}, {sB2}, {sT}""")
    if opt.get("ctouch", 1):
        e(f"""s_cmp_eq_u32 {sWAVE}, 0
        s_cselect_b64 s[72:73], {sr(pWK)}, {sr(pWQ)}
        s_cmp_eq_u32 {sWAVE}, 2
        s_cselect_b64 s[72:73], {sr(pWV)}, s[72:73]
        s_cmp_eq_u32 {sWAVE}, 3
        s_cselect_b64 s[72:73], {sr(pWO)}, s[72:73]
        s_cselect_b32 s74, 11, 13
        s_cselect_b32 s75, 21, 11
        s_lshl_b32 s75, {sA}, s75
        s_lshl_b32 {sT}, {sJ}, 5
        s_lshl_b32 {sT}, {sT}, s74
        s_add_u32 s75, s75, {sT}
        v_and_b32 v19, 31, v0
        v_lshlrev_b32 v19, s74, v19
        v_lshrrev_b32 v20, 5, v0
        v_lshl_add_u32 v20, v20, 10, v19""")
        srd(e, rB1, 72, 8 * MB)
        e(f"""s_cmp_lt_u32 {sWAVE}, {opt.get("ctw", 2)}
        s_cbranch_scc1 Lc_notouch
        buffer_load_dword v21, v20, {R(rB1)}, s75 offen offset:384
        s_cmp_eq_u32 {sA}, 3
        s_cbranch_scc0 Lc_notouch
        s_mov_b64 exec, 0xffffffff
        buffer_load_dword v21, v19, {R(rB1)}, s75 offen offset:1920
        s_mov_b64 exec, -1
        Lc_notouch:""")
    state = {"srd": {}}

    def issue(n):
        m, c = divmod(n, 4)
        bank, p, pitch = mats[m]
        r = rB1 if m % 2 == 0 else rB2
        if state["srd"].get(r) != m:
            srd(e, r, p, 8 * MB)
            state["srd"][r] = m
        for i in range(4):
            row0 = i * 64 + c * 8
            e(f"""s_add_u32 m0, {sL}, {(n % NS) * 4096 + i * 1024}
            s_add_u32 {sT}, {sB8 if pitch == 8192 else sB2}, {row0 * pitch}
            buffer_load_dwordx4 v{vG8 if pitch == 8192 else vG2}, {R(r)}, {sT} offen {'nt' if opt.get('cnt', 1) else ''} lds""")

    for n in range(FL):
        issue(n)
    yield "issued"
    for n in range(16):
        m, c = divmod(n, 4)
        e(f"s_waitcnt vmcnt({(min(16, n + FL) - n - 1) * 4}) lgkmcnt(0)")
        if n == 9:
            peek_news(e, vT0, vT1)
        if n + FL < 16:
            issue(n + FL)
        if n == 13:
            yield "late"
        for t in range(2):
            for H in range(2):
                for q in range(2):
                    d = mats[m][0] + (c * 2 + t) * 8 + 4 * H + 2 * q
                    off = (n % NS) * 4096 + (32 * H + 2 * q) * 64 + 8 * t
                    e(f"ds_read_b64_tr_b16 {ar(d, 2)}, v{vTR} offset:{off}")
    e("s_waitcnt lgkmcnt(0)")
    yield "done"


def gather_load(e, soff, c):
    e(f"buffer_load_dwordx4 {vr(vA + 4 * c)}, v{vLIN}, {R(rWS)}, {soff} offen offset:{1024 * c} sc1")


def gather(e, opt, name, soff, halves, work, tail, accs, ci, gaps, used=(4, 4, 4)):
    diag = opt.get("stamps") or opt.get("total")
    for c in range(4):
        gather_load(e, soff, c)
        if c < 3:
            gaps[c]()
            filler(e, max(0, opt.get("gap", 13) + 4 - used[c]))
    def test(c):
        a = vA + 4 * c
        if halves:
            e(f"v_max_u32 v{vVAL}, v{a}, v{a + 2}\nv_cmp_eq_u32 vcc, -1, v{vVAL}")
        else:
            e(f"v_cmp_eq_u32 vcc, -1, v{a}")

    def variant(c0, spec):
        tag = "s" if spec else c0
        tr(e, opt, 1 + 5 * ci)
        for k in range(4):
            c = (c0 + k) % 4
            a = vA + 4 * c
            if k:
                e(f"s_waitcnt vmcnt({3 - k})")

            def check(i, k=k, a=a):
                if k == 0 and spec:
                    if i == 0:
                        test(0)
                    else:
                        e(f"s_cbranch_vccnz {name}_miss")
                if k and i == 0:
                    if halves:
                        e(f"v_max3_u32 v{vVAL}, v{vVAL}, v{a}, v{a + 2}")
                    elif k == 1:
                        e(f"v_mov_b32 v{vVAL}, v{a}")
                    else:
                        e(f"v_max_u32 v{vVAL}, v{vVAL}, v{a}")
                    if k == 3:
                        e(f"v_cmp_eq_u32 vcc, -1, v{vVAL}")
                if k == 3 and i == 1:
                    e(f"s_cbranch_vccnz {name}_bad{tag}\n{name}_ok{tag}:")
            work(c, k == 3, check, k == 0 and spec)
        tr(e, opt, 2 + 5 * ci)
        tail()
        e(f"s_branch {name}_join")
        e(f"{name}_bad{tag}:")
        if diag:
            e(f"s_add_u32 s{90 + ci}, s{90 + ci}, 0x10000")
        spin_fail(e, f"{name}_redo", f"{name}_ok{tag}")

    e(f"{name}_first:")
    for c0 in range(4):
        e("s_waitcnt vmcnt(3)")
        test(c0)
        e(f"s_cbranch_vccnz {name}_miss{c0}\n{name}_got{c0}:")
        variant(c0, False)
        e(f"{name}_miss{c0}:")
        gather_load(e, soff, c0)
        if diag:
            e(f"s_add_u32 s{90 + ci}, s{90 + ci}, 1")
    spin_fail(e, f"{name}_first", f"{name}_late")
    e(f"{name}_late:\ns_waitcnt vmcnt(3)\ns_branch {name}_got0\n{name}_redo:")
    for c in range(4):
        gather_load(e, soff, c)
    zero(e, *accs)
    e(f"s_branch {name}_first\n{name}_join:")


def work_a(e):
    def work(c, last, check, spec):
        a = vA + 4 * c
        smf(e, vQ0, a, aQ, c, 0)
        check(0)
        smf(e, vK0, a, aK, c, 0)
        if spec:
            check(1)
        smf(e, vQ1, a, aQ, c, 1)
        if last:
            cvt2(e, vP0, vQ0)
        smf(e, vK1, a, aK, c, 1)
        if last:
            cvt2(e, vP0 + 2, vK0)
            check(1)
    return work


def fold_a(e):
    mf(e, vZ0, vP0, vSELT)
    cvt2(e, vP1, vQ1)
    cvt2(e, vP1 + 2, vK1)
    mf(e, vZ1, vP1, vSELT)


def work_f(e):
    def work(c, last, check, spec):
        a = vA + 4 * c
        smf(e, vW0, a, aO, c, 0)
        check(0)
        smf(e, vW1, a, aO, c, 1)
        check(1)
    return work


def gaps_a(e):
    return [lambda: zero(e, vQ0, 8), lambda: zero(e, vQ1, 8), lambda: zero(e, vV0, 8)]


def gaps_f(e):
    return [lambda: zero1(e, vW0, 4), lambda: zero1(e, vW1, 4), lambda: zero1(e, vP1, 4)]


def v_tiles():
    return [(acc, c, t) for c in range(4) for acc, t in ((vV0, 0), (vV1, 1))]


def helper(e, opt):
    vt = v_tiles()
    sv = lambda k: smf(e, vt[k][0], vA + 4 * vt[k][1], aV, vt[k][1], vt[k][2])

    def tail_a():
        fold_a(e)
        e(f"ds_write_b128 v{vLDSW}, {vr(vZ0)} offset:{ZB}")
        sv(0)
        sv(1)
        e(f"ds_write_b128 v{vLDSW}, {vr(vZ1)} offset:{ZB + 4096}")
        sv(2)

    def tail_f():
        cvt2(e, vP0, vW0)
        cvt2(e, vP0 + 2, vW1)
        e(f"ds_write_b128 v{vLDSW}, {vr(vP0)} offset:{WB}")

    e("Lh_step:\ns_barrier")
    gather(e, opt, "LhA", sMEMR, True, work_a(e), tail_a, (vQ0, 16), 0, gaps_a(e))
    sv(3)
    e("s_waitcnt lgkmcnt(0)\ns_barrier")
    for k in range(4, 8):
        sv(k)
    cvt2(e, vP0, vV0)
    cvt2(e, vP0 + 2, vV1)
    e(f"ds_write_b128 v{vLDSW}, {vr(vP0)} offset:{VB}")
    e(f"""s_xor_b32 {sMEMR}, {sMEMR}, 0x8000
    s_waitcnt lgkmcnt(0)
    s_barrier
    s_cmp_eq_u32 {sSTEP}, {NSEG - 1}
    s_cbranch_scc1 L_chain_done
    s_add_u32 {sU1}, {sSTEP}, 2
    s_add_u32 {sKX}, {sKX}, 0x40000
    s_barrier""")
    gather(e, opt, "LhF", sOR, False, work_f(e), tail_f, (vW0, 8), 1, gaps_f(e))
    hd = opt.get("hd", "kw")
    done = "s_waitcnt lgkmcnt(0)\ns_barrier"
    e(f"""s_cmp_ge_u32 {sWAVE}, 2
    s_cbranch_scc1 Lh_w23
    s_cmp_ge_u32 {sPROG}, {sU1}
    s_cbranch_scc0 Lh_kvwait
    {done}
    Lh_kvok:""")
    if "k" in hd:
        load_kv(e)
    e(f"""s_add_u32 {sU1}, {sU1}, 2
    s_min_u32 {sU1}, {sU1}, {NSEG}
    s_cmp_ge_u32 {sPROG}, {sU1}
    s_cbranch_scc1 Lh_next
    s_mov_b32 {sU1}, 0""")
    wait_kv(e, sU1)
    e(f"s_branch Lh_next\nLh_kvwait:\n{done}")
    wait_kv(e, sU1)
    e(f"""s_branch Lh_kvok
    Lh_w23:
    s_xor_b32 {sOW}, {sOW}, 0x8000
    s_cmp_eq_u32 {sWAVE}, 2
    {done}""")
    if opt.get("lpos", "pre") == "help":
        e("s_cbranch_scc0 Lh_next")
        rearm(e)
        e(f"s_xor_b32 {sMEMW}, {sMEMW}, 0x8000\ns_waitcnt vmcnt(0)")
    e("Lh_next:")
    if opt.get("lpos", "pre") == "help":
        e("s_barrier")
    tr_dump(e, opt)
    e("s_waitcnt vmcnt(0)")
    e(f"""s_xor_b32 {sOR}, {sOR}, 0x8000
    s_add_u32 {sSTEP}, {sSTEP}, 1""")
    e("s_branch Lh_step")


def z_reduce(e):
    for t, z in ((0, vZ0), (1, vZ1)):
        for w in range(3):
            r = vR + (t * 3 + w) * 4
            n = t * 3 + w
            if n in (0, 1, 3):
                e(f"s_waitcnt lgkmcnt({ {0: 5, 1: 3, 3: 0}[n] })")
            for i in (0, 2):
                e(f"v_pk_fma_f32 {vr(z + i, 2)}, {vr(r + i, 2)}, {vr(vCV, 2)}, {vr(z + i, 2)}")
        cvt2(e, vZF + 2 * t, z)


def v_reduce_issue(e):
    cvt2(e, vP0, vV0)
    cvt2(e, vP0 + 2, vV1)
    e("s_barrier")
    for w in range(3):
        e(f"ds_read_b128 {vr(vR + 4 * w)}, v{vLIN} offset:{VB + 1024 * (w + 1)}")
    mf(e, vVA, vSELV, vP0)


def v_reduce_finish(e, between=None):
    for w in range(3):
        e(f"s_waitcnt lgkmcnt({2 - w})")
        mf(e, vVA, vSELV, vR + 4 * w, vVA)
    if between:
        between()
    e(f"v_cvt_pk_bf16_f32 v{vVA0}, v{vVA}, v{vVA + 1}\nv_cvt_pk_bf16_f32 v{vVA1}, v{vVA + 2}, v{vVA + 3}")


def pack_kv(e):
    e(f"""v_mov_b32_dpp v{vZF}, v{vVA0} quad_perm:[0,1,2,3] row_mask:0xf bank_mask:0x3
    v_mov_b32_dpp v{vZF + 1}, v{vVA1} quad_perm:[0,1,2,3] row_mask:0xf bank_mask:0x3
    v_mov_b32_dpp v{vZF + 2}, v{vVA0} row_ror:8 row_mask:0xf bank_mask:0x3
    v_mov_b32_dpp v{vZF + 3}, v{vVA1} row_ror:8 row_mask:0xf bank_mask:0x3""")


def publish_kv(e):
    e(f"buffer_store_dwordx4 {vr(vZF)}, v{vLIN}, {R(rWS)}, {sKMO} offen sc1")


def load_kv(e):
    e(f"""s_add_u32 {sU0}, {sKX}, {VX - KX}
    s_mov_b32 m0, {KVB}
    buffer_load_dwordx4 v{vKX}, {R(rWS)}, {sKX} offen sc1 lds
    s_mov_b32 m0, {KVB + 1024 - 128}
    buffer_load_dwordx4 v{vKX}, {R(rWS)}, {sKX} offen offset:128 sc1 lds
    s_mov_b32 m0, {KVB + 2048}
    buffer_load_dwordx4 v{vKX}, {R(rWS)}, {sU0} offen sc1 lds
    s_mov_b32 m0, {KVB + 3072 - 128}
    buffer_load_dwordx4 v{vKX}, {R(rWS)}, {sU0} offen offset:128 sc1 lds""")


def read_kv(e, i):
    e(f"ds_read_b128 {vr(vKX0 + 4 * i)}, v{vLIN} offset:{KVB + 1024 * i}")


def wait_kv(e, need):
    top, ok = e.lab("kv"), e.lab("kvok")
    e(f"""{top}:
    v_mov_b32 v{vT1}, 0
    buffer_load_dwordx2 {vr(vFL, 2)}, v{vT1}, {R(rWS)}, {sFLG} offen sc1
    s_waitcnt vmcnt(0)
    v_min_u32 v{vT0}, v{vFL}, v{vFL + 1}
    v_readfirstlane_b32 {sPROG}, v{vT0}
    s_cmp_ge_u32 {sPROG}, {need}
    s_cbranch_scc1 {ok}""")
    spin_fail(e, top, ok)
    e(f"{ok}:")


def poll_d(e, s):
    for k in (1, 2, 3):
        e(f"buffer_load_dwordx4 {vr(s + 4 * (k - 1))}, v{vLIN}, {R(rWS)}, {sSC[k]} offen sc1")
    for k in range(4):
        e(f"buffer_load_dword v{s + 12 + k}, v{vMM}, {R(rWS)}, {sSC[k]} offen sc1")


def sum_d(e, s, left):
    e(f"s_waitcnt vmcnt({left + 6})")
    for i in (0, 2):
        e(f"v_pk_add_f32 {vr(vX + i, 2)}, {vr(vS0 + i, 2)}, {vr(s + i, 2)}")
    e(f"s_waitcnt vmcnt({left + 4})")
    for i in (0, 2):
        e(f"v_pk_add_f32 {vr(vE + i, 2)}, {vr(s + 4 + i, 2)}, {vr(s + 8 + i, 2)}")
    e(f"v_max3_u32 v{vVAL}, v{s}, v{s + 4}, v{s + 8}")
    for i in (0, 2):
        e(f"v_pk_add_f32 {vr(vX + i, 2)}, {vr(vX + i, 2)}, {vr(vE + i, 2)}")
    e(f"""s_waitcnt vmcnt({left})
    v_max3_u32 v{vVAL}, v{vVAL}, v{s + 12}, v{s + 13}
    v_max3_u32 v{vVAL}, v{vVAL}, v{s + 14}, v{s + 15}
    v_cmp_eq_u32 vcc, -1, v{vVAL}
    v_add_f32 v{vE}, v{s + 12}, v{s + 13}
    v_add_f32 v{vE + 1}, v{s + 14}, v{s + 15}
    v_max3_f32 v{vM}, v{vX}, v{vX + 1}, v{vX + 2}
    v_add_f32 v{vX + 4}, v{vE}, v{vE + 1}
    v_max3_f32 v{vM}, v{vM}, v{vX + 3}, v{vX + 4}""")


def poll_h(e, s, rep):
    for k in (1, 2, 3):
        e(f"buffer_load_dwordx2 {vr(s + 2 * (k - 1), 2)}, v{vLIN8}, {R(rWS)}, {sPX[k]} offen offset:{512 * rep} sc1")


def valid_h(e, s):
    e(f"v_max3_u32 v{vVAL}, v{s}, v{s + 2}, v{s + 4}\nv_cmp_eq_u32 vcc, -1, v{vVAL}")


def sum_h(e, s, left, stamp=None):
    if left is not None:
        e(f"s_waitcnt vmcnt({left + 1})")
    mf(e, vX, vSELI, s, vD2)
    if left is not None:
        e(f"s_waitcnt vmcnt({left})")
    mf(e, vX, vSELI, s + 4, vX)
    if left is not None:
        if stamp:
            stamp()
        valid_h(e, s)
        e("s_cbranch_vccnz Ll_redoH")


def step_pages(e):
    e(f"""s_lshl_b32 {sU0}, {sSTEP}, 18
    s_and_b32 {sU1}, {sSTEP}, 8
    s_lshl_b32 {sU1}, {sU1}, 10
    s_add_u32 {sPX[0]}, {sPXB}, {sU0}
    s_xor_b32 {sPX[0]}, {sPX[0]}, {sU1}
    s_add_u32 {sKMO}, {sKMB}, {sU0}
    s_xor_b32 {sKMO}, {sKMO}, {sU1}""")
    for k in (1, 2, 3):
        e(f"s_xor_b32 {sPX[k]}, {sPX[0]}, {k << 10}")


FILL = ["nop"]


def filler(e, n):
    if FILL[0] == "mov":
        for _ in range(n):
            e(f"v_mov_b32 v{vT0}, v{vT0}")
        return
    if FILL[0] == "sleep" and n >= 17:
        e(f"s_sleep {(n - 1) // 16}")
        n = (n - 1) % 16
    while n > 0:
        e(f"s_nop {min(n, 16) - 1}")
        n -= 16


def rearm(e):
    e(f"""s_xor_b32 {sU0}, {sMEMW}, 0x8000
    buffer_store_dwordx2 {vr(vPOI, 2)}, v{vMST}, {R(rWS)}, {sOW} offen
    buffer_store_dwordx2 {vr(vPOI, 2)}, v{vMST}, {R(rWS)}, {sU0} offen
    buffer_store_dwordx4 {vr(vPOI)}, v{vLIN}, {R(rWS)}, {sSC[0]} offen
    buffer_store_dwordx2 {vr(vPOI, 2)}, v{vLIN8}, {R(rWS)}, {sSC[0]} offen offset:1536""")


def leader(e, opt):
    st = Stamps(e, opt.get("stamps"))
    cnt = (lambda i: e(f"s_add_u32 s{90 + i}, s{90 + i}, 1")) if opt.get("stamps") or opt.get("total") else (lambda i: None)
    vt = v_tiles()
    ror8 = "row_ror:8 row_mask:0xf"
    sv = lambda k: smf(e, vt[k][0], vA + 4 * vt[k][1], aV, vt[k][1], vt[k][2])

    def tail_a():
        fold_a(e)
        sv(0)
        for i in range(2):
            e(f"v_mul_f32 v{vZ0 + i}, v{vCV}, v{vZ0 + i}")
        sv(1)
        for i in range(2, 4):
            e(f"v_mul_f32 v{vZ0 + i}, v{vCV}, v{vZ0 + i}")

    def tail_f():
        cvt2(e, vP0, vW0)
        cvt2(e, vP0 + 2, vW1)

    e("Ll_step:")
    sum_h(e, vH[0], 3, lambda: tr(e, opt, 5))
    e("Ll_okH:")
    cvt2(e, vE + 4, vX)
    e(f"buffer_store_dwordx2 {vr(vE + 4, 2)}, v{vMST}, {R(rWS)}, {sMEMW} offen")
    tr(e, opt, 10)
    e(f"s_xor_b32 {sMEMW}, {sMEMW}, 0x8000")
    filler(e, opt.get("dA", 20))
    e("s_barrier")
    ga = gaps_a(e)
    gl = [lambda: (ga[0](), read_kv(e, 0), read_kv(e, 1)), lambda: (ga[1](), read_kv(e, 2), read_kv(e, 3)), ga[2]]
    gather(e, opt, "LlA", sMEMR, True, work_a(e), tail_a, (vQ0, 16), 0, gl, [6, 6, 4])
    sv(2)
    for i in range(2):
        e(f"v_mul_f32 v{vZ1 + i}, v{vCV}, v{vZ1 + i}")
    sv(3)
    for i in range(2, 4):
        e(f"v_mul_f32 v{vZ1 + i}, v{vCV}, v{vZ1 + i}")
    e(f"s_cmp_eq_u32 {sSTEP}, {NSEG - 1}")
    sv(4)
    e("s_cbranch_scc1 Ll_last")
    sv(5)

    def z_reads():
        e("s_barrier")
        for t in range(2):
            for w in range(3):
                e(f"ds_read_b128 {vr(vR + (t * 3 + w) * 4)}, v{vLIN} offset:{ZB + 4096 * t + 1024 * (w + 1)}")
    z_reads()
    z_reduce(e)
    mf(e, vS0, vKX0, vZF)
    mf(e, vS1, vKX1, vZF)
    mf(e, vSM, vZF, vZF)
    e(f"""s_mov_b64 exec, {sLO}
    buffer_store_dwordx4 {vr(vS0)}, v{vLIN}, {R(rWS)}, {sSC[0]} offen
    buffer_store_dwordx4 {vr(vS1)}, v{vLIN}, {R(rWS)}, {sSC[0]} offen offset:128
    buffer_store_dwordx4 {vr(vSM)}, v{vLIN}, {R(rWS)}, {sSC[0]} offen offset:1024
    s_mov_b64 exec, -1""")
    tr(e, opt, 3)
    sv(6)
    sv(7)
    for i in range(4):
        e(f"v_mov_b32_dpp v{vS0 + i}, v{vS1 + i} {ror8} bank_mask:0xc")
    filler(e, opt.get("dD", 10))
    nD = opt.get("nD", 3)
    poll_d(e, vP[0])
    v_reduce_issue(e)
    if nD == 2 and opt.get("d2late", 0):
        v_reduce_finish(e, lambda: poll_d(e, vP[1]))
    else:
        poll_d(e, vP[1])
        v_reduce_finish(e, lambda: [poll_d(e, vP[i]) for i in range(2, nD)])
    sum_d(e, vP[0], 7 * (nD - 1))
    e("s_cbranch_vccnz Ll_redoD")
    e("Ll_okD:")
    tr(e, opt, 4)
    e(f"""v_max_f32_dpp v{vM}, v{vM}, v{vM} {ror8} bank_mask:0xf
    v_mov_b32 v{vE}, v{vM}
    v_permlane16_swap_b32 v{vM}, v{vE}
    v_max_f32 v{vM}, v{vM}, v{vE}
    v_mov_b32 v{vE}, v{vM}
    v_permlane32_swap_b32 v{vM}, v{vE}
    v_max_f32 v{vM}, v{vM}, v{vE}
    v_sub_f32 v{vX + 4}, v{vX + 4}, v{vM}
    v_pk_add_f32 {vr(vX, 2)}, {vr(vX, 2)}, {vr(vM, 2)} op_sel_hi:[1,0] neg_lo:[0,1] neg_hi:[0,1]
    v_exp_f32 v{vX + 4}, v{vX + 4}
    v_pk_add_f32 {vr(vX + 2, 2)}, {vr(vX + 2, 2)}, {vr(vM, 2)} op_sel_hi:[1,0] neg_lo:[0,1] neg_hi:[0,1]
    v_exp_f32 v{vX}, v{vX}
    v_mov_b32_dpp v{vE}, v{vX + 4} {ror8} bank_mask:0xf
    v_exp_f32 v{vX + 1}, v{vX + 1}
    v_cvt_pk_bf16_f32 v{vBM}, v{vX + 4}, v{vE}
    v_exp_f32 v{vX + 2}, v{vX + 2}
    v_exp_f32 v{vX + 3}, v{vX + 3}""")
    mf(e, vL, vONE, vBM)
    e(f"v_cvt_pk_bf16_f32 v{vBX}, v{vX}, v{vX + 1}\nv_cvt_pk_bf16_f32 v{vBX + 1}, v{vX + 2}, v{vX + 3}")
    mf(e, vO0, vVA0, vBM)
    e(f"""v_mov_b32_dpp v{vBX + 2}, v{vBX} {ror8} bank_mask:0xf
    v_mov_b32_dpp v{vBX + 3}, v{vBX + 1} {ror8} bank_mask:0xf""")
    mf(e, vO1, vVA1, vBM)
    mf(e, vL, vONE, vBX, vL)
    mf(e, vO0, vVX0, vBX, vO0)
    mf(e, vO1, vVX1, vBX, vO1)
    e(f"v_rcp_f32 v{vM}, v{vL}\ns_mov_b64 exec, {sLO}")
    for o, d in ((vO0, vE), (vO1, vE + 2)):
        if o == vO0:
            for i in range(4):
                e(f"v_mul_f32 v{o + i}, v{vM}, v{o + i}")
        else:
            for i in (0, 2):
                e(f"v_pk_mul_f32 {vr(o + i, 2)}, {vr(o + i, 2)}, {vr(vM, 2)} op_sel_hi:[1,0]")
        cvt2(e, d, o)
    e(f"""buffer_store_dwordx4 {vr(vE)}, v{vOST}, {R(rWS)}, {sOW} offen
    s_mov_b64 exec, -1""")
    tr(e, opt, 8)
    filler(e, opt.get("dF", 20))
    e("s_barrier")
    gather(e, opt, "LlF", sOR, False, work_f(e), tail_f, (vW0, 8), 1,
           [lambda: (zero1(e, vW0, 8), pack_kv(e)), lambda: step_pages(e), lambda: None], [12, 10, 0])
    mf(e, vD2, vP0, vSELT)

    e("s_barrier")
    for w in range(3):
        e(f"ds_read_b128 {vr(vR + 4 * w)}, v{vLIN} offset:{WB + 1024 * (w + 1)}")
    if opt.get("pub", 1):
        publish_kv(e)
    for w in range(3):
        e(f"s_waitcnt lgkmcnt({2 - w})")
        mf(e, vD2, vR + 4 * w, vSELT, vD2)
    cvt2(e, vE, vD2)
    for r in range(2):
        e(f"buffer_store_dwordx2 {vr(vE, 2)}, v{vLIN8}, {R(rWS)}, {sPX[0]} offen offset:{512 * r} sc1")
    tr(e, opt, 9)
    if opt.get("trace"):
        e("s_memrealtime s[30:31]")
    e(f"s_xor_b32 {sOW}, {sOW}, 0x8000")
    if opt.get("lpos", "pre") == "pre":
        rearm(e)
    tr_dump(e, opt)
    filler(e, opt.get("dH", 75))
    tr(e, opt, 0)
    poll_h(e, vH[0], 0)
    if opt.get("steps"):
        e(f"s_memtime s[8:9]\ns_mov_b32 m0, {sSTEP}\ns_waitcnt lgkmcnt(0)\nv_writelane_b32 v7, s8, m0")
    if opt.get("tl"):
        for k, stp in enumerate((0, 1, 3, 7)):
            sk = e.lab("tl")
            e(f"s_cmp_eq_u32 {sSTEP}, {stp}\ns_cbranch_scc0 {sk}\ns_memrealtime s[{10 + 2 * k}:{11 + 2 * k}]\n{sk}:")
    if opt.get("total"):
        e(f"""s_cmp_eq_u32 {sSTEP}, 3
        s_cbranch_scc0 Ll_not0
        s_memtime s[96:97]
        s_memrealtime s[100:101]""")
        for i in range(90, 96):
            e(f"s_mov_b32 s{i}, 0")
        e("Ll_not0:")
    filler(e, opt.get("gH", 55) - (7 if opt.get("total") else 0) - (28 if opt.get("tl") else 0) - (12 if opt.get("steps") else 0))
    poll_h(e, vH[1], 1)
    e(f"""s_add_u32 {sSTEP}, {sSTEP}, 1
    s_xor_b32 {sMEMR}, {sMEMR}, 0x8000
    s_xor_b32 {sOR}, {sOR}, 0x8000""")
    if opt.get("lpos", "pre") == "help":
        e("s_barrier")
    e("s_branch Ll_step")

    top = e.lab("top")
    e("Ll_redoD:")
    cnt(2)
    for i in range(1, nD):
        sum_d(e, vP[i], 7 * (nD - 1 - i))
        e("s_cbranch_vccz Ll_okD")
        cnt(3)
    poll_d(e, vP[0])
    e(f"{top}:")
    for i in range(2):
        poll_d(e, vP[1 - i])
        sum_d(e, vP[i], 7)
        e("s_cbranch_vccz Ll_okD")
        cnt(3)
    spin_fail(e, top, "Ll_okD")

    top = e.lab("top")
    e("Ll_redoH:")
    cnt(4)
    e(f"{top}:")
    for i in (1, 0):
        poll_h(e, vH[1 - i], 1 - i)
        e("s_waitcnt vmcnt(3)")
        valid_h(e, vH[i])
        e(f"s_cbranch_vccz Ll_sumH{i}")
        cnt(5)
    spin_fail(e, top, "Ll_okH")
    for i in range(2):
        e(f"Ll_sumH{i}:")
        sum_h(e, vH[i], None)
        e("s_branch Ll_okH")

    e("Ll_last:")
    for k in (5, 6, 7):
        sv(k)
    z_reads()
    z_reduce(e)
    v_reduce_issue(e)
    v_reduce_finish(e, lambda: step_pages(e))
    pack_kv(e)
    publish_kv(e)
    if opt.get("stamps") or opt.get("total"):
        e("s_memtime s[8:9]\ns_memrealtime s[98:99]\ns_waitcnt lgkmcnt(0)\ns_sub_u32 s8, s8, s96\nv_mov_b32 v247, s8")
        e(f"s_sub_u32 {sSEL}, s98, s100")
        e(f"""s_lshl_b32 {sU0}, {sA}, 5
        s_add_u32 {sU0}, {sU0}, {sJ}
        s_lshl_b32 {sU0}, {sU0}, 6
        s_add_u32 {sU0}, {sU0}, {DIAG}
        v_mov_b32 v{vT1}, 0""")
        for i in range(6):
            e(f"v_mov_b32 v{248 + i}, s{90 + i}")
        e(f"v_mov_b32 v254, {sTO}\nv_mov_b32 v255, {sSEL}\ns_mov_b64 exec, 1")
        for q in range(4):
            e(f"buffer_store_dwordx4 {vr(240 + 4 * q)}, v{vT1}, {R(rWS)}, {sU0} offen offset:{16 * q}")
    span(e, opt, 0)
    span(e, opt, 2)
    e("s_branch L_chain_done")
    opt["stamp_names"] = st.names


def chain(e, opt):
    e("L_chain:")
    FILL[0] = opt.get("fill", "nop")
    if "C" in opt.get("skip", ""):
        e("s_endpgm")
        return
    e(f"v_lshlrev_b32 v{vLIN8}, 3, v0")
    lw = load_weights(e, opt)
    next(lw)
    e(f"""v_lshlrev_b32 v{vLIN}, 4, v0
    v_lshrrev_b32 v30, 4, v0
    v_and_b32 v31, 7, v0
    v_bfe_u32 v29, v0, 3, 1
    v_lshlrev_b32 v{vOST}, 4, v31
    v_lshl_add_u32 v{vOST}, v30, 10, v{vOST}
    v_lshl_add_u32 v{vMST}, v29, 3, v{vOST}
    s_lshl_b32 {sH}, {sA}, 5
    s_add_u32 {sH}, {sH}, {sJ}
    s_lshl_b32 {sU0}, {sH}, 11
    s_add_u32 {sSC[0]}, {sU0}, {SC}
    s_add_u32 {sKX}, {sU0}, {KX}
    s_lshr_b32 {sU0}, {sH}, 2
    s_lshl_b32 {sU0}, {sU0}, 7
    s_and_b32 {sU1}, {sH}, 3
    s_lshl_b32 {sU1}, {sU1}, 4
    s_add_u32 {sFLG}, {sU0}, {sU1}
    s_add_u32 {sFLG}, {sFLG}, {FLG}
    s_lshr_b32 {sU0}, {sJ}, 1
    s_lshl_b32 {sU0}, {sU0}, 14
    s_and_b32 {sU1}, {sJ}, 1
    s_lshl_b32 {sU1}, {sU1}, 12
    s_add_u32 {sPXB}, {sU0}, {sU1}
    s_lshl_b32 {sU0}, {sA}, 10
    s_add_u32 {sPXB}, {sPXB}, {sU0}
    s_lshl_b32 {sU0}, {sA}, 16
    s_lshr_b32 {sU1}, {sJ}, 3
    s_mul_i32 {sU1}, {sU1}, {opt.get('wst', 4096)}
    s_add_u32 {sOW}, {sU0}, {sU1}
    s_and_b32 {sU1}, {sJ}, 7
    s_lshl_b32 {sU1}, {sU1}, 7
    s_add_u32 {sOW}, {sOW}, {sU1}""")
    for i in range(4):
        e(f"v_mov_b32 v{vPOI + i}, -1")
    if opt.get("tlb", 1):
        e(f"""s_lshr_b32 {sU0}, {sJ}, 3
        s_cmp_eq_u32 {sU0}, 0
        s_cselect_b32 {sU1}, {KX >> 21}, {VX >> 21}
        s_cmp_eq_u32 {sU0}, 2
        s_cselect_b32 {sU1}, {PXF >> 21}, {sU1}
        s_cmp_eq_u32 {sU0}, 3
        s_cselect_b32 {sU1}, {KM >> 21}, {sU1}
        s_and_b32 {sU0}, {sJ}, 7
        s_add_u32 {sU0}, {sU0}, {sU1}
        s_lshl_b32 {sU0}, {sU0}, 21
        s_add_u32 {sU0}, {sU0}, {(1 << 21) - 64}
        s_load_dword s86, {sr(pWS)}, {sU0}""")
    one, onehi = 0x3F80, 0x3F800000
    e(f"""v_and_b32 v28, 15, v0
    v_mov_b32 v{vIDX}, 0x4444
    v_mov_b32 v27, 0xeeee
    v_cmp_eq_u32 vcc, 1, v29
    v_cndmask_b32 v{vIDX}, v{vIDX}, v27, vcc
    v_mov_b32 v{vCV}, {hex(f2u(QSCALE))}
    v_cndmask_b32 v{vCV}, v{vCV}, 1.0, vcc
    v_mov_b32 v{vCV + 1}, v{vCV}
    v_lshlrev_b32 v27, 4, v29
    v_add_u32 v27, v27, v31
    v_lshlrev_b32 v{vKX}, 9, v30
    v_lshl_add_u32 v{vKX}, v27, 4, v{vKX}
    v_lshrrev_b32 v26, 1, v30
    v_and_b32 v25, 1, v30
    v_lshlrev_b32 v{vMM}, 8, v26
    v_lshl_add_u32 v{vMM}, v31, 4, v{vMM}
    v_lshl_add_u32 v{vMM}, v25, 3, v{vMM}
    v_lshl_add_u32 v{vMM}, v29, 2, v{vMM}
    v_add_u32 v{vMM}, {1024 + 512}, v{vMM}
    s_lshl_b32 {sU0}, {sWAVE}, 10
    v_add_u32 v{vLDSW}, {sU0}, v{vLIN}
    s_mov_b32 {sU0}, {one}
    s_mov_b32 {sU1}, {onehi}
    v_lshlrev_b32 v24, 2, v25""")
    for d in range(4):
        t, p = d >> 1, d & 1
        e(f"""v_add_u32 v23, {2 * p + 8 * t}, v24
        v_cmp_eq_u32 vcc, v23, v28
        v_mov_b32 v22, {sU0}
        v_cndmask_b32 v{vSELT + d}, 0, v22, vcc
        v_add_u32 v23, 1, v23
        v_cmp_eq_u32 vcc, v23, v28
        v_mov_b32 v22, {sU1}
        v_cndmask_b32 v{vSELT + d}, v{vSELT + d}, v22, vcc""")
        e(f"""v_lshlrev_b32 v23, 1, v24
        v_add_u32 v23, {4 * p + 2 * t}, v23
        v_cmp_eq_u32 vcc, v23, v28
        v_mov_b32 v22, {sU0}
        v_cndmask_b32 v{vSELV + d}, 0, v22, vcc
        v_add_u32 v23, 1, v23
        v_cmp_eq_u32 vcc, v23, v28
        v_mov_b32 v22, {sU1}
        v_cndmask_b32 v{vSELV + d}, v{vSELV + d}, v22, vcc
        v_mov_b32 v{vONE + d}, 0x3f803f80""")
        e(f"""v_lshl_add_u32 v23, v30, 2, {2 * p}
        v_cmp_eq_u32 vcc, v23, v28
        v_mov_b32 v22, {sU0}
        v_cndmask_b32 v{vSELI + d}, 0, v22, vcc
        v_add_u32 v23, 1, v23
        v_cmp_eq_u32 vcc, v23, v28
        v_mov_b32 v22, {sU1}
        v_cndmask_b32 v{vSELI + d}, v{vSELI + d}, v22, vcc""")
    zero(e, vQ0, 32)
    zero(e, vVA0, 16)
    zero(e, vH[0], 16)
    if opt.get("stamps") or opt.get("total"):
        for i in range(88, 96):
            e(f"s_mov_b32 s{i}, 0")
    e(f"""s_mov_b32 s82, 0x00ff00ff
    s_mov_b32 s83, 0x00ff00ff
    s_mov_b32 s84, 0xff00ff00
    s_mov_b32 s85, 0xff00ff00
    s_lshr_b32 {sKMB}, {sH}, 3
    s_lshl_b32 {sKMB}, {sKMB}, 14
    s_and_b32 {sU0}, {sH}, 7
    s_lshl_b32 {sU0}, {sU0}, 10
    s_add_u32 {sKMB}, {sKMB}, {sU0}""")
    for k in (1, 2, 3):
        e(f"s_xor_b32 {sSC[k]}, {sSC[0]}, {k << 11}")
    next(lw)
    wait_news(e, B_VOTE, vT0, vT1, sSEL, peeked=True)
    if opt.get("preread", 1):
        e(f"s_cmp_eq_u32 {sWAVE}, 0\ns_cbranch_scc0 Lc_nopre")
        for base in (MEMB, MEMB + 0x8000, OB, OB + 0x8000):
            e(f"s_add_u32 {sU0}, {sOW}, {base}\nbuffer_load_dwordx2 {vr(vR, 2)}, v{vMST}, {R(rWS)}, {sU0} offen sc1")
        for off in (0, 1024):
            e(f"buffer_load_dwordx4 {vr(vR)}, v{vLIN}, {R(rWS)}, {sSC[0]} offen offset:{off} sc1")
        e("Lc_nopre:")
    next(lw)
    tl(e, opt, 2)
    e(f"""s_lshl_b32 {sU0}, {sA}, 16
    s_mul_i32 {sU1}, {sWAVE}, {opt.get('wst', 4096)}
    s_add_u32 {sU0}, {sU0}, {sU1}
    s_add_u32 {sMEMR}, {sU0}, {MEMB}
    s_add_u32 {sOR}, {sU0}, {OB}
    s_add_u32 {sMEMW}, {sOW}, {MEMB + 0x8000}
    s_add_u32 {sOW}, {sOW}, {OB}
    s_mov_b32 {sSTEP}, 0
    s_mov_b32 {sPROG}, 0
    s_barrier""")
    e(f"""s_and_b32 {sU0}, {sSEL}, 1
    s_lshl_b32 {sU0}, {sU0}, 13
    s_add_u32 {sPXB}, {sPXB}, {sU0}
    s_add_u32 {sPXB}, {sPXB}, {PXF}
    s_add_u32 {sKMB}, {sKMB}, {sU0}
    s_add_u32 {sKMB}, {sKMB}, {KM}""")
    step_pages(e)
    tl(e, opt, 3)
    e(f"""s_cmp_eq_u32 {sWAVE}, 1
    s_cbranch_scc0 Lc_first
    s_mov_b32 {sU1}, 1""")
    wait_kv(e, sU1)
    load_kv(e)
    span(e, opt, 1)
    e("s_waitcnt vmcnt(0)\nLc_first:\ns_barrier")
    for i in range(4):
        read_kv(e, i)
    tl(e, opt, 4)
    zero(e, 254, 2)
    srd(e, rB1, pMEM0, 16384)
    e(f"""v_lshrrev_b32 v{vT0}, 3, v0
    v_and_b32 v{vT1}, 7, v0
    v_lshlrev_b32 v{vT1}, 11, v{vT1}
    v_lshl_add_u32 v{vT0}, v{vT0}, 6, v{vT1}
    s_lshl_b32 {sU0}, {sWAVE}, 9""")
    for c in range(4):
        e(f"buffer_load_dwordx4 {vr(vA + 4 * c)}, v{vT0}, {R(rB1)}, {sU0} offen offset:{16 * c}")
    if opt.get("stamps") or opt.get("total"):
        e("s_memtime s[96:97]\ns_memrealtime s[100:101]\ns_waitcnt lgkmcnt(0)\ns_mov_b32 s88, s96\ns_mov_b32 s20, s96")
    e(f"""s_cmp_eq_u32 {sWAVE}, 0
    s_cbranch_scc1 LlA_first
    s_branch LhA_first""")
    helper(e, opt)
    leader(e, opt)
    e("L_chain_done:")
    tl(e, opt, 5)
    if opt.get("tl"):
        for k in range(4):
            e(f"v_mov_b32 v254, s{10 + 2 * k}\ns_mov_b64 exec, 1\nbuffer_store_dword v254, v255, {R(rWS)}, s99 offen offset:{12 + 4 * k}\ns_mov_b64 exec, -1")
    tr_out(e, opt)
    e("s_endpgm")
```

```python
import math
import os
import struct
from asmlib import Asm, vr, ar, sr

KNAME = "concat_heads__memory_aug_recurrent_mem_tr__ssm_conv_s4__prompt_kernel"
MB = 1 << 20
WS_BYTES = 256 * MB
LDS_BYTES = 163840

LOC = 2 * MB
MEMB = LOC
OB = LOC + 256 * 1024
SC = LOC + 512 * 1024
FLG = LOC + MB
FO = FLG + 8192
DIAG = LOC + MB + 65536
XF = 8 * MB
KX = 16 * MB
VX = 32 * MB
OX = VX
OP = 96 * MB
PXF = 128 * MB
KM = 148 * MB
PROBE = 164 * MB

NSEG = 64
QSCALE = (128 ** -0.5) * math.log2(math.e)
SPIN_BUDGET = 400000


def f2u(x):
    return struct.unpack("<I", struct.pack("<f", x))[0]


sWAVE, sXCC, sRANK, sT = "s4", "s5", "s6", "s7"
pX, pMEM0, pWQ, pWK, pWV, pWO, pU = 8, 10, 12, 14, 16, 18, 22
pARE, pAIM, pBRE, pBIM, pCRE, pCIM, pLDT, pDSK = 24, 26, 28, 30, 32, 34, 36, 38
pOUT, pDBG, pWS = 40, 42, 44
rWS, rB1, rB2 = 48, 52, 56
sTO = "s46"
sA = "s47"


def srd(e, r, p, nbytes):
    e(f"""s_mov_b32 s{r}, s{p}
    s_and_b32 s{r + 1}, s{p + 1}, 0xffff
    s_mov_b32 s{r + 2}, {nbytes}
    s_mov_b32 s{r + 3}, 0x20000""")


def R(r):
    return f"s[{r}:{r + 3}]"


def spin_fail(e, again, giveup):
    e(f"""s_sub_u32 {sTO}, {sTO}, 1
    s_cbranch_scc0 {again}
    s_mov_b32 {sTO}, 0
    s_branch {giveup}""")


TL = DIAG + 0x80000


def tl(e, opt, i):
    if not opt.get("tl"):
        return
    e(f"""s_memrealtime s[100:101]
    s_lshl_b32 s99, {sXCC}, 5
    s_add_u32 s99, s99, {sRANK}
    s_lshl_b32 s99, s99, 2
    s_add_u32 s99, s99, {sWAVE}
    s_lshl_b32 s99, s99, 6
    s_add_u32 s99, s99, {TL + 4 * i}
    s_waitcnt lgkmcnt(0)
    v_mov_b32 v254, {'s98' if i == 0 else 's100'}
    v_mov_b32 v255, 0
    s_mov_b64 exec, 1
    buffer_store_dword v254, v255, {R(rWS)}, s99 offen
    s_mov_b64 exec, -1""")


WP = DIAG + 0xa0000


def wp(e, opt, i):
    if not opt.get("wp"):
        return
    e("s_memtime s[96:97]\ns_waitcnt lgkmcnt(0)")
    if i < 0:
        for k in range(84, 96):
            e(f"s_mov_b32 s{k}, 0")
    else:
        e(f"s_sub_u32 s97, s96, s83\ns_add_u32 s{84 + i}, s{84 + i}, s97")
    e("s_mov_b32 s83, s96")


def wp_out(e, opt):
    if not opt.get("wp"):
        return
    e(f"""s_lshl_b32 s99, {sXCC}, 5
    s_add_u32 s99, s99, {sRANK}
    s_lshl_b32 s99, s99, 2
    s_add_u32 s99, s99, {sWAVE}
    s_lshl_b32 s99, s99, 6
    s_add_u32 s99, s99, {WP}
    v_mov_b32 v255, 0""")
    for k in range(12):
        e(f"v_mov_b32 v254, s{84 + k}\nbuffer_store_dword v254, v255, {R(rWS)}, s99 offen offset:{4 * k}")


def span(e, opt, i):
    if not opt.get("span"):
        return
    e("s_memrealtime s[100:101]\ns_waitcnt lgkmcnt(0)")
    if i == 0:
        e("s_not_b32 s100, s98")
    e(f"""v_mov_b32 v254, s100
    v_mov_b32 v255, 0
    s_mov_b64 exec, 1
    global_atomic_umax v255, v254, {sr(pDBG)} offset:{12 + 4 * i} sc1
    s_mov_b64 exec, -1""")


def entry(e, opt):
    if opt.get("tl") or opt.get("span"):
        e("s_memrealtime s[98:99]")
    e(f"""s_cmp_ge_u32 s2, 256
    s_cbranch_scc1 L_exit
    s_load_dwordx4 s[40:43], s[0:1], 128
    s_load_dwordx2 s[44:45], s[0:1], 144
    s_load_dwordx16 s[8:23], s[0:1], 0
    s_load_dwordx16 s[24:39], s[0:1], 64
    s_getreg_b32 {sXCC}, hwreg(HW_REG_XCC_ID, 0, 3)
    v_lshrrev_b32 v1, 6, v0
    v_readfirstlane_b32 {sWAVE}, v1
    v_and_b32 v0, 63, v0
    s_mov_b32 {sTO}, {SPIN_BUDGET}
    s_lshl_b32 {sT}, {sXCC}, 5
    v_mov_b32 v1, {sT}
    v_mov_b32 v2, 1
    v_mov_b32 v3, 0
    v_mov_b32 v4, 0
    s_waitcnt lgkmcnt(0)
    s_cmp_eq_u32 {sWAVE}, 0
    s_cbranch_scc0 L_no_ticket
    s_mov_b64 exec, 1
    global_atomic_add v3, v1, v2, {sr(pDBG)} sc0 sc1""")
    if opt.get("ipf", 1):
        e("""s_mov_b64 exec, 0xffffffff
        s_getpc_b64 s[60:61]
        L_pc:
        s_lshr_b32 s62, s2, 3
        s_lshl_b32 s62, s62, 12
        v_lshl_add_u32 v5, v0, 7, s62
        v_min_u32 v5, L_code_end-L_pc, v5
        global_load_dword v100, v5, s[60:61]
        s_mov_b64 exec, 1""")
    e(f"""s_waitcnt vmcnt({1 if opt.get("ipf", 1) else 0})
    ds_write_b32 v4, v3
    s_waitcnt lgkmcnt(0)
    s_mov_b64 exec, -1
    L_no_ticket:
    s_barrier
    ds_read_b32 v3, v4
    s_waitcnt lgkmcnt(0)
    v_readfirstlane_b32 {sRANK}, v3
    s_barrier""")
    srd(e, rWS, pWS, WS_BYTES)
    e(f"""s_cmp_ge_u32 {sRANK}, 32
    s_cbranch_scc1 L_exit""")
    tl(e, opt, 0)
    tl(e, opt, 1)
    e(f"""s_and_b32 {sA}, {sXCC}, 3
    s_cmp_lt_u32 {sXCC}, 4
    s_cbranch_scc1 L_chain
    s_branch L_worker
    L_exit:
    s_endpgm""")


C_XF1, C_XF2, C_VOTE = (36, 32), (40, 32), (100, 32)
D_NEWS = 132
B_XF1, B_XF2, B_VOTE, B_SEL = 4, 8, 16, 32


def arrive(e, ctr, bit, va, vd, vote=None, phase=None):
    off, total = ctr
    sk = e.lab("arr")
    e(f"v_mov_b32 v{va}, 0")
    if phase != 1:
        if vote:
            e(f"s_add_u32 {vote}, {vote}, {1 << 24}\nv_mov_b32 v{vd}, {vote}")
        else:
            e(f"v_mov_b32 v{vd}, 1")
        e(f"s_mov_b64 exec, 1\nglobal_atomic_add v{vd}, v{va}, v{vd}, {sr(pDBG)} offset:{off} sc0 sc1")
        if phase == 0:
            e("s_mov_b64 exec, -1")
            return
        e("s_waitcnt vmcnt(0)")
    e(f"s_mov_b64 exec, 1\nv_readfirstlane_b32 {sT}, v{vd}")
    if vote:
        e(f"""s_add_u32 {sT}, {sT}, {vote}
        s_lshr_b32 {vote}, {sT}, 24
        s_cmp_eq_u32 {vote}, {total}
        s_cbranch_scc0 {sk}
        s_and_b32 {sT}, {sT}, 0xffffff
        s_cmp_gt_u32 {sT}, {total * 1024}
        s_cselect_b32 {sT}, {bit | B_SEL}, {bit}
        v_mov_b32 v{vd}, {sT}""")
    else:
        e(f"""s_cmp_eq_u32 {sT}, {total - 1}
        s_cbranch_scc0 {sk}
        v_mov_b32 v{vd}, {bit}""")
    e(f"""global_atomic_or v{va}, v{vd}, {sr(pDBG)} offset:{D_NEWS} sc1
    {sk}:
    s_mov_b64 exec, -1""")


def peek_news(e, va, vd):
    e(f"v_mov_b32 v{va}, 0\nglobal_load_dword v{vd}, v{va}, {sr(pDBG)} offset:{D_NEWS} sc1")


def wait_news(e, bits, va, vd, sel=None, peeked=False):
    top, ok, chk = e.lab("news"), e.lab("newsok"), e.lab("newschk")
    if peeked:
        e(f"s_branch {chk}")
    e(f"{top}:")
    peek_news(e, va, vd)
    e(f"""s_waitcnt vmcnt(0)
    {chk}:
    v_readfirstlane_b32 {sT}, v{vd}""")
    if sel:
        e(f"s_bfe_u32 {sel}, {sT}, 0x10005")
    e(f"""s_and_b32 {sT}, {sT}, {bits}
    s_cmp_eq_u32 {sT}, {bits}
    s_cbranch_scc1 {ok}
    s_sleep 2""")
    spin_fail(e, top, ok)
    e(f"{ok}:")


def wrap(lines):
    here = os.path.dirname(os.path.dirname(os.path.abspath(__file__)))
    hdr = open(here + "/concat_heads__memory_aug_recurrent_mem_tr__ssm_conv_s4__prompt.s.ref").read().split("\n")
    head = []
    for l in hdr:
        if l.startswith("; @launch"):
            break
        head.append(l)
    body = "\n".join(l if l.endswith(":") else " " + l for l in lines)
    return "\n".join(head) + f"""
; @launch grid=(256,1,1) block=(256,1,1) lds={LDS_BYTES}
.amdgcn_target "amdgcn-amd-amdhsa--gfx950"
.text
.globl {KNAME}
.p2align 8
.type {KNAME},@function
{KNAME}:
{body}
.section .rodata,"a"
.p2align 6
.amdhsa_kernel {KNAME}
  .amdhsa_next_free_vgpr 512
  .amdhsa_next_free_sgpr 102
  .amdhsa_accum_offset 256
  .amdhsa_group_segment_fixed_size 0
  .amdhsa_kernarg_size 152
  .amdhsa_user_sgpr_count 2
  .amdhsa_user_sgpr_kernarg_segment_ptr 1
  .amdhsa_system_sgpr_workgroup_id_x 1
  .amdhsa_float_denorm_mode_32 3
.end_amdhsa_kernel
"""
```

```python
from gen_common import *

WREG = 40960
CS = 4160
TP = 528
TX, TY = 0, 21 * TP
KC, UT, KD = 0, 53 * TP, 53 * TP + 7680
KZERO = 672
pad = lambda r: r + (r >> 5)

sD, sU0, sU1, sIT = "s60", "s61", "s62", "s63"
sLD, sDS = 64, 66
sPU, sP2, sPI0, sPI1 = "s68", "s69", "s70", "s71"

vT0, vT1, vT2, vT3 = 2, 3, 4, 5
vTW, vTR, vKW, vCW, vAR, vBR, vUW = 6, 7, 8, 11, 12, 13, 14
vDT = 15
vIMG = 1
vPAR = 16
vGA = 40
vW = 84
vACC = [128, 144]
vFB, vFA = 160, 176
vTW2 = 5
vU = 192


def cmul(e, d, z, w):
    e(f"""v_pk_mul_f32 {vr(d, 2)}, {vr(z, 2)}, {vr(w, 2)} op_sel_hi:[1,0]
    v_pk_fma_f32 {vr(d, 2)}, {vr(z, 2)}, {vr(w, 2)}, {vr(d, 2)} op_sel:[1,1,0] op_sel_hi:[0,1,1] neg_lo:[1,0,0]""")


def cexp(e, d, lam, t):
    e(f"""v_mul_f32 v{vT0}, {hex(f2u(float(t)))}, v{lam}
    v_mul_f32 v{vT1}, {hex(f2u(float(t)))}, v{lam + 1}
    v_exp_f32 v{vT0}, v{vT0}
    v_fract_f32 v{vT1}, v{vT1}
    v_cos_f32 v{d}, v{vT1}
    v_sin_f32 v{d + 1}, v{vT1}
    v_pk_mul_f32 {vr(d, 2)}, {vr(d, 2)}, {vr(vT0, 2)} op_sel_hi:[1,0]""")


def tables(e):
    H = 52
    lam, e1, e8, e256, g = vW, vW + 2, vW + 4, vW + 6, vW + 8
    bb, cc = vW + 12, vW + 14
    xs = vW + 16
    z = [vW + 32, vW + 34]
    pk = [vW + 36, vW + 38, vW + 40, vW + 42]
    cnt = [0]

    def mul(d, a, b):
        for h in (0, H):
            e(f"v_pk_mul_f32 {vr(d + h, 2)}, {vr(a + h, 2)}, {vr(b + h, 2)} op_sel_hi:[1,0]")
        for h in (0, H):
            e(f"v_pk_fma_f32 {vr(d + h, 2)}, {vr(a + h, 2)}, {vr(b + h, 2)}, {vr(d + h, 2)} op_sel:[1,1,0] op_sel_hi:[0,1,1] neg_lo:[1,0,0]")

    def put(base, row, r, neg):
        p = pk[cnt[0] % 4]
        cnt[0] += 1
        for k, h in enumerate((0, H)):
            e(f"v_cvt_pk_bf16_f32 v{p + k}, v{r + h}, {'-' if neg else ''}v{r + h + 1}")
        e(f"ds_write_b64 v{vTW2}, {vr(p, 2)} offset:{base + row * TP}")

    for h in (0, H):
        for i, d in enumerate((lam, lam + 1, bb, bb + 1, cc, cc + 1)):
            e(f"v_and_b32 v{d + h}, 0xffff0000, v{vPAR + i}" if h else f"v_lshlrev_b32 v{d}, 16, v{vPAR + i}")
        e(f"""v_mul_f32 v{lam + h}, v{vDT}, v{lam + h}
        v_mul_f32 v{lam + h + 1}, v{vDT}, v{lam + h + 1}
        v_mul_f32 v{bb + h}, v{vDT}, v{bb + h}
        v_mul_f32 v{bb + h + 1}, v{vDT}, v{bb + h + 1}
        v_mul_f32 v{lam + h}, {hex(f2u(math.log2(math.e)))}, v{lam + h}
        v_mul_f32 v{lam + h + 1}, 0.15915494, v{lam + h + 1}""")
        cexp(e, e1 + h, lam + h, 1)
        cexp(e, e8 + h, lam + h, 8)
        cexp(e, e256 + h, lam + h, 256)
    mul(xs, cc, bb)
    e(f"v_mov_b32 v{pk[3]}, 0x3f80\nv_mov_b32 v{pk[3] + 1}, 0x3f80\nds_write_b64 v{vTW2}, {vr(pk[3], 2)} offset:{TY}")
    put(TY, 1, e8, False)
    prev = e8
    for b in range(2, 32):
        mul(z[b & 1], prev, e8)
        prev = z[b & 1]
        put(TY, b, prev, False)
    put(TX, 0, xs, True)
    for r in range(1, 8):
        mul(xs + 2 * r, xs + 2 * r - 2, e1)
        put(TX, r, xs + 2 * r, True)
    for i in range(4):
        mul(z[i & 1], xs + 4 * i, e256)
        put(TX, 8 + i, z[i & 1], True)
    prev = e256
    for m in range(2, 9):
        cur = g + 2 * (m & 1)
        mul(cur, prev, e256)
        prev = cur
        rows = [(12 + 2 * (m - 2), 0), (13 + 2 * (m - 2), 4)] if m < 4 else [(12 + m, 0)]
        for k, (row, r) in enumerate(rows):
            mul(z[k], xs + 2 * r, cur)
            put(TX, row, z[k], True)
    e("s_waitcnt lgkmcnt(0)")
    acc = vACC[0]
    rd = lambda kk: e(f"""ds_read_b128 {vr(vFA + 4 * (kk & 3))}, v{vTR} offset:{TX + kk * 32}
        ds_read_b128 {vr(vFB + 4 * (kk & 3))}, v{vTR} offset:{TY + kk * 32}""")
    for kk in range(3):
        rd(kk)
    side = stage_u()
    for kk in range(16):
        if kk + 3 < 16:
            rd(kk + 3)
        e(f"s_waitcnt lgkmcnt({2 * min(3, 15 - kk)})")
        e(f"v_mfma_f32_32x32x16_bf16 {vr(acc, 16)}, {vr(vFA + 4 * (kk & 3))}, {vr(vFB + 4 * (kk & 3))}, {vr(acc, 16) if kk else 0}")
        e(side.pop(0))
    e("\n".join(side))


def expand(e):
    acc = vACC[0]
    g = vW
    for i in range(4):
        e(f"ds_write_b32 v{vKW}, v{acc + i} offset:{KD + 4 * i}")
    e("s_mov_b64 exec, 0xffffffff")
    for i in range(4):
        e(f"ds_write_b32 v{vKW + 1}, v{acc + 4 + i} offset:{KD + 4 * (pad(256) + i)}")
        e(f"ds_write_b32 v{vKW + 2}, v{acc + 8 + i} offset:{KD + 4 * pad(512 + 32 * i)}")
    e("s_not_b64 exec, exec")
    for i in range(4):
        e(f"ds_write_b32 v{vKW + 1}, v{acc + 4 + i} offset:{KD + 4 * (pad(384 + 64 * (i >> 1)) + (i & 1))}")
    e(f"ds_write_b32 v{vKW + 2}, v{acc + 8} offset:{KD + 4 * pad(640)}")
    e(f"""s_mov_b64 exec, -1
    v_mov_b32 v{vT0}, 0
    v_lshrrev_b32 v{vT1}, 4, v0
    v_mul_u32_u24 v{vT1}, {CS - 64}, v{vT1}
    v_add_u32 v{vT1}, v{vT1}, v{vTW}
    ds_write_b32 v{vT1}, v{vT0} offset:{KC + 4096}
    s_waitcnt lgkmcnt(0)""")
    rd = lambda q: e("\n".join(f"ds_read_b32 v{g + 11 * q + t}, v{vGA + 11 * q + t}" for t in range(11)))
    rd(0)
    e(f"s_lshl_b32 {sU0}, s{sDS}, 16")
    for q in range(4):
        for k in range(8 * q, 8 * q + 8):
            a = vACC[k >> 4] + (k & 15)
            e(f"v_perm_b32 v{a}, v{vU + 2 * k}, v{vU + 2 * k}, {sPU}\nv_mul_f32 v{a}, {sU0}, v{a}")
        e("s_waitcnt lgkmcnt(%d)" % (4 if q else 0))
        if q < 3:
            rd(q + 1)
        for c in range(4):
            d = vFB + 4 * ((q * 4 + c) % 8)
            for i in range(4):
                t = 11 * q + 3 - c + 2 * i
                e(f"v_cvt_pk_bf16_f32 v{d + i}, v{g + t}, v{g + t + 1}")
            if c == 0 and q:
                e("s_waitcnt lgkmcnt(11)")
            e(f"ds_write_b128 v{vCW}, {vr(d)} offset:{KC + c * CS + 1024 * q}")


def stage_u():
    ops, wr = [], []
    for ah in range(2):
        for q in range(4):
            k = ah * 16 + q * 4
            d = vW + 2 * (ah * 4 + q)
            for j in range(2):
                ops.append(f"v_perm_b32 v{d + j}, v{vU + 2 * (k + 2 * j + 1)}, v{vU + 2 * (k + 2 * j)}, {sP2}")
            wr.append(f"ds_write_b64 v{vUW}, {vr(d, 2)} offset:{UT + (32 + 32 * ah) * 80 + 16 * q}")
    return ops + wr


def conv(e):
    ops = []
    for sg in range(-32, 32):
        for hh in range(2):
            ops.append((sg, hh, 1, sg + 32))
            if sg >= 0:
                ops.append((sg, hh, 0, sg))
    pend, bslot = [], {}
    nb = [0]

    def fetch(n):
        sg, hh, ai, dl = ops[n]
        if (sg, hh) not in bslot:
            bslot[(sg, hh)] = vFB + 4 * (nb[0] % 4)
            nb[0] += 1
            e(f"ds_read_b128 {vr(bslot[(sg, hh)])}, v{vBR} offset:{UT + (31 - sg) * 80 + hh * 32}")
            pend.append(None)
        if ai == 0:
            return
        a, k = (4 * (2 * dl + hh), "a") if dl < 32 else (vFA + 4 * ((n // 2) % 4), "v")
        off = KC + 2 * (2016 - (32 * dl - 16 * hh))
        e(f"ds_read_b64 {vr(a, 2, k)}, v{vAR} offset:{off}\nds_read_b64 {vr(a + 2, 2, k)}, v{vAR} offset:{off + 8}")
        pend.extend([None, n])

    D = 3
    for n in range(D):
        fetch(n)
    for n, (sg, hh, ai, dl) in enumerate(ops):
        if n + D < len(ops):
            fetch(n + D)
        if ai:
            i = pend.index(n)
            e(f"s_waitcnt lgkmcnt({len(pend) - 1 - i})")
            del pend[:i + 1]
        acc = vACC[ai]
        a = ar(4 * (2 * dl + hh)) if dl < 32 else vr(vFA + 4 * ((n // 2) % 4))
        e(f"v_mfma_f32_32x32x16_bf16 {vr(acc, 16)}, {a}, {vr(bslot[(sg, hh)])}, {vr(acc, 16)}")


def ssm(e, opt):
    e(f"""s_waitcnt vmcnt(0)
    s_barrier
    s_lshl_b32 {sD}, {sA}, 4
    s_add_u32 {sD}, {sD}, {sRANK}
    s_lshl_b32 {sD}, {sD}, 2
    s_add_u32 {sD}, {sD}, {sWAVE}
    s_lshl_b32 {sU0}, {sD}, 3
    s_load_dwordx2 {sr(sLD)}, {sr(pLDT)}, {sU0}
    s_load_dwordx2 {sr(sDS)}, {sr(pDSK)}, {sU0}
    s_lshl_b32 {sU1}, {sD}, 10
    v_lshl_add_u32 v{vT0}, v0, 2, {sU1}""")
    for c in range(4):
        for i, p in enumerate((pARE, pAIM, pBRE, pBIM, pCRE, pCIM)):
            e(f"global_load_dword v{vPAR + 6 * c + i}, v{vT0}, {sr(p)} offset:{256 * c}")
    srd(e, rB1, pU, 4 * MB)
    srd(e, rB2, pOUT, 8 * MB)
    e(f"""v_and_b32 v{vT2}, 31, v0
    v_lshrrev_b32 v{vT3}, 5, v0
    v_lshrrev_b32 v{vT1}, 1, v0
    v_and_b32 v{vDT}, 1, v0
    v_lshlrev_b32 v{vDT}, 4, v{vDT}
    v_lshl_add_u32 v{vT1}, v{vT1}, 11, v{vDT}
    s_lshr_b32 {sU0}, {sD}, 2
    s_lshl_b32 {sU0}, {sU0}, 5
    s_lshl_b32 {sU1}, {sWAVE}, 20
    s_add_u32 {sU0}, {sU0}, {sU1}
    s_mul_i32 {sIT}, {sWAVE}, {16 * 1040}
    s_and_b32 {sPU}, {sRANK}, 3
    s_lshl_b32 {sPU}, {sPU}, 2""")
    for i in range(16):
        e(f"""s_add_u32 {sP2}, {sPU}, {i}
        s_and_b32 {sP2}, {sP2}, 15
        s_mul_i32 {sU1}, {sP2}, 1040
        s_add_u32 m0, {sU1}, {sIT}
        s_lshl_b32 {sU1}, {sP2}, 16
        s_add_u32 {sU1}, {sU1}, {sU0}
        buffer_load_dwordx4 v{vT1}, {R(rB1)}, {sU1} offen lds""")
    e(f"""s_mul_i32 {sU1}, {sWAVE}, {WREG}
    v_lshl_add_u32 v{vTW}, v0, 2, {sU1}
    v_mul_u32_u24 v{vTR}, {TP}, v{vT2}
    v_lshl_add_u32 v{vTR}, v{vT3}, 4, v{vTR}
    v_add_u32 v{vTR}, {sU1}, v{vTR}
    v_lshlrev_b32 v{vKW}, 5, v{vT2}
    v_lshl_add_u32 v{vKW}, v{vT3}, 4, v{vKW}
    v_and_b32 v{vT0}, 28, v{vT2}
    v_add3_u32 v{vKW}, v{vT0}, v{vKW}, {sU1}
    v_sub_u32 v{vT0}, 4, v{vT3}
    v_lshlrev_b32 v{vKW + 1}, v{vT0}, v{vT2}
    v_lshrrev_b32 v{vT0}, 7, v{vKW + 1}
    v_lshl_add_u32 v{vKW + 1}, v{vT0}, 2, v{vKW + 1}
    v_add_u32 v{vKW + 1}, {sU1}, v{vKW + 1}
    v_lshl_add_u32 v{vKW + 2}, v{vT2}, 2, {sU1}
    v_lshl_add_u32 v{vCW}, v0, 4, {sU1}
    v_and_b32 v{vT0}, 3, v0
    v_mul_u32_u24 v{vAR}, {CS}, v{vT0}
    v_lshrrev_b32 v{vT0}, 2, v{vT2}
    v_sub_u32 v{vT0}, 7, v{vT0}
    v_lshl_add_u32 v{vAR}, v{vT0}, 3, v{vAR}
    v_lshl_add_u32 v{vAR}, v{vT3}, 4, v{vAR}
    v_add_u32 v{vAR}, {sU1}, v{vAR}
    v_mul_u32_u24 v{vUW}, 80, v{vT2}
    v_add_u32 v{vUW}, {sU1}, v{vUW}
    v_lshl_add_u32 v{vBR}, v{vT3}, 4, v{vUW}
    v_add_u32 v{vBR}, 80, v{vBR}
    v_lshl_add_u32 v{vUW}, v{vT3}, 3, v{vUW}
    v_mul_u32_u24 v{vIMG}, 1040, v{vT2}
    v_lshl_add_u32 v{vIMG}, v{vT3}, 7, v{vIMG}
    s_lshl_b32 {sU0}, {sWAVE}, 3
    v_add_u32 v{vIMG}, {sU0}, v{vIMG}
    v_lshl_add_u32 v{vTW2}, v0, 3, {sU1}
    s_add_u32 {sU1}, {sU1}, {KD}
    v_lshlrev_b32 v{vT0}, 3, v0""")
    for q in range(4):
        for t in range(11):
            e(f"""v_sub_u32 v{vT1}, {2047 - 512 * q - t}, v{vT0}
            v_cvt_f32_i32 v{vW}, v{vT1}
            v_cvt_pk_bf16_f32 v{vW}, v{vW}, 0
            v_subrev_u32 v{vW}, {0x4380 - 256}, v{vW}""")
            if q == 3:
                e(f"""v_cmp_gt_i32 vcc, 0x100, v{vT1}
                v_cndmask_b32 v{vW}, v{vW}, v{vT1}, vcc""")
                if t > 7:
                    e(f"""v_mov_b32 v{vW + 1}, {KZERO}
                    v_cmp_gt_i32 vcc, 0, v{vT1}
                    v_cndmask_b32 v{vW}, v{vW}, v{vW + 1}, vcc""")
            e(f"""v_lshrrev_b32 v{vW + 1}, 5, v{vW}
            v_add_lshl_u32 v{vW}, v{vW}, v{vW + 1}, 2
            v_add_u32 v{vGA + 11 * q + t}, {sU1}, v{vW}""")
    e(f"""
    s_waitcnt vmcnt(0)
    s_barrier""")
    img = lambda k: (k >> 4) * 32 * 1040 + (8 * ((k >> 2) & 3) + (k & 3)) * 32
    for k in range(32):
        e(f"ds_read_b64 {vr(vU + 2 * k, 2)}, v{vIMG} offset:{img(k)}")
        if k % 8 == 7:
            e("s_waitcnt lgkmcnt(0)")
    e("s_barrier")
    e(f"v_mov_b32 v{vT0}, 0\nds_write_b32 v{vTW}, v{vT0} offset:{KD + 4 * pad(KZERO)}")
    for i in range(10):
        e(f"ds_write_b32 v{vTW}, v{vT0} offset:{UT + 256 * i}")
    e(f"s_mov_b32 {sIT}, 0\ns_waitcnt lgkmcnt(0)\nLs_chan:")
    sp = opt.get("sp")
    stamp = lambda i: e(f"s_memtime s[{74 + 2 * i}:{75 + 2 * i}]") if sp else None
    stamp(0)
    e(f"""s_lshl_b32 {sU0}, s{sLD}, 16
    v_mov_b32 v{vDT}, {hex(f2u(math.log2(math.e)))}
    v_mul_f32 v{vDT}, {sU0}, v{vDT}
    v_exp_f32 v{vDT}, v{vDT}
    s_bitcmp1_b32 {sIT}, 0
    s_mov_b32 {sPU}, 0x01000c0c
    s_mov_b32 {sP2}, 0x05040100
    s_mov_b32 {sPI0}, 0x03020504
    s_mov_b32 {sPI1}, 0x03020706
    s_cmov_b32 {sPU}, 0x03020c0c
    s_cmov_b32 {sP2}, 0x07060302
    s_cmov_b32 {sPI0}, 0x05040100
    s_cmov_b32 {sPI1}, 0x07060100
    v_cvt_pk_bf16_f32 v{vDT}, v{vDT}, v{vDT}
    v_lshlrev_b32 v{vDT}, 16, v{vDT}""")
    tables(e)
    stamp(1)
    expand(e)
    stamp(2)
    e("s_waitcnt lgkmcnt(0)")
    stamp(3)
    conv(e)
    stamp(4)
    if sp:
        e(f"""s_waitcnt lgkmcnt(0)
        s_lshl_b32 {sU1}, {sD}, 2
        s_add_u32 {sU1}, {sU1}, {sIT}
        s_lshl_b32 {sU1}, {sU1}, 4
        s_add_u32 {sU1}, {sU1}, {DIAG + 0x40000}""")
        for i in range(4):
            e(f"s_sub_u32 s72, s{76 + 2 * i}, s{74 + 2 * i}\nv_mov_b32 v{vW + i}, s72")
        e(f"v_mov_b32 v{vT0}, 0\nbuffer_store_dwordx4 {vr(vW)}, v{vT0}, {R(rWS)}, {sU1} offen")
    for i in range(18):
        e(f"v_mov_b32 v{vPAR + i}, v{vPAR + 6 + i}")
    for k in range(0, 32, 2):
        a = vACC[k >> 4] + (k & 15)
        e(f"""v_cvt_pk_bf16_f32 v{vT0}, v{a}, v{a + 1}
        v_perm_b32 v{vU + 2 * k}, v{vT0}, v{vU + 2 * k}, {sPI0}
        v_perm_b32 v{vU + 2 * k + 2}, v{vT0}, v{vU + 2 * k + 2}, {sPI1}""")
    e(f"""s_lshr_b64 {sr(sLD)}, {sr(sLD)}, 16
    s_lshr_b64 {sr(sDS)}, {sr(sDS)}, 16
    s_bitcmp1_b32 {sIT}, 0
    s_cbranch_scc0 Ls_noswap""")
    for k in range(32):
        e(f"v_swap_b32 v{vU + 2 * k}, v{vU + 2 * k + 1}")
    e(f"""Ls_noswap:
    s_add_u32 {sIT}, {sIT}, 1
    s_cmp_lt_u32 {sIT}, 4
    s_cbranch_scc1 Ls_chan""")
    e("s_barrier")
    for k in range(32):
        e(f"ds_write_b64 v{vIMG}, {vr(vU + 2 * k, 2)} offset:{img(k)}")
    e(f"""s_mul_i32 {sU0}, {sWAVE}, {16 * 1040}
    v_lshl_add_u32 v{vT1}, v0, 4, {sU0}
    v_lshrrev_b32 v{vT2}, 1, v0
    v_and_b32 v{vT3}, 1, v0
    v_lshlrev_b32 v{vT3}, 4, v{vT3}
    v_lshl_add_u32 v{vT2}, v{vT2}, 12, v{vT3}
    s_lshr_b32 {sU0}, {sD}, 2
    s_lshl_b32 {sU0}, {sU0}, 5
    s_lshl_b32 {sU1}, {sWAVE}, 21
    s_add_u32 {sU0}, {sU0}, {sU1}
    s_add_u32 {sU0}, {sU0}, 2048
    s_waitcnt lgkmcnt(0)
    s_barrier""")
    for h in range(2):
        for i in range(8):
            e(f"ds_read_b128 {vr(vW + 4 * i)}, v{vT1} offset:{(8 * h + i) * 1040}")
        for i in range(8):
            e(f"""s_waitcnt lgkmcnt({7 - i})
            s_add_u32 {sU1}, {sU0}, {(8 * h + i) << 17}
            buffer_store_dwordx4 {vr(vW + 4 * i)}, v{vT2}, {R(rB2)}, {sU1} offen""")
        if h == 0:
            e("s_waitcnt vmcnt(0)")
```

```python
from gen_common import *
import gen_ssm

sROLE, sHL, sH, sSEG, sSEL = "s60", "s61", "s62", "s63", "s64"
sXO, sM0, sOUT, sFL, sU0, sU1, sU2 = "s65", "s66", "s67", "s68", "s69", "s70", "s71"
sG, sPRE, sXK, sPXS = "s72", "s73", "s82", "s74"
MASK0 = 8

vLIN, vXA, vT0, vT1 = 1, 2, 3, 4
vXB, vST, vXW = 5, 6, 7
vXR, vTCH = 10, 11
vL0 = 251
vDUM = 12
vX = 16
vACC = [80, 144]
vTMP = 208
vPK = 224
vPOI = 232
vFR = vX
AHEAD = 3
XBUF = 49152
XP = {}


def ev(e, idx, add=0):
    if XP.get("ev"):
        e(f"s_memrealtime s[96:97]\ns_add_u32 m0, {idx}, {add}\ns_waitcnt lgkmcnt(0)\nv_writelane_b32 v{XP['evreg']}, s96, m0")


def ev_out(e):
    if XP.get("ev"):
        e(f"""s_lshl_b32 s99, {sXCC}, 5
        s_add_u32 s99, s99, {sRANK}
        s_lshl_b32 s99, s99, 2
        s_add_u32 s99, s99, {sWAVE}
        s_lshl_b32 s99, s99, 8
        s_add_u32 s99, s99, {WP}
        v_lshlrev_b32 v255, 2, v0
        buffer_store_dword v{XP['evreg']}, v255, {R(rWS)}, s99 offen""")


def mf32(e, d, a, b, c):
    e(f"v_mfma_f32_32x32x16_bf16 {vr(d, 16)}, {a}, {b}, {'0' if c is None else vr(c, 16)}")


def probe(e):
    e(f"""s_lshl_b32 {sU0}, {sA}, 4
    s_add_u32 {sU0}, {sU0}, {sHL}
    s_lshl_b32 {sU0}, {sU0}, 7
    v_mov_b32 v{vT0}, {sU0}
    s_mov_b32 s74, -1
    s_mov_b32 s75, -1
    s_mov_b32 s76, 0
    s_mov_b64 exec, 1
    Lp_loop:""")
    for cand in range(2):
        e(f"""s_mov_b32 s77, {PROBE + cand * 8192}
        s_memtime s[78:79]
        s_waitcnt lgkmcnt(0)
        buffer_store_dword v{vT0}, v{vT0}, {R(rWS)}, s77 offen sc1
        s_waitcnt vmcnt(0)
        s_memtime s[80:81]
        s_waitcnt lgkmcnt(0)
        s_sub_u32 s80, s80, s78
        s_min_u32 s{74 + cand}, s{74 + cand}, s80""")
    e(f"""s_add_u32 s76, s76, 1
    s_cmp_lt_u32 s76, 4
    s_cbranch_scc1 Lp_loop
    s_sub_i32 s76, s75, s74
    s_min_i32 s76, s76, 400
    s_max_i32 s76, s76, -400
    s_add_i32 s76, s76, 1024
    s_mov_b64 exec, -1""")
    arrive(e, C_VOTE, B_VOTE, vT0, vT1, "s76")


def near_base(e, dst, base, seg):
    e(f"""s_lshr_b32 {sU0}, {seg}, 3
    s_xor_b32 {sU0}, {sU0}, {sSEL}
    s_and_b32 {sU0}, {sU0}, 1
    s_lshl_b32 {sU0}, {sU0}, 13
    s_lshl_b32 {dst}, {seg}, 18
    s_add_u32 {dst}, {dst}, {sU0}
    s_add_u32 {dst}, {dst}, {base}""")


def word_ops(val, soff, flag):
    return [("v", f"v_mov_b32 v{vT0}, {val}"),
            ("vm", f"buffer_store_dword v{vT0}, v{vL0}, {R(rWS)}, {soff} offen {flag}", "flag")]


def init_handoffs(e, opt):
    skip = opt.get("skip", "")
    if "Q" not in skip:
        store_word(e, 0, sFL, "sc1")
    e(f"""s_lshl_b32 {sU0}, {sH}, 3
    s_add_u32 {sU0}, {sU0}, {sWAVE}
    s_lshl_b32 {sU0}, {sU0}, 4
    s_add_u32 {sU0}, {sU0}, {FLG}""")
    for i, ch in enumerate("KV"):
        if ch not in skip:
            store_word(e, 0, sU0, f"offset:{4 * i} sc1")
    for i in range(4):
        e(f"v_mov_b32 v{vDUM + i}, -1")
    e(f"""s_lshl_b32 {sG}, {sHL}, 2
    s_add_u32 {sG}, {sG}, {sWAVE}
    s_lshr_b32 {sU0}, {sG}, 3
    s_mul_i32 {sU0}, {sU0}, {opt.get('wst', 4096)}
    s_and_b32 {sU1}, {sG}, 7
    s_lshl_b32 {sU1}, {sU1}, 7
    s_add_u32 {sU0}, {sU0}, {sU1}
    s_lshl_b32 {sU1}, {sA}, 16
    s_add_u32 {sU0}, {sU0}, {sU1}
    v_bfe_u32 v{vT0}, v0, 3, 2
    v_and_b32 v{vT1}, 7, v0
    v_lshlrev_b32 v{vT1}, 4, v{vT1}
    v_lshl_add_u32 v{vT0}, v{vT0}, 10, v{vT1}
    v_lshrrev_b32 v{vT1}, 5, v0
    v_lshl_add_u32 v{vT0}, v{vT1}, 15, v{vT0}""")
    for base in (MEMB, OB):
        e(f"s_add_u32 {sU1}, {sU0}, {base}\nbuffer_store_dwordx4 {vr(vDUM)}, v{vT0}, {R(rWS)}, {sU1} offen sc1")
    e(f"""s_lshl_b32 {sU0}, {sA}, 5
    s_add_u32 {sU0}, {sU0}, {sG}
    s_lshl_b32 {sU0}, {sU0}, 11
    s_add_u32 {sU0}, {sU0}, {SC}
    buffer_store_dwordx4 {vr(vDUM)}, v{vLIN}, {R(rWS)}, {sU0} offen sc1
    buffer_store_dwordx4 {vr(vDUM)}, v{vLIN}, {R(rWS)}, {sU0} offen offset:1024 sc1""")
    px_slot(e, sU2)
    e(f"""s_add_u32 {sU0}, {sU2}, 8192
    buffer_store_dwordx4 {vr(vDUM)}, v{vLIN}, {R(rWS)}, {sU2} offen sc1
    buffer_store_dwordx4 {vr(vDUM)}, v{vLIN}, {R(rWS)}, {sU0} offen sc1""")


def px_slot(e, dst):
    e(f"""s_lshl_b32 {sU0}, {sHL}, 1
    s_lshr_b32 {sU1}, {sWAVE}, 1
    s_add_u32 {sU0}, {sU0}, {sU1}
    s_lshl_b32 {dst}, {sU0}, 14
    s_and_b32 {sU0}, {sWAVE}, 1
    s_lshl_b32 {sU0}, {sU0}, 12
    s_add_u32 {dst}, {dst}, {sU0}
    s_lshl_b32 {sU0}, {sA}, 10
    s_add_u32 {dst}, {dst}, {sU0}
    s_add_u32 {dst}, {dst}, {PXF}""")


def store_word(e, val, soff, flag):
    flush(e, word_ops(val, soff, flag))


def wait_words(e, va, soff, need, nap=1):
    top, ok = e.lab("w"), e.lab("wok")
    e(f"""{top}:
    buffer_load_dword v{vT1}, v{va}, {R(rWS)}, {soff} offen sc1
    s_waitcnt vmcnt(0)
    v_cmp_gt_u32 vcc, {need}, v{vT1}
    s_cbranch_vccz {ok}
    s_sleep {nap}""")
    spin_fail(e, top, ok)
    e(f"{ok}:")


def load_weights(e, hooks, FL):
    NG = FL + 1
    vG, vTR = vTMP, vTMP + 1
    sL, sST = sM0, sOUT
    e(f"""v_lshrrev_b32 v{vT0}, 4, v0
    v_lshlrev_b32 v{vT1}, 2, v{vT0}
    v_xor_b32 v{vT1}, v{vT1}, v0
    v_and_b32 v{vT1}, 15, v{vT1}
    v_lshlrev_b32 v{vG}, {sU2}, v{vT0}
    v_lshl_add_u32 v{vG}, v{vT1}, 4, v{vG}
    s_mul_i32 {sL}, {sWAVE}, 40960
    v_bfe_u32 v{vT1}, v0, 2, 2
    v_lshl_add_u32 v{vT0}, v{vT0}, 3, v{vT1}
    v_lshl_add_u32 v{vT0}, v{vT0}, 8, {sL}
    s_cmp_eq_u32 {sROLE}, 1
    s_cselect_b32 {sST}, 3, 5
    s_cselect_b32 {sU0}, 32, 8
    s_cmp_eq_u32 {sROLE}, 3
    s_cselect_b32 {sST}, 4, {sST}
    s_cselect_b32 {sU0}, 32, {sU0}
    s_cselect_b32 {sG}, 3, 4
    s_cselect_b32 {sPRE}, {sA}, {sWAVE}
    s_cselect_b32 {sXK}, {sWAVE}, 0
    s_and_b32 {sXK}, {sXK}, 1
    s_lshl_b32 {sXK}, {sXK}, 5
    v_xor_b32 v{vT1}, {sPRE}, v{vT1}
    v_add_u32 v{vT0}, {sXK}, v{vT0}
    v_and_b32 v{vPK}, 1, v0
    v_lshl_add_u32 v{vT0}, v{vPK}, {sG}, v{vT0}
    v_bfe_u32 v{vPK}, v0, 1, 1
    v_lshl_add_u32 v{vT0}, v{vPK}, {sST}, v{vT0}""")
    for j in range(4):
        e(f"""v_xor_b32 v{vPK}, {j}, v{vT1}
        v_lshl_add_u32 v{vTR + 2 * j}, v{vPK}, 6, v{vT0}
        v_xor_b32 v{vTR + 2 * j + 1}, {sU0}, v{vTR + 2 * j}""")
    e(f"""s_lshl_b32 {sST}, {sWAVE}, 8
    s_lshl_b32 {sST}, {sST}, {sU2}
    s_add_u32 {sU1}, {sU1}, {sST}
    s_lshl_b32 {sST}, 4, {sU2}""")

    def issue(n):
        for i in range(4):
            e(f"""s_add_u32 m0, {sL}, {(n % (2 * NG)) * 4096 + i * 1024}
            buffer_load_dwordx4 v{vG}, {R(rB1)}, {sU1} offen nt lds
            s_add_u32 {sU1}, {sU1}, {sST}""")

    H = XP.get("wfh", 3)
    def pick(kk):
        ops = []
        for t in range(8):
            for q in range(2):
                ops.append(("ds", f"ds_read_b64_tr_b16 {ar((kk * 8 + t) * 4 + 2 * q, 2)}, v{vTR + t} offset:{(kk % NG) * 8192 + q * 1024}"))
            if t in (3, 7):
                ops.append(("w", "s_waitcnt lgkmcnt(0)"))
        return ops

    for n in range(H):
        issue(n)
    for n in range(12):
        e(f"s_waitcnt vmcnt({(H - 1) * 4})")
        if n in hooks:
            hooks[n]()
        issue(n + H)
        if n & 1:
            flush(e, pick(n >> 1))
    for n in range(12 + H, 16):
        issue(n)
    return pick(6), pick(7)


def lane_setup(e):
    e(f"""v_and_b32 v{vT0}, 15, v0
    v_lshrrev_b32 v{vT1}, 4, v0
    v_lshlrev_b32 v{vST}, 4, v{vT0}
    v_lshl_add_u32 v{vST}, v{vT1}, 9, v{vST}
    v_and_b32 v{vXA}, 8, v0
    s_cmp_eq_u32 {sROLE}, 1
    s_cselect_b32 {sU0}, 16, 0
    v_mul_u32_u24 v{vXA}, {sU0}, v{vXA}
    s_lshl_b32 {sU0}, {sWAVE}, 14
    v_add3_u32 v{vXA}, v{vXA}, v{vST}, {sU0}
    s_mul_i32 {sU0}, {sWAVE}, 12288
    v_add_u32 v{vXR}, {sU0}, v{vLIN}""")
    for j in (1, 2, 3):
        e(f"""s_xor_b32 {sU0}, {sWAVE}, {j}
        s_mul_i32 {sU0}, {sU0}, 12288
        s_add_u32 {sU0}, {sU0}, {(j - 1) * 4096}
        v_add_u32 v{vXW + j - 1}, {sU0}, v{vLIN}""")


def x_transform(e, rnd):
    vD, vR = vTMP, vTMP + 1
    srd(e, rB2, pX, 4 * MB)
    e(f"""s_add_u32 {sU1}, {sHL}, {8 * rnd}
    s_lshl_b32 {sU1}, {sU1}, 2
    s_add_u32 {sU1}, {sU1}, {sA}
    s_lshl_b32 {sU1}, {sU1}, 16
    v_lshrrev_b32 v{vT0}, 3, v0
    s_lshl_b32 {sU0}, {sWAVE}, 3
    v_add_u32 v{vT0}, {sU0}, v{vT0}
    v_bfe_u32 v{vT1}, v{vT0}, 1, 3
    v_and_b32 v{vD}, 7, v0
    v_xor_b32 v{vD}, v{vD}, v{vT1}
    v_lshlrev_b32 v{vD}, 4, v{vD}
    v_lshl_add_u32 v{vD}, v{vT0}, 11, v{vD}
    s_lshl_b32 {sU2}, {sWAVE}, 10""")
    for ln in range(16):
        e(f"""s_add_u32 m0, {sU2}, {ln * (4096 - 128)}
        buffer_load_dwordx4 v{vD}, {R(rB2)}, {sU1} offen offset:{ln * 128} nt lds""")
    e(f"""v_and_b32 v{vT0}, 31, v0
    s_lshl_b32 {sU0}, {sWAVE}, 14
    v_lshl_add_u32 v{vPK}, v{vT0}, 7, {sU0}
    v_bfe_u32 v{vT1}, v{vT0}, 1, 3
    v_lshrrev_b32 v{vT0}, 5, v0
    s_add_u32 {sU1}, {sU1}, {sU0}""")
    for j in range(4):
        e(f"""v_add_u32 v{vPK + 1}, {2 * j}, v{vT0}
        v_xor_b32 v{vPK + 1}, v{vPK + 1}, v{vT1}
        v_lshl_add_u32 v{vR + j}, v{vPK + 1}, 4, v{vPK}""")
    e("s_waitcnt vmcnt(0)\ns_barrier")
    for h in range(2):
        for n in range(8 * h, 8 * h + 8):
            e(f"ds_read_b128 {vr(vX + 4 * n)}, v{vR + (n & 3)} offset:{(n >> 2) * 4096}")
        for n in range(8 * h, 8 * h + 8):
            if n % 4 == 0:
                e(f"s_add_u32 {sU2}, {sU1}, {XF + 1024 * n}")
            e(f"""s_waitcnt lgkmcnt({7 - (n & 7)})
            buffer_store_dwordx4 {vr(vX + 4 * n)}, v{vLIN}, {R(rWS)}, {sU2} offen offset:{1024 * (n & 3)} sc1""")


def touch_ops(mode, ahead):
    return [("v", f"s_add_u32 {sU1}, {sXO}, {ahead * 0x10000}")] + \
        [("vm", f"buffer_load_dwordx4 {vr(vDUM)}, v{vTCH}, {R(rWS)}, {sU1} offen offset:{1024 * i} sc1", "t")
         for i in range(2 if mode == "Q" else 1)]


def in_load(mode, kk, rt, cur=None):
    d = vr(vX + 4 * (2 * kk + rt))
    pre = f"s_add_u32 {sXK}, {sXO}, {kk * 2048}\n" if rt == 0 and kk % 2 == 0 else ""
    if cur:
        pre = f"s_sub_u32 {cur}, {sXO}, {(0x40000 if mode == 'O' else 0x10000) - kk * 2048}\n" if pre else ""
        if mode == "O":
            return pre + f"buffer_load_dwordx4 {d}, v{(vXA, vXB)[rt]}, {R(rWS)}, {cur} offen offset:{(kk & 1) * 2048} sc1"
        return pre + f"buffer_load_dwordx4 {d}, v{vXA}, {R(rWS)}, {cur} offen offset:{(kk & 1) * 2048 + rt * 256} sc1"
    off = (kk & 1) * 2048 + rt * (128 if mode == "V" else 256)
    if mode == "O":
        return pre + f"buffer_load_dwordx4 {d}, v{(vXA, vXB)[rt]}, {R(rWS)}, {sXK} offen offset:{(kk & 1) * 2048} sc1"
    return pre + f"buffer_load_dwordx4 {d}, v{vXA}, {R(rWS)}, {sXK} offen offset:{off} sc1"


def tile(acc, j, t, rt, mode="K"):
    if mode == "O":
        return acc + ((rt * 2 + t) * 4 + j) * 4
    return acc + ((j * 2 + rt) * 2 + t) * 4


def retire_ops(mode, acc, xb, qaddr=None, again=False):
    ops = []
    for j in (1, 2, 3):
        for i in range(4):
            ops.append(("ds", f"ds_write_b128 v{vXW + j - 1}, {vr(acc + 16 * j + 4 * i)} offset:{xb + 1024 * i}"))
    ops.append(("bar", "s_waitcnt lgkmcnt(0)\ns_barrier"))
    for j in (1, 2, 3):
        for i in range(4):
            ops.append(("ds", f"ds_read_b128 {vr(acc + 16 * j + 4 * i)}, v{vXR} offset:{xb + 4096 * (j - 1) + 1024 * i}"))
    for j in (1, 2, 3):
        ops.append(("w", f"s_waitcnt lgkmcnt({4 * (3 - j)})"))
        if j == 3 and again:
            ops.append(("bar", "s_barrier"))
        for i in range(16):
            ops.append(("v", f"v_add_f32 v{acc + i}, v{acc + i}, v{acc + 16 * j + i}"))
    if mode == "O":
        return ops
    for u in range(2):
        src = [tile(acc, 0, u, 0), tile(acc, 0, u, 1)] if mode == "V" else [tile(acc, 0, 0, u), tile(acc, 0, 1, u)]
        for i in range(4):
            r = src[i >> 1] + 2 * (i & 1)
            if mode == "Q":
                ops.append(("v", f"v_mul_f32 v{r}, {hex(f2u(QSCALE))}, v{r}"))
                ops.append(("v", f"v_mul_f32 v{r + 1}, {hex(f2u(QSCALE))}, v{r + 1}"))
            ops.append(("v", f"v_cvt_pk_bf16_f32 v{vPK + 4 * u + i}, v{r}, v{r + 1}"))
        if mode == "Q":
            ops.append(("ds", f"ds_write_b128 v{qaddr[0]}, {vr(vPK + 4 * u)} offset:{qaddr[1] + 256 * u}"))
        else:
            ops.append(("vm", f"buffer_store_dwordx4 {vr(vPK + 4 * u)}, v{vST}, {R(rWS)}, {sOUT} offen offset:{256 * u} sc1"))
    if mode in "KV":
        ops += [("v", f"s_add_u32 {sPXS}, {sPXS}, 0x40000"), ("v", f"s_and_b32 {sU0}, {sPXS}, 0x200000"),
                ("v", f"s_lshr_b32 {sU0}, {sU0}, 8"), ("v", f"s_xor_b32 {sU0}, {sU0}, {sPXS}"),
                ("vm", f"buffer_store_dwordx4 {vr(vPOI)}, v{vLIN}, {R(rWS)}, {sU0} offen sc1")]
    return ops


class VM:
    def __init__(self, e, hist):
        self.e, self.q = e, list(hist)

    def add(self, tag, n=1):
        self.q += [tag] * n

    def wait(self, tag):
        if tag in self.q:
            left = self.q[::-1].index(tag)
            self.e(f"s_waitcnt vmcnt({min(left, 63)})")
            self.q = self.q[len(self.q) - left:]

    def aged(self):
        return [t[1] if isinstance(t, tuple) else ("old_" + t if isinstance(t, str) and not t.startswith("old_") else "old_")
                for t in self.q] + (["late"] if self.late else [])


PRIMED = [kk for kk in range(8) for _ in range(2)]


def segment(e, mode, b, retire, hist, reload=True, misc=(), refill=None, cur=None):
    acc = vACC[b]
    todo = list(retire)
    side = [(n0, op) for n0, ops in misc for op in ops]
    late = []
    if hist and isinstance(hist[-1], str) and hist[-1].startswith("late"):
        late = [(k, rt) for k in range(int(hist[-1][4:] or 7), 8) for rt in range(2)]
        hist = hist[:-1]
    vm = VM(e, hist)

    def emit(op):
        if op[0] == "vw":
            vm.wait(op[1])
        elif op[0] == "fn":
            op[1]()
        else:
            e(op[1])
            if op[0] == "vm":
                vm.add(op[2] if len(op) > 2 else "st")
        return 1 if op[0] in ("v", "w", "vw") else 2

    cool = 0
    n = 0
    for kk in range(8):
        if XP.get("wpk") == mode and reload:
            wp(e, XP, 2 + kk)
        vm.wait(kk)
        for j in range(4):
            order = ((0, 0), (1, 0), (1, 1), (0, 1))
            for t, rt in order:
                d = vr(tile(acc, j, t, rt, mode))
                w, x = ar((kk * 8 + 2 * j + t) * 4), vr(vX + 4 * (2 * kk + rt))
                a_, b_ = (x, w) if mode == "V" else (w, x)
                e(f"v_mfma_f32_16x16x32_bf16 {d}, {a_}, {b_}, {d if kk else 0}")
                i = n % 16
                cool = max(0, cool - 1)
                if late and i % 2 == 0 and not (kk and i in (0, 2)):
                    k, rt = late.pop(0)
                    e(in_load(mode, k, rt, cur))
                    vm.add(k)
                elif i in (0, 2) and kk and reload:
                    e(in_load(mode, kk - 1, i >> 1))
                    vm.add(("n", kk - 1))
                elif i in (0, 2) and kk and refill and 2 * (kk - 1) + (i >> 1) in refill:
                    emit(refill[2 * (kk - 1) + (i >> 1)])
                else:
                    left = 1 if i == 15 else 2
                    while left > 0:
                        wr = bool(todo) and todo[0][0] == "ds" and todo[0][1].startswith("ds_write")
                        held = bool(todo) and cool and (wr or todo[0][0] == "bar")
                        if side and side[0][0] <= n and not (wr and not held):
                            q = [side[0][1]]
                            pop = lambda: side.pop(0)
                        elif todo and n >= 1 and not held:
                            q = [todo[0]]
                            pop = lambda: todo.pop(0)
                        else:
                            break
                        if left == 1 and i != 15 and q[0][0] not in ("v", "w", "vw"):
                            break
                        pop()
                        left -= emit(q[0])
                        if q[0][0] == "ds" and q[0][1].startswith("ds_write"):
                            cool = 3
                n += 1
    assert not todo and not side, (mode, len(todo), len(side))
    vm.late = reload
    return vm


def steady(fn):
    h = fn(Asm(), PRIMED)
    h2 = fn(Asm(), h)
    assert fn(Asm(), h2) == h2
    return h2


def prime(e, mode, pairs=8):
    for kk in range(pairs):
        for rt in range(2):
            e(in_load(mode, kk, rt))


def flush(e, ops):
    for op in ops:
        e(op[1])


def lines(kind, txt):
    return [(kind, l.strip()) for l in txt.split("\n") if l.strip()]


def role_kv(e, mode, opt):
    e(f"""Lw_{mode}:
    s_lshl_b32 {sOUT}, {sH}, 2
    s_add_u32 {sOUT}, {sOUT}, {sWAVE}
    s_lshl_b32 {sOUT}, {sOUT}, 11
    s_add_u32 {sOUT}, {sOUT}, {KX if mode == 'K' else VX}""")
    e(f"s_add_u32 {sXO}, {sXO}, 0x10000")
    for i in range(4):
        e(f"v_mov_b32 v{vPOI + i}, -1")
    if mode == "K":
        px_slot(e, sPXS)
    else:
        e(f"""s_lshr_b32 {sPXS}, {sH}, 1
        s_lshl_b32 {sPXS}, {sPXS}, 14
        s_and_b32 {sU0}, {sH}, 1
        s_lshl_b32 {sU0}, {sU0}, 2
        s_add_u32 {sU0}, {sU0}, {sWAVE}
        s_lshl_b32 {sU0}, {sU0}, 10
        s_add_u32 {sPXS}, {sPXS}, {sU0}
        s_add_u32 {sPXS}, {sPXS}, {(WS_BYTES if "C" in opt.get("skip", "") else KM) - 0x40000}""")
    e(f"s_lshl_b32 {sU0}, {sSEL}, 13\ns_add_u32 {sPXS}, {sPXS}, {sU0}")

    FIRST = 2
    bump = [("v", f"s_add_u32 {sOUT}, {sOUT}, 0x40000")]

    def seg(e, b, hist, full, misc=()):
        misc = list(misc)
        if full:
            misc.append((30, [("vw", "old_st")] + lines("v", f"s_sub_u32 {sU2}, {sSEG}, 1\ns_max_u32 {sU2}, {sU2}, {FIRST}")
                         + word_ops(sU2, sFL, "sc1")))
        misc.append((115, touch_ops(mode, AHEAD - 1) + lines("v", f"""s_add_u32 {sXO}, {sXO}, 0x10000
            s_add_u32 {sSEG}, {sSEG}, 1""")))
        ops = retire_ops(mode, vACC[1 - b], (1 - b) * XBUF) + bump if full else []
        return segment(e, mode, b, ops, hist, misc=misc).aged()

    for i in range(FIRST):
        if i == 0:
            hist = ["w6"] * 8 + ["w7"] * 8
            seg(e, 0, hist, False, [(68, [("vw", "w6")] + XP["pick"][0]), (90, [("vw", "w7")] + XP["pick"][1])])
            e("s_barrier")
        else:
            seg(e, 1, ["late"], False)
        flush(e, retire_ops(mode, vACC[i & 1], (i & 1) * XBUF) + bump)
        e("s_waitcnt vmcnt(0)")
        store_word(e, i + 1, sFL, "sc1")
        tl(e, opt, 10 + i)
    seg(e, 0, ["late"], False)
    hist = steady(lambda a, h: seg(a, 0, h, True))
    e(f"s_waitcnt vmcnt(0)\nLw_{mode}loop:\ns_cmp_eq_u32 {sSEG}, 27\ns_cbranch_scc1 Lw_{mode}xf\nLw_{mode}xfok:")
    seg(e, 1, hist, True)
    e(f"s_cmp_eq_u32 {sSEG}, {NSEG}\ns_cbranch_scc1 Lw_{mode}end")
    seg(e, 0, hist, True)
    e(f"s_branch Lw_{mode}loop\nLw_{mode}xf:")
    wait_news(e, B_XF2, vT0, vT1)
    e(f"s_branch Lw_{mode}xfok\nLw_{mode}end:")
    flush(e, retire_ops(mode, vACC[1], XBUF))
    e("s_waitcnt vmcnt(0)")
    store_word(e, NSEG, sFL, "sc1")
    e("s_waitcnt vmcnt(0) lgkmcnt(0)\ns_branch L_ssm")


QB, VB, MBUF = XBUF, XBUF + 65536, XBUF + 98304
vKA, vVA, vFA, vQW, vQ3, vQR, vVR, vFC, vMX, vSUM = 232, 233, 234, 235, 236, 237, 238, 239, 240, 242
sAS, sNEED, sKV, sFQ, sKMA, sGOT, sVB = "s74", "s75", "s76", "s77", "s78", "s79", "s80"
vMR = 5
vK, vQ = vX, vX + 32


def setup_ops():
    return lines("v", f"""s_add_u32 {sAS}, {sAS}, 4
    s_add_u32 {sNEED}, {sAS}, 1
    s_lshl_b32 {sOUT}, {sAS}, 18
    s_and_b32 {sU0}, {sAS}, 8
    s_lshl_b32 {sU0}, {sU0}, 10
    s_xor_b32 {sKMA}, {sM0}, {sU0}
    s_add_u32 {sKMA}, {sKMA}, {sOUT}
    s_add_u32 {sOUT}, {sOUT}, {sKV}""") + [("v", f"s_cmp_eq_u32 {sG}, 14\ns_cselect_b32 {sNEED}, 64, {sNEED}")]


def fetch_v_ops(j):
    return [("v", f"s_add_u32 {sU2}, {sOUT}, {VX + (j >> 2) * 4096}"), ("v", f"s_add_u32 m0, {sVB}, {(j >> 2) * 4096}"),
            ("vm", f"buffer_load_dwordx4 v{vLIN}, {R(rWS)}, {sU2} offen offset:{1024 * (j & 3)} sc1 lds", "v")]


def fetch_k_op(j):
    pre = f"s_add_u32 {sXK}, {sOUT}, {KX + j * 1024}\n" if j % 4 == 0 else ""
    return ("vm", pre + f"buffer_load_dwordx4 {vr(vK + 4 * j)}, v{vLIN}, {R(rWS)}, {sXK} offen offset:{1024 * (j & 3)} sc1", "k")


QPRIME = 2
q_read = lambda i: f"ds_read_b128 {vr(vQ + 4 * i)}, v{vQR} offset:{1024 * i}"
PEEK = ("vm", f"buffer_load_dword v{vFC}, v{vL0}, {R(rWS)}, {sKMA} offen offset:4080 sc1", "peek")


def att_fetch_m(e):
    e(f"s_lshl_b32 {sU0}, {sWAVE}, 12\ns_add_u32 m0, {sU0}, {MBUF}")
    for g in range(4):
        e(f"buffer_load_dwordx4 v{vLIN}, {R(rWS)}, {sKMA} offen offset:{1024 * g} sc1 lds")


def att_try(e):
    sk = e.lab("notry")
    e(f"""v_cmp_eq_u32 vcc, -1, v{vFC}
    s_mov_b32 {sGOT}, -1
    s_cbranch_vccnz {sk}
    s_mov_b32 {sGOT}, 0""")
    att_fetch_m(e)
    e(f"{sk}:")


def attention(e, opt):
    vS, vSM, vKM, vP, vPM = 208, 80, 96, 136, 252
    vVF = [80, 92]
    vO = [104, 120]
    neg = f2u(-999292928.0 * math.log2(math.e))
    poll, fetch, ok = e.lab("pollm"), e.lab("fetchm"), e.lab("okm")

    def m_reads():
        for g in range(4):
            e(f"ds_read_b32 v{vSM + g}, v{vMR} offset:{1024 * g}")
        for i in range(8):
            e(f"ds_read_b128 {vr(vKM + 4 * i)}, v{vKA} offset:{512 * i}")

    def m_test():
        e(f"""s_waitcnt lgkmcnt(8)
        v_max3_u32 v{vSM}, v{vSM}, v{vSM + 1}, v{vSM + 2}
        v_max3_u32 v{vSM}, v{vSM}, v{vSM + 3}, {sGOT}
        v_cmp_eq_u32 vcc, -1, v{vSM}""")

    for i in range(6, 8):
        e(q_read(i))
    e("s_waitcnt vmcnt(0) lgkmcnt(2)")
    for i in range(8):
        if i == 3:
            e("s_waitcnt lgkmcnt(0)")
        mf32(e, vS, vr(vK + 4 * i), vr(vQ + 4 * i), vS if i else None)
        if i == 3:
            m_reads()
        if i == 6:
            m_test()
    e(f"""s_cbranch_vccz {ok}
    s_cmp_eq_u32 {sGOT}, {sGOT if opt.get("mdir", 0) else 0}
    s_cbranch_scc1 {fetch}
    {poll}:
    {PEEK[1]}
    s_waitcnt vmcnt(0)
    v_cmp_eq_u32 vcc, -1, v{vFC}
    s_cbranch_vccz {fetch}
    s_sleep 1""")
    spin_fail(e, poll, fetch)
    e(f"{fetch}:\ns_mov_b32 {sGOT}, 0\ns_waitcnt lgkmcnt(0)")
    att_fetch_m(e)
    e("s_waitcnt vmcnt(0)")
    m_reads()
    m_test()
    e(f"s_cbranch_vccz {ok}")
    spin_fail(e, fetch, ok)
    e(f"{ok}:")
    if opt.get("ev") == "Q":
        ev(e, sG, 16)
    wp(e, opt, 5)
    side = [f"v_mov_b32 v{vMX}, {hex(neg)}"]
    side += [f"v_cndmask_b32 v{vS + i}, v{vMX}, v{vS + i}, {sr(MASK0 + 2 * i)}" for i in range(16)]
    side += [f"v_max3_f32 v{vMX}, v{vS}, v{vS + 1}, v{vS + 2}"]
    side += [f"v_max3_f32 v{vMX}, v{vMX}, v{vS + i}, v{vS + i + 1}" for i in range(3, 15, 2)]
    side += [f"v_max_f32 v{vMX}, v{vMX}, v{vS + 15}"]
    for i in range(8):
        e(f"s_waitcnt lgkmcnt({7 - i})")
        mf32(e, vSM, vr(vKM + 4 * i), vr(vQ + 4 * i), vSM if i else None)
        if i < 2 * QPRIME:
            e(in_load("Q", i >> 1, i & 1))
        e("\n".join(side[:4]))
        del side[:4]
    e(f"""v_max3_f32 v{vMX}, v{vMX}, v{vSM}, v{vSM + 1}
    v_max3_f32 v{vMX}, v{vMX}, v{vSM + 2}, v{vSM + 3}
    v_mov_b32 v{vSUM}, v{vMX}
    v_permlane32_swap_b32 v{vMX}, v{vSUM}
    v_max_f32 v{vMX}, v{vMX}, v{vSUM}""")
    vals = [vS + i for i in range(0, 16, 2)] + [vPK, vPK + 2]
    srcs = vals[:8] + [vSM, vSM + 2]
    for r, q in zip(vals, srcs):
        e(f"v_pk_add_f32 {vr(r, 2)}, {vr(q, 2)}, {vr(vMX, 2)} op_sel_hi:[1,0] neg_lo:[0,1] neg_hi:[0,1]")

    def v_reads(g):
        d = vVF[g & 1]
        e(f"""ds_read_b128 {vr(d)}, v{vVR} offset:{2048 * g}
        ds_read_b128 {vr(d + 4)}, v{vVR} offset:{2048 * g + 1024}
        ds_read_b32 v{d + 8}, v{vVA} offset:{1024 * g}
        ds_read_b32 v{d + 9}, v{vVA} offset:{1024 * g + 256}""")

    v_reads(0)
    v_reads(1)
    e(f"""v_mov_b64 {vr(vVF[0] + 10, 2)}, 0
    v_mov_b64 {vr(vVF[1] + 10, 2)}, 0
    v_mov_b64 {vr(vPM + 2, 2)}, 0""")
    for k, r in enumerate(vals):
        e(f"v_exp_f32 v{r}, v{r}\nv_exp_f32 v{r + 1}, v{r + 1}")
        if k == 2:
            e(f"v_pk_add_f32 {vr(vSUM, 2)}, {vr(vals[0], 2)}, {vr(vals[1], 2)}")
        elif k > 2:
            e(f"v_pk_add_f32 {vr(vSUM, 2)}, {vr(vSUM, 2)}, {vr(vals[k - 1], 2)}")
    e(f"""v_pk_add_f32 {vr(vSUM, 2)}, {vr(vSUM, 2)}, {vr(vals[9], 2)}
    v_add_f32 v{vSUM}, v{vSUM}, v{vSUM + 1}
    v_mov_b32 v{vSUM + 1}, v{vSUM}
    v_permlane32_swap_b32 v{vSUM}, v{vSUM + 1}
    v_add_f32 v{vSUM}, v{vSUM}, v{vSUM + 1}
    v_rcp_f32 v{vSUM}, v{vSUM}""")
    for k, r in enumerate(vals):
        e(f"""v_pk_mul_f32 {vr(r, 2)}, {vr(r, 2)}, {vr(vSUM, 2)} op_sel_hi:[1,0]
        v_cvt_pk_bf16_f32 v{vP + k if k < 8 else vPM + k - 8}, v{r}, v{r + 1}""")
    wp(e, opt, 6)

    def out_ops(g):
        ops = [f"s_add_u32 {sU0}, {sOUT}, {OX + g * 2048}"]
        for f in range(2):
            d = vS + 8 * (g & 1) + 4 * f
            ops += [f"v_cvt_pk_bf16_f32 v{d + i}, v{vO[g & 1] + 8 * f + 2 * i}, v{vO[g & 1] + 8 * f + 2 * i + 1}" for i in range(4)]
            ops.append(f"buffer_store_dwordx4 {vr(d)}, v{vLIN}, {R(rWS)}, {sU0} offen offset:{f * 1024}")
        return ops

    for g in range(4):
        d = vVF[g & 1]
        e(f"s_waitcnt lgkmcnt({4 if g < 3 else 0})")
        side = out_ops(g - 1) if g else []
        for k, p in enumerate((vP, vP + 4, vPM)):
            mf32(e, vO[g & 1], vr(d + 4 * k), vr(p), vO[g & 1] if k else None)
            if k:
                e("\n".join(side[:6]))
                del side[:6]
        if g + 2 < 4:
            v_reads(g + 2)
    e("\n".join(out_ops(3)))
    wp(e, opt, 7)


def role_q(e, opt):
    e(f"""Lw_Q:
    s_lshl_b32 {sU0}, {sWAVE}, 11
    s_add_u32 {sU0}, {sU0}, {QB}
    v_add_u32 v{vQW}, {sU0}, v{vST}
    v_add_u32 v{vQ3}, 32768, v{vQW}
    s_lshl_b32 {sU0}, {sWAVE}, 13
    s_add_u32 {sU0}, {sU0}, {QB + 32768}
    v_add_u32 v{vQR}, {sU0}, v{vLIN}
    v_add_u32 v{vVR}, {VB - QB - 32768}, v{vQR}
    v_lshrrev_b32 v{vT0}, 5, v0
    v_and_b32 v{vT1}, 7, v0
    v_lshlrev_b32 v{vT1}, 4, v{vT1}
    v_lshl_add_u32 v{vKA}, v{vT0}, 8, v{vT1}
    s_lshl_b32 {sU0}, {sWAVE}, 12
    s_add_u32 {sU0}, {sU0}, {MBUF}
    v_add_u32 v{vMR}, {sU0}, v{vLIN}
    v_add_u32 v{vKA}, 128, v{vKA}
    v_add_u32 v{vKA}, {sU0}, v{vKA}
    v_lshl_add_u32 v{vVA}, v{vT0}, 9, v{vT1}
    v_add_u32 v{vVA}, {sU0}, v{vVA}
    v_bfe_u32 v{vT1}, v0, 3, 2
    v_lshl_add_u32 v{vVA}, v{vT1}, 2, v{vVA}
    v_bfe_u32 v{vT1}, v0, 1, 2
    v_and_b32 v{vFA}, 1, v0
    v_lshlrev_b32 v{vFA}, 2, v{vFA}
    v_lshl_add_u32 v{vFA}, v{vT1}, 4, v{vFA}
    v_and_b32 v{vT1}, 31, v0
    v_lshlrev_b32 v{vT0}, 2, v{vT0}
    v_sub_u32 v{vT1}, v{vT1}, v{vT0}""")
    prime(e, "Q")
    for i in range(16):
        e(f"v_cmp_le_i32 {sr(MASK0 + 2 * i)}, {8 * (i >> 2) + (i & 3)}, v{vT1}")
    e(f"""s_add_u32 {sXO}, {sXO}, 0x10000
    s_lshl_b32 {sFQ}, {sH}, 7
    s_add_u32 {sFQ}, {sFQ}, {FLG}
    s_sub_u32 {sAS}, {sWAVE}, 8
    s_lshl_b32 {sVB}, {sWAVE}, 13
    s_add_u32 {sVB}, {sVB}, {VB}
    s_mov_b32 {sG}, -1
    s_mov_b32 {sPRE}, 32768
    s_mov_b32 {sKV}, {WS_BYTES + 4 * 0x40000}
    s_mov_b32 {sM0}, {WS_BYTES + 4 * 0x40000}
    s_waitcnt vmcnt(0)
    Lw_Qloop:""")
    last = retire_ops("Q", vACC[1], 0, (vQ3, 3 * 8192), again=True)
    e(f"s_cmp_eq_u32 {sG}, 15\ns_cbranch_scc0 Lw_Qproj")
    flush(e, setup_ops())
    e("s_waitcnt vmcnt(0)")
    store_word(e, sG, sFL, "")
    for j in range(8):
        e(fetch_k_op(j)[1])
    for j in range(8):
        flush(e, fetch_v_ops(j))
    flush(e, last)
    e(f"s_mov_b32 {sGOT}, -1\ns_waitcnt lgkmcnt(0)\ns_barrier")
    for i in range(6):
        e(q_read(i))
    e(f"""s_branch Lw_Qatt
    Lw_Qkvwait:
    s_cmp_eq_u32 {sG}, -1
    s_cbranch_scc1 Lw_Qkvok""")
    wait_words(e, vFA, sFQ, sNEED)
    e("s_branch Lw_Qkvok\nLw_Qproj:")
    hist = PRIMED[:2 * QPRIME] + ["old_st"] * 8 + [f"late{QPRIME}"]
    for i in range(4):
        misc, refill = [], None
        if i == 0:
            misc.append((opt.get("nfo", 21), [("vw", "old_st"), ("v", f"s_max_i32 {sU2}, {sG}, 0")] + word_ops(sU2, sFL, "")))
            misc.append((100, setup_ops() + [("vm", f"buffer_load_dword v{vFC}, v{vFA}, {R(rWS)}, {sFQ} offen sc1", "kv")]))
        if i == 1:
            misc.append((60, [("vw", "old_kv"), ("v", f"v_cmp_gt_u32 vcc, {sNEED}, v{vFC}"), ("v", "s_nop 0"),
                              ("bar", "s_cbranch_vccnz Lw_Qkvwait\nLw_Qkvok:")]))
            misc += [(70 + 10 * j, fetch_v_ops(j)) for j in range(3)]
        if i == 2:
            misc += [(4 + 9 * j, fetch_v_ops(3 + j)) for j in range(5)]
        if i < 3:
            misc.append((115, touch_ops("Q", AHEAD - 1) + [("v", f"s_add_u32 {sXO}, {sXO}, 0x10000")]))
        else:
            misc += [(4, touch_ops("Q", AHEAD - 1)), (opt.get("npeek", 36), [PEEK]), (opt.get("npeek", 36) + 56, [("vw", "peek"), ("fn", lambda: att_try(e))])]
            misc.append((116, [("ds", q_read(j)) for j in range(6)]))
            refill = {j: fetch_k_op(j) for j in range(8)}
        ops = retire_ops("Q", vACC[1 - (i & 1)], 0, (vQW, (i - 1) * 8192), again=True) if i else last
        hist = segment(e, "Q", i & 1, ops, hist, reload=i < 3, misc=misc, refill=refill, cur=None if i else sGOT).aged()
        wp(e, opt, 1 + i)
    e(f"s_cmp_eq_u32 {sG}, -1\ns_cbranch_scc0 Lw_Qatt")
    e("s_waitcnt vmcnt(0)")
    e("s_waitcnt lgkmcnt(0)")
    prime(e, "Q")
    e(f"""s_lshl_b32 {sKV}, {sH}, 13
    s_lshr_b32 {sM0}, {sH}, 1
    s_lshl_b32 {sM0}, {sM0}, 1
    s_add_u32 {sM0}, {sM0}, {sSEL}
    s_lshl_b32 {sM0}, {sM0}, 1
    s_and_b32 {sU0}, {sH}, 1
    s_add_u32 {sM0}, {sM0}, {sU0}
    s_lshl_b32 {sM0}, {sM0}, 12
    s_add_u32 {sM0}, {sM0}, {KM}
    s_waitcnt vmcnt(0)
    s_branch Lw_Qnext
    Lw_Qatt:""")
    if opt.get("ev") == "Q":
        ev(e, sG)
    attention(e, opt)
    if opt.get("ev") == "Q":
        ev(e, sG, 32)
    e(f"""s_cmp_eq_u32 {sG}, 15
    s_cbranch_scc0 Lw_Qnext
    s_waitcnt vmcnt(0)""")
    store_word(e, 16, sFL, "")
    e(f"""s_branch Lw_end
    Lw_Qnext:
    v_swap_b32 v{vQW}, v{vQ3}
    v_subrev_u32 v{vQR}, {sPRE}, v{vQR}
    s_sub_u32 {sPRE}, 0, {sPRE}
    s_add_u32 {sG}, {sG}, 1
    s_add_u32 {sXO}, {sXO}, 0x10000""")
    wp(e, opt, 8)
    e(f"s_cmp_eq_u32 {sG}, 5\ns_cbranch_scc0 Lw_Qloop")
    wait_news(e, B_XF2, vT0, vT1)
    e("s_branch Lw_Qloop")


vPS, vPL = 244, 247
sOP = "s76"


def o_ring_setup(e, clear):
    for k in (1, 2, 3):
        for dst, dest, src in ((vPS, sU2, sA), (vPL, sA, sU2)):
            e(f"""s_xor_b32 {sU2}, {sA}, {k}
            s_and_b32 {sU0}, {dest}, 2
            s_add_u32 {sU0}, {sU0}, {dest}
            s_lshl_b32 {sU0}, {sU0}, 2
            s_add_u32 {sU0}, {sU0}, {src}
            s_lshl_b32 {sU0}, {sU0}, 10
            v_add_u32 v{dst + k - 1}, {sU0}, v{vLIN}""")
    e(f"""s_lshl_b32 {sU0}, {sHL}, 2
    s_add_u32 {sU0}, {sU0}, {sWAVE}
    s_lshl_b32 {sOP}, {sU0}, 15
    s_xor_b32 {sU0}, {sSEL}, 1
    s_lshl_b32 {sU0}, {sU0}, 13
    s_add_u32 {sOP}, {sOP}, {sU0}
    s_add_u32 {sOP}, {sOP}, {OP}""")
    if not clear:
        return
    for i in range(4):
        e(f"v_mov_b32 v{vDUM + i}, -1")
    for slot in range(4):
        e(f"s_add_u32 {sU0}, {sOP}, {slot * 4 * MB}")
        for k in range(3):
            e(f"buffer_store_dwordx4 {vr(vDUM)}, v{vPS + k}, {R(rWS)}, {sU0} offen sc1")


def role_o(e, opt):
    vSV, vPT = [208, 212], 216
    vOA, vFA, vPKO, vF1, vCK = 250, 11, 14, 12, 13
    sFO, sRD, sPA, sTG = "s74", "s77", "s78", "s79"
    srd(e, rB2, pOUT, 8 * MB)
    o_ring_setup(e, False)
    e(f"""v_and_b32 v{vFA}, 1, v0
    s_lshl_b32 {sU0}, {sWAVE}, 3
    v_lshl_add_u32 v{vFA}, v{vFA}, 2, {sU0}
    s_lshr_b32 {sU0}, {sWAVE}, 1
    s_lshl_b32 {sU1}, {sU0}, 8
    v_add_u32 v{vXA}, {sU1}, v{vXA}
    v_xor_b32 v{vXB}, 0x100, v{vXA}
    v_and_b32 v{vT0}, 15, v0
    v_lshrrev_b32 v{vT1}, 4, v0
    v_lshlrev_b32 v{vT1}, 3, v{vT1}
    v_lshl_add_u32 v{vOA}, v{vT0}, 12, v{vT1}
    s_lshl_b32 {sOUT}, {sU0}, 16
    s_lshl_b32 {sU0}, {sHL}, 2
    s_add_u32 {sU1}, {sU0}, {sA}
    s_lshl_b32 {sU1}, {sU1}, 1
    s_and_b32 {sU2}, {sWAVE}, 1
    s_add_u32 {sU1}, {sU1}, {sU2}
    s_lshl_b32 {sU1}, {sU1}, 5
    s_add_u32 {sOUT}, {sOUT}, {sU1}
    s_lshl_b32 {sFO}, {sA}, 9
    s_add_u32 {sFO}, {sFO}, {FO}
    s_lshl_b32 {sXO}, {sA}, 16
    s_add_u32 {sXO}, {sXO}, {OX}""")

    def flag_addr(ahead):
        return lines("v", f"""s_add_u32 {sG}, {sSEG}, {ahead + 4}
        s_and_b32 {sU2}, {sG}, 3
        s_lshl_b32 {sU2}, {sU2}, 7
        s_add_u32 {sU2}, {sU2}, {sFO}
        s_lshr_b32 {sG}, {sG}, 2""")

    def peek(ahead):
        return flag_addr(ahead) + [("vm", f"buffer_load_dword v{vF1}, v{vFA}, {R(rWS)}, {sU2} offen sc1", "peek")]

    def slot(back):
        return lines("v", f"""s_sub_u32 {sRD}, {sSEG}, {back}
        s_and_b32 {sPA}, {sRD}, 3
        s_lshl_b32 {sPA}, {sPA}, 22
        s_add_u32 {sPA}, {sPA}, {sOP}
        s_bfe_u32 {sTG}, {sRD}, 0x10002""")

    def send_ops(acc):
        ops = slot(1) + [("v", f"v_bfi_b32 v{acc + 4 * k}, 1, {sTG}, v{acc + 4 * k}") for k in (1, 2, 3)]
        return ops + [("vm", f"buffer_store_dwordx4 {vr(acc + 4 * k)}, v{vPS + k - 1}, {R(rWS)}, {sPA} offen sc1") for k in (1, 2, 3)]

    def part_loads(pt):
        return [("vm", f"buffer_load_dwordx4 {vr(pt + 4 * k)}, v{vPL + k}, {R(rWS)}, {sPA} offen sc1", "part") for k in range(3)]

    def test_ops(pt):
        return lines("v", f"""v_bitop3_b32 v{vCK}, v{pt}, v{pt + 4}, {sTG} bitop3:0x7e
        v_bitop3_b32 v{vCK}, v{vCK}, v{pt + 8}, {sTG} bitop3:0xf6
        v_and_b32 v{vCK}, 1, v{vCK}
        v_cmp_eq_u32 vcc, 1, v{vCK}""")

    slow = []

    def retry(e, pt):
        bad, ok = e.lab("stale"), e.lab("fresh")
        e(f"s_cbranch_vccnz {bad}\n{ok}:")
        slow.append((e, bad, ok, pt))

    def fin_ops(sv, pt):
        ops = [("v", f"v_add_f32 v{sv + i}, v{sv + i}, v{pt + 4 * k + i}") for k in range(3) for i in range(4)]
        ops += lines("v", f"""s_min_u32 {sRD}, {sRD}, 64
        s_lshl_b32 {sU0}, {sRD}, 17
        s_add_u32 {sU0}, {sU0}, {sOUT}""")
        ops += [("v", f"v_cvt_pk_bf16_f32 v{vPKO + i}, v{sv + 2 * i}, v{sv + 2 * i + 1}") for i in range(2)]
        ops.append(("vm", f"buffer_store_dwordx2 {vr(vPKO, 2)}, v{vOA}, {R(rB2)}, {sU0} offen"))
        return ops

    def seg(e, b, hist, reload):
        old = vACC[1 - b]
        ops = retire_ops("O", old, (1 - b) * XBUF)
        ops += [("vw", "part")] + test_ops(vPT) + [("v", "s_nop 0"), ("fn", lambda: retry(e, vPT))] + fin_ops(vSV[b], vPT)
        ops += [("v", f"v_mov_b32 v{vSV[b] + i}, v{old + i}") for i in range(4)] + send_ops(old)
        ops += [("v", f"s_add_u32 {sSEG}, {sSEG}, 1")]
        misc = [(27 if hist is COLD else 1, slot(3) + part_loads(vPT))]
        if reload:
            misc += [(88, peek(2)), (115, [("v", f"s_add_u32 {sXO}, {sXO}, 0x40000"), ("vw", "peek"),
                                           ("v", f"v_cmp_gt_u32 vcc, {sG}, v{vF1}")])]
        return segment(e, "O", b, ops, hist, reload=reload, misc=misc, cur=sPRE if hist is COLD else None).aged()

    COLD = PRIMED[:4] + ["late2"]
    hist = steady(lambda a, h: seg(a, 0, h, True))
    h2 = seg(Asm(), 0, COLD, True)
    for k in range(7):
        after = lambda h: len(h) - 1 - max(i for i, t in enumerate(h) if t == k) if k in h else 99
        assert after(h2) >= after(hist), (k, h2, hist)

    for b in range(2):
        for h, name in ((COLD, "cold"), (hist, "warm")):
            dry = e.lab("dry")
            e(f"Lw_O{name}{b}:")
            if h is COLD:
                if b == 0:
                    e(f"s_cmp_eq_u32 {sSEG}, {NSEG}\ns_cbranch_scc1 Lw_Otail")
                flush(e, flag_addr(0))
                wait_words(e, vFA, sU2, sG)
                wp(e, opt, 0)
                flush(e, peek(1))
                prime(e, "O", 2)
                e(f"s_add_u32 {sXO}, {sXO}, 0x40000\ns_waitcnt vmcnt(4)\nv_cmp_gt_u32 vcc, {sG}, v{vF1}")
            if opt.get("ev") == "O":
                ev(e, sSEG)
            e(f"s_cbranch_vccnz {dry}")
            seg(e, b, h, True)
            k = 2 if h is COLD else 6
            wp(e, opt, k)
            if opt.get("wp"):
                e(f"s_add_u32 s{85 + k}, s{85 + k}, 64")
            e(f"s_branch Lw_Owarm{1 - b}\n{dry}:")
            seg(e, b, h, False)
            wp(e, opt, k + 2)
            if opt.get("wp"):
                e(f"s_add_u32 s{87 + k}, s{87 + k}, 64")
            e(f"s_branch Lw_Ocold{1 - b}")
    e("Lw_Otail:")
    tl(e, opt, 4)
    flush(e, slot(3) + part_loads(vPT) + retire_ops("O", vACC[1], XBUF))
    e("s_waitcnt vmcnt(0)")
    flush(e, test_ops(vPT))
    retry(e, vPT)
    flush(e, send_ops(vACC[1]) + slot(2) + part_loads(vX) + slot(3) + fin_ops(vSV[0], vPT) + slot(2))
    e("s_waitcnt vmcnt(1)")
    flush(e, test_ops(vX))
    retry(e, vX)
    flush(e, slot(1) + part_loads(vPT) + slot(2) + fin_ops(vSV[1], vX) + slot(1))
    e("s_waitcnt vmcnt(1)")
    flush(e, test_ops(vPT))
    retry(e, vPT)
    flush(e, fin_ops(vACC[1], vPT))
    e("s_branch Lw_end")
    for ee, bad, ok, pt in slow:
        if ee is e:
            e(f"{bad}:\ns_cmp_lt_i32 {sRD}, 0\ns_cbranch_scc1 {ok}")
            flush(e, part_loads(pt))
            e("s_waitcnt vmcnt(0)")
            flush(e, test_ops(pt))
            e(f"s_cbranch_vccz {ok}")
            spin_fail(e, bad, ok)


def worker(e, opt):
    skip = opt.get("skip", "")
    XP.clear()
    XP.update(opt)
    XP['evreg'] = 250 if opt.get('ev') == 'Q' else 240

    e(f"""L_worker:
    s_lshr_b32 {sROLE}, {sRANK}, 3
    s_and_b32 {sHL}, {sRANK}, 7
    s_lshl_b32 {sH}, {sA}, 3
    s_add_u32 {sH}, {sH}, {sHL}
    v_lshlrev_b32 v{vLIN}, 4, v0
    v_min_u32 v{vL0}, 1, v0
    v_lshlrev_b32 v{vL0}, 28, v{vL0}
    s_mov_b32 {sSEG}, 0
    s_mov_b32 {sSEL}, 0
    s_mov_b32 {sXO}, {XF}""")
    e(f"""s_lshl_b32 {sFL}, {sH}, 7
    s_lshl_b32 {sU0}, {sWAVE}, 4
    s_add_u32 {sFL}, {sFL}, {sU0}
    s_lshl_b32 {sU0}, {sROLE}, 2
    s_add_u32 {sFL}, {sFL}, {sU0}
    s_add_u32 {sFL}, {sFL}, {FLG}
    s_lshl_b32 {sU0}, {sA}, 2
    s_add_u32 {sU0}, {sU0}, {sWAVE}
    s_lshl_b32 {sU0}, {sU0}, 7
    s_lshl_b32 {sU1}, {sHL}, 2
    s_add_u32 {sU0}, {sU0}, {sU1}
    s_add_u32 {sU0}, {sU0}, {FO}
    s_cmp_eq_u32 {sROLE}, 2
    s_cselect_b32 {sFL}, {sU0}, {sFL}
    s_cmp_lt_u32 {sROLE}, 2
    s_cbranch_scc1 Lw_nopoi
    s_cmp_eq_u32 {sROLE}, 2
    s_cbranch_scc1 Lw_qinit""")
    x_transform(e, 0)
    e("s_branch Lw_inited\nLw_qinit:")
    init_handoffs(e, opt)
    e(f"""Lw_inited:
    s_waitcnt vmcnt(0)
    s_barrier
    s_cmp_eq_u32 {sWAVE}, 0
    s_cbranch_scc0 Lw_chored
    s_cmp_eq_u32 {sROLE}, 2
    s_cbranch_scc1 Lw_probe""")
    tl(e, opt, 8)
    arrive(e, C_XF1, B_XF1, vT0, vT1)
    e("s_branch Lw_chore2\nLw_probe:")
    probe(e)
    tl(e, opt, 8)
    e("Lw_chore2:")
    wait_news(e, B_XF1 | B_VOTE, vT0, vT1)
    e(f"""s_cmp_eq_u32 {sROLE}, 2
    s_cselect_b32 {sU1}, {opt.get("qdef", 0)}, {opt.get("odef", 1)}
    s_lshl_b32 {sU2}, {sH}, 7
    s_add_u32 {sU2}, {sU2}, {FLG}
    v_mov_b32 v{vT0}, 0""")
    wait_words(e, vT0, sU2, sU1, 6)
    e("Lw_chored:\ns_barrier")
    e("Lw_nopoi:")
    tl(e, opt, 6)
    lane_setup(e)
    e(f"""s_lshl_b32 {sU0}, {sRANK}, 2
    s_add_u32 {sU0}, {sU0}, {sWAVE}
    s_lshl_b32 {sU0}, {sU0}, 10
    s_lshl_b32 {sU1}, {sU0}, 1
    s_and_b32 {sU1}, {sU1}, 0xffff
    s_cmp_lt_u32 {sROLE}, 2
    s_cselect_b32 {sU0}, {sU0}, {sU1}
    v_add_u32 v{vTCH}, {sU0}, v{vLIN}
    s_cmp_eq_u32 {sROLE}, 0
    s_cselect_b64 s[74:75], {sr(pWK)}, {sr(pWV)}
    s_cmp_eq_u32 {sROLE}, 2
    s_cselect_b64 s[74:75], {sr(pWQ)}, s[74:75]
    s_lshl_b32 {sU1}, {sH}, 8
    s_lshl_b32 {sU0}, {sA}, 21
    s_lshl_b32 {sU2}, {sHL}, 8
    s_add_u32 {sU0}, {sU0}, {sU2}
    s_cmp_eq_u32 {sROLE}, 3
    s_cselect_b64 s[74:75], {sr(pWO)}, s[74:75]
    s_cselect_b32 {sU1}, {sU0}, {sU1}
    s_cselect_b32 {sU2}, 11, 13""")
    srd(e, rB1, 74, 8 * MB)

    if opt.get("wtouch", 0):
        e(f"""s_cmp_eq_u32 {sROLE}, 3
        s_cselect_b32 {sG}, 21, 11
        s_lshl_b32 {sG}, {sA}, {sG}
        s_lshl_b32 {sU0}, {sHL}, 2
        s_add_u32 {sU0}, {sU0}, {sWAVE}
        s_lshl_b32 {sU0}, {sU0}, 5
        s_lshl_b32 {sU0}, {sU0}, {sU2}
        s_add_u32 {sG}, {sG}, {sU0}
        v_and_b32 v{vT0}, 31, v0
        v_lshlrev_b32 v{vT0}, {sU2}, v{vT0}
        v_lshrrev_b32 v{vT1}, 5, v0
        v_lshl_add_u32 v{vT0}, v{vT1}, 10, v{vT0}
        buffer_load_dword v{vDUM}, v{vT0}, {R(rB1)}, {sG} offen offset:384""")

    def kv_only(*parts):
        def hook():
            end = e.lab("hook")
            e(f"s_cmp_lt_u32 {sROLE}, 2\ns_cbranch_scc0 {end}")
            for wave, fn in parts:
                sk = e.lab("hw")
                if wave is not None:
                    e(f"s_cmp_eq_u32 {sWAVE}, {wave}\ns_cbranch_scc0 {sk}")
                fn()
                e(f"{sk}:")
            e(f"{end}:")
        return hook

    def raw_touch():
        e(f"buffer_load_dwordx4 {vr(vDUM)}, v{vTCH}, {R(rB2)}, 0 offen")

    def raw_inputs(k0):
        def fn():
            for kk in (k0, k0 + 1):
                for rt in range(2):
                    e(f"buffer_load_dwordx4 {vr(vX + 4 * (2 * kk + rt))}, v{vPK + 2 + rt}, {R(rB2)}, 0 offen offset:{64 * kk}")
        return fn

    def touches():
        wait_news(e, B_XF1 | B_VOTE, vPK, vPK + 1, sSEL, peeked=True)
        tl(e, opt, 9)
        e(f"s_mov_b32 {sG}, {sU1}")
        for i in range(1, AHEAD):
            flush(e, touch_ops("K", i))
        e(f"s_mov_b32 {sU1}, {sG}")

    srd(e, rB2, pX, 4 * MB)
    e(f"""v_bfe_u32 v{vT0}, v{vXA}, 4, 5
    v_lshlrev_b32 v{vT0}, 11, v{vT0}
    v_lshrrev_b32 v{vT1}, 4, v0
    v_lshl_add_u32 v{vT0}, v{vT1}, 4, v{vT0}
    s_lshl_b32 {sU0}, {sWAVE}, 9
    v_add_u32 v{vPK + 2}, {sU0}, v{vT0}
    s_cmp_eq_u32 {sROLE}, 1
    s_cselect_b32 {sU0}, 1, 2
    s_lshl_b32 {sU0}, {sU0}, 14
    v_add_u32 v{vPK + 3}, {sU0}, v{vPK + 2}""")
    kv_only((None, raw_touch))()
    hooks = {9: [(None, lambda: peek_news(e, vPK, vPK + 1))], 11: [(None, touches)]}
    for i in range(4):
        hooks.setdefault(2 + i, []).append((None, raw_inputs(2 * i)))
    XP["pick"] = load_weights(e, {n: kv_only(*p) for n, p in hooks.items()}, 3)
    e(f"s_cmp_lt_u32 {sROLE}, 2\ns_cbranch_scc1 Lw_go\ns_waitcnt vmcnt(8)")
    flush(e, XP["pick"][0])
    wait_news(e, B_XF1 | B_VOTE, vT0, vT1, sSEL)
    flush(e, XP["pick"][1])
    tl(e, opt, 2)
    e(f"s_barrier\ns_cmp_eq_u32 {sROLE}, 3\ns_cbranch_scc0 Lw_go")
    o_ring_setup(e, True)
    x_transform(e, 1)
    e(f"s_waitcnt vmcnt(0)\ns_barrier\ns_cmp_eq_u32 {sWAVE}, 0\ns_cbranch_scc0 Lw_noxf2")
    arrive(e, C_XF2, B_XF2, vT0, vT1)
    wait_news(e, B_XF2, vT0, vT1)
    e("Lw_noxf2:\ns_barrier\nLw_go:")
    tl(e, opt, 3)
    wp(e, opt, -1)
    for r, ch in enumerate("KVQO"):
        if ch in skip:
            e(f"s_cmp_eq_u32 {sROLE}, {r}\ns_cbranch_scc1 {'L_ssm' if ch in 'KV' else 'Lw_end'}")
    e(f"""s_cmp_eq_u32 {sROLE}, 0
    s_cbranch_scc1 Lw_K
    s_cmp_eq_u32 {sROLE}, 1
    s_cbranch_scc1 Lw_V
    s_cmp_eq_u32 {sROLE}, 2
    s_cbranch_scc1 {'Lw_K' if opt.get('allk') else 'Lw_Q'}""")
    if opt.get("allk"):
        e("s_branch Lw_K")
    if not opt.get("allk"):
        role_o(e, opt)
        role_q(e, opt)
    e("Lw_end:")
    ev_out(e)
    span(e, opt, 3)
    wp_out(e, opt)
    tl(e, opt, 5)
    e("s_endpgm")
    role_kv(e, "K", opt)
    role_kv(e, "V", opt)
    e("L_ssm:")
    wp(e, opt, 0)
    wp_out(e, opt)
    tl(e, opt, 4)
    if "S" not in skip:
        gen_ssm.ssm(e, opt)
    span(e, opt, 4)
    tl(e, opt, 5)
    e("L_code_end:\ns_endpgm")
```
